```python
import torch

def _softmax(x, axis=-1):
    return torch.softmax(x, dim=axis)
def _gelu(x):
    return torch.nn.functional.gelu(x, approximate="tanh")
def _silu(x):
    return torch.nn.functional.silu(x)
def _sigmoid(x):
    return torch.sigmoid(x)
def _layernorm(x, axis=-1, eps=1e-5):
    m = x.mean(dim=axis, keepdim=True)
    v = x.var(dim=axis, keepdim=True, unbiased=False)
    return (x - m) / torch.sqrt(v + eps)
def _scatter_add(tgt, idx, src, axis=0):
    return tgt.clone().index_add_(axis, idx, src)
def _segment_sum(src, seg, n):
    out = torch.zeros((n,) + src.shape[1:], dtype=src.dtype)
    return out.index_add_(0, seg, src)
def _pad(x, pw):
    flat = tuple(v for pair in reversed(pw) for v in pair)
    return torch.nn.functional.pad(x, flat)

kernel_name = 'gated_mix__sliding_local_dilated__glu_gated_glu__prompt'

def setup_inputs():

    _w = (lambda a: (lambda t: t.to(torch.bfloat16) if t.is_floating_point() else t)(torch.as_tensor(a)))
    def _A_setup():
        B, S, D = 1, 2048, 576
        return {
            "x": _w((lambda *s: torch.randn(*s, dtype=torch.bfloat16) * 0.05)(B, S, D)),
            "wqkv": _w((lambda *s: torch.randn(*s, dtype=torch.bfloat16) * 0.8)(D, 3 * D)),
            "wo": _w((lambda *s: torch.randn(*s, dtype=torch.bfloat16) * 0.05)(D, D)),
        }
    _A_in = _A_setup()

    def _B_setup():
        B, S, D, F = 1, 2048, 576, 4608
        return {
            "x": _w((lambda *s: torch.randn(*s, dtype=torch.bfloat16) * 0.05)(B, S, D)),
            "w_gate": _w((lambda *s: torch.randn(*s, dtype=torch.bfloat16) * 1.6)(D, F)),
            "w_up": _w((lambda *s: torch.randn(*s, dtype=torch.bfloat16) * 0.1)(D, F)),
            "w_down": _w((lambda *s: torch.randn(*s, dtype=torch.bfloat16) * 0.1)(F, D)),
        }
    _B_in = _B_setup()

    return {
        "A_x": _A_in["x"],
        "A_wqkv": _A_in["wqkv"],
        "A_wo": _A_in["wo"],
        "B_x": _B_in["x"],
        "B_w_gate": _B_in["w_gate"],
        "B_w_up": _B_in["w_up"],
        "B_w_down": _B_in["w_down"],
        "gate_w": _w((lambda *s: torch.randn(*s, dtype=torch.bfloat16) * 0.05)(576) * 16.0),
    }

def reference(A_x, A_wqkv, A_wo, B_x, B_w_gate, B_w_up, B_w_down, gate_w):
    def _A_ref(x, wqkv, wo):
        B, S, D = x.shape
        H = 32; Dh = D // H
        W, dil = 8, 2
        qkv = (lambda x, *d: x.permute(*d))((x @ wqkv).reshape(B, S, 3, H, Dh), 2, 0, 3, 1, 4)
        q, k, v = qkv[0], qkv[1], qkv[2]
        scale = Dh ** -0.5
        pos = torch.arange(S)
        off = torch.arange(W) * dil
        idx = pos[:, None] - off[None, :]
        mask = idx >= 0
        idx_c = torch.where(mask, idx, 0).reshape(-1)
        kg = k[:, :, idx_c, :].reshape(B, H, S, W, Dh)
        vg = v[:, :, idx_c, :].reshape(B, H, S, W, Dh)
        logits = torch.einsum("bhsd,bhswd->bhsw", q, kg) * scale
        logits = torch.where(mask[None, None, :, :], logits, -1e9)
        attn = _softmax(logits, axis=-1)
        o = torch.einsum("bhsw,bhswd->bhsd", attn, vg)
        return (lambda x, *d: x.permute(*d))(o, 0, 2, 1, 3).reshape(B, S, D) @ wo

    def _B_ref(x, w_gate, w_up, w_down):
        g = torch.einsum("bsd,df->bsf", x, w_gate)
        u = torch.einsum("bsd,df->bsf", x, w_up)
        h = _sigmoid(g) * u
        return torch.einsum("bsf,fd->bsd", h, w_down)

    x = A_x
    g = _sigmoid((x * gate_w).sum(-1, keepdims=True))
    a = _A_ref(x, A_wqkv, A_wo)
    b = _B_ref(x, B_w_gate, B_w_up, B_w_down)
    return g * a + (1 - g) * b
```

```python
import sys, argparse

NAME = "gated_mix__sliding_local_dilated__glu_gated_glu__prompt"

NKB = 324
HP_OFF = 0
HP_BYTES = 64 * NKB * 1024
G_OFF = 0x1500000
PART_OFF = 0x1600000
NSPLIT = 5
PART_BYTES = NSPLIT * 2048 * 576 * 4
WS_BYTES = 268435456

LOG2E = 1.4426950408889634


def f2u(x):
    import struct
    return struct.unpack("<I", struct.pack("<f", x))[0]


class KB:
    def __init__(self):
        self.lines = []
        self.vm = []
        self.vm_done = 0
        self.lg = []
        self.lg_done = 0
        self.n = 0

    def e(self, s):
        self.lines.append("    " + s)
        self.n += 1

    def c(self, s):
        self.lines.append("    ; " + s)

    def label(self, s):
        self.lines.append(s + ":")

    def vmop(self, s, tag):
        self.e(s)
        self.vm.append(tag)

    def lgop(self, s, tag):
        self.e(s)
        self.lg.append(tag)
        assert len(self.lg) - self.lg_done <= 15, "too many lgkm outstanding"

    def _last(self, lst, tag):
        for i in range(len(lst) - 1, -1, -1):
            if lst[i] == tag:
                return i
        raise KeyError(tag)

    def need(self, vm=None, lg=None):
        parts = []
        if vm is not None:
            tags = vm if isinstance(vm, list) else [vm]
            i = max(self._last(self.vm, t) for t in tags)
            if i >= self.vm_done:
                n = len(self.vm) - 1 - i
                n = min(n, 63)
                parts.append(f"vmcnt({n})")
                self.vm_done = len(self.vm) - n
        if lg is not None:
            tags = lg if isinstance(lg, list) else [lg]
            i = max(self._last(self.lg, t) for t in tags)
            if i >= self.lg_done:
                n = len(self.lg) - 1 - i
                parts.append(f"lgkmcnt({n})")
                self.lg_done = len(self.lg) - n
        if parts:
            self.e("s_waitcnt " + " ".join(parts))

    def wait_all(self, vm=True, lg=True):
        p = []
        if vm:
            p.append("vmcnt(0)")
            self.vm_done = len(self.vm)
        if lg:
            p.append("lgkmcnt(0)")
            self.lg_done = len(self.lg)
        self.e("s_waitcnt " + " ".join(p))

    def text(self):
        return "\n".join(self.lines) + "\n"


def kd(label, vgpr, sgpr, accum):
    return f"""
.section .rodata,"a"
.p2align 6
.amdhsa_kernel {label}
  .amdhsa_next_free_vgpr {vgpr}
  .amdhsa_next_free_sgpr {sgpr}
  .amdhsa_accum_offset {accum}
  .amdhsa_group_segment_fixed_size 0
  .amdhsa_kernarg_size 88
  .amdhsa_user_sgpr_count 2
  .amdhsa_user_sgpr_kernarg_segment_ptr 1
  .amdhsa_system_sgpr_workgroup_id_x 1
.end_amdhsa_kernel
.text
"""


def kstart(label):
    return f""".globl {label}
.p2align 8
.type {label},@function
{label}:
"""


def srd(k, d, lo, hi, nbytes):
    k.e(f"s_mov_b32 s{d}, s{lo}")
    k.e(f"s_mov_b32 s{d+1}, s{hi}")
    k.e(f"s_mov_b32 s{d+2}, {nbytes}")
    k.e(f"s_mov_b32 s{d+3}, 0x00020000")


def vr(b, n=4):
    return f"v[{b}:{b+n-1}]"


def ar(b, n=4):
    return f"a[{b}:{b+n-1}]"


S_WAVE, S_RB, S_FG = 32, 33, 34
S_XBASE, S_WBASE, S_STBASE, S_M0X, S_M0W, S_T0, S_T1, S_T2 = 35, 36, 37, 38, 39, 40, 41, 42


def k1_prologue(k):
    k.e("s_cmp_ge_u32 s2, 256")
    k.e("s_cbranch_scc1 K1_END")
    k.e("s_load_dwordx4 s[4:7], s[0:1], 0")
    k.e("s_load_dwordx4 s[24:27], s[0:1], 32")
    k.e("s_load_dwordx2 s[28:29], s[0:1], 56")
    k.e("s_load_dwordx2 s[30:31], s[0:1], 80")
    k.e("v_lshrrev_b32 v1, 6, v0")
    k.e("v_and_b32 v0, 63, v0")
    k.e("s_nop 0")
    k.e(f"v_readfirstlane_b32 s{S_WAVE}, v1")
    k.e("s_and_b32 s40, s2, 7")
    k.e("s_lshr_b32 s41, s2, 3")
    k.e("s_and_b32 s42, s40, 1")
    k.e("s_lshr_b32 s43, s40, 1")
    k.e("s_and_b32 s44, s41, 3")
    k.e(f"s_lshl_b32 s{S_RB}, s42, 2")
    k.e(f"s_add_u32 s{S_RB}, s{S_RB}, s44")
    k.e("s_lshr_b32 s45, s41, 2")
    k.e("s_waitcnt lgkmcnt(0)")
    srd(k, 8, 4, 5, 2048 * 1152)
    srd(k, 16, 30, 31, WS_BYTES)
    srd(k, 20, 28, 29, 1152)
    k.e("v_lshrrev_b32 v2, 3, v0")
    k.e("v_and_b32 v3, 7, v0")
    k.e("v_lshrrev_b32 v4, 1, v2")
    k.e("v_xor_b32 v5, v3, v4")
    k.e("v_xor_b32 v6, 4, v5")
    k.e("v_mul_u32_u24 v7, 1152, v2")
    k.e("v_lshl_add_u32 v36, v5, 4, v7")
    k.e("v_lshl_add_u32 v37, v6, 4, v7")
    k.e("v_and_b32 v2, 31, v0")
    k.e("v_lshrrev_b32 v3, 5, v0")
    k.e("v_bfe_u32 v4, v2, 1, 3")
    k.e(f"s_lshl_b32 s46, s{S_WAVE}, 14")
    k.e("v_lshlrev_b32 v5, 7, v2")
    k.e("v_add_u32 v5, s46, v5")
    for ksl in range(4):
        k.e(f"v_add_u32 v6, {2*ksl}, v3")
        k.e("v_xor_b32 v6, v6, v4")
        k.e(f"v_lshl_add_u32 v{32+ksl}, v6, 4, v5")
    k.e("v_lshlrev_b32 v39, 4, v0")
    k.e(f"s_lshl_b32 s47, s{S_RB}, 2")
    k.e(f"s_add_u32 s47, s47, s{S_WAVE}")
    k.e(f"s_mul_i32 s{S_XBASE}, s47, {64*1152}")
    k.e("s_cmp_ge_u32 s41, 24")
    k.e("s_cbranch_scc1 K1_QKV")


def k1_mlp(k, P):
    DELTA, D, R, NB, RA = P["delta"], P["D"], P["R"], 4, P["ra"]
    WB = 0
    XB = R * 4096
    assert XB + 65536 <= 163840
    assert R >= D + 3 * DELTA + 2
    V_AF = 8
    V_WA, V_WB2 = 24, 28
    V_XR = 32
    V_XE, V_XO, V_WD, V_ST = 36, 37, 38, 39
    V_T = 40
    V_XF = 64
    V_ACC = 96

    def xf(ks, rt):
        if ks < 32:
            return ar((ks * 2 + rt) * 4)
        return vr(V_XF + ((ks - 32) * 2 + rt) * 4)

    def acc(slot, rt):
        return V_ACC + (slot * 2 + rt) * 16

    k.c("---------------- MLP path ----------------")
    k.e(f"s_mul_i32 s{S_FG}, s43, 6")
    k.e(f"s_add_u32 s{S_FG}, s{S_FG}, s45")
    k.e(f"s_cmp_ge_u32 s{S_WAVE}, 2")
    k.e("s_cselect_b32 s12, s26, s24")
    k.e("s_cselect_b32 s13, s27, s25")
    k.e(f"s_mov_b32 s14, {576*9216}")
    k.e("s_mov_b32 s15, 0x00020000")
    k.e("v_lshrrev_b32 v2, 3, v0")
    k.e("v_and_b32 v3, 7, v0")
    k.e("v_bfe_u32 v4, v2, 1, 1")
    k.e(f"s_and_b32 s46, s{S_WAVE}, 2")
    k.e("v_or_b32 v4, s46, v4")
    k.e("v_lshlrev_b32 v4, 1, v4")
    k.e("v_xor_b32 v3, v3, v4")
    k.e("s_mov_b32 s47, 9216")
    k.e("v_mul_lo_u32 v2, v2, s47")
    k.e(f"v_lshl_add_u32 v{V_WD}, v3, 4, v2")
    k.e(f"s_and_b32 s46, s{S_WAVE}, 1")
    k.e(f"s_mul_i32 s{S_WBASE}, s46, {8*9216}")
    k.e(f"s_mul_i32 s47, s{S_FG}, 384")
    k.e(f"s_add_u32 s{S_WBASE}, s{S_WBASE}, s47")
    k.e(f"s_lshl_b32 s{S_M0W}, s{S_WAVE}, 10")
    k.e(f"s_lshl_b32 s{S_M0X}, s{S_WAVE}, 14")
    k.e(f"s_add_u32 s{S_M0X}, s{S_M0X}, {XB}")
    k.e("v_lshrrev_b32 v2, 4, v0")
    k.e("v_bfe_u32 v3, v0, 2, 2")
    k.e("v_and_b32 v4, 3, v0")
    k.e("v_lshrrev_b32 v5, 1, v4")
    k.e("v_lshrrev_b32 v6, 1, v2")
    k.e("v_lshl_add_u32 v6, v6, 3, v3")
    k.e("v_lshlrev_b32 v6, 7, v6")
    k.e("v_lshl_add_u32 v6, v5, 11, v6")
    k.e("v_and_b32 v7, 1, v4")
    k.e("v_lshl_add_u32 v6, v7, 4, v6")
    k.e("v_and_b32 v7, 1, v2")
    k.e("v_lshl_add_u32 v6, v7, 3, v6")
    k.e("v_lshrrev_b32 v7, 1, v3")
    k.e("v_lshl_or_b32 v7, v5, 1, v7")
    for j in range(4):
        k.e(f"v_xor_b32 v5, {j}, v7")
        k.e(f"v_lshl_add_u32 v{V_WA+j}, v5, 5, v6")
        k.e(f"v_add_u32 v{V_WB2+j}, 0x10000, v{V_WA+j}")
    for ksl in range(4):
        k.e(f"v_add_u32 v{V_XR+ksl}, {XB}, v{V_XR+ksl}")
    k.e(f"s_lshl_b32 s46, s{S_RB}, 3")
    k.e(f"s_lshl_b32 s47, s{S_WAVE}, 1")
    k.e("s_add_u32 s46, s46, s47")
    k.e(f"s_mul_i32 s46, s46, {NKB}")
    k.e(f"s_mul_i32 s47, s{S_FG}, 12")
    k.e("s_add_u32 s46, s46, s47")
    k.e("s_add_u32 s46, s46, 36")
    k.e(f"s_lshl_b32 s{S_STBASE}, s46, 10")

    def dma_x(s, p):
        buf = s & 1
        v = V_XE if p % 2 == 0 else V_XO
        def f():
            k.e(f"s_add_u32 m0, s{S_M0X}, {buf*8192 + p*1024}")
            k.e(f"s_add_u32 s{S_T0}, s{S_XBASE}, {p*8*1152 + s*128}")
            k.vmop(f"buffer_load_dwordx4 v{v}, s[8:11], s{S_T0} offen lds", ("x", s))
        return f

    def dma_w(u):
        c, ks = divmod(u, 36)
        slot = u % R
        def f():
            k.e(f"s_add_u32 m0, s{S_M0W}, {WB + slot*4096}")
            k.e(f"s_add_u32 s{S_T1}, s{S_WBASE}, {ks*16*9216 + c*128}")
            k.vmop(f"buffer_load_dwordx4 v{V_WD}, s[12:15], s{S_T1} offen lds", ("w", u))
        return f

    def xread(s, ksl, rt):
        ks = 4 * s + ksl
        buf = s & 1
        def f():
            k.lgop(f"ds_read_b128 {xf(ks, rt)}, v{V_XR+ksl} offset:{buf*8192 + rt*4096}", ("xf", ks, rt))
        return f

    def aread(i, j, u, half):
        slot = u % R
        off = WB + slot * 4096 + half * 512
        base = V_WA + j
        if off >= 65536:
            off -= 65536
            base = V_WB2 + j
        d = V_AF + (i % NB) * 4 + half * 2
        def f():
            k.lgop(f"ds_read_b64_tr_b16 {vr(d,2)}, v{base} offset:{off}", ("af", i, half))
        return f

    def epilogue(n):
        c, j = divmod(n, 4)
        slot = n % 5
        ops = []
        for rt in range(2):
            a = acc(slot, rt)
            tb = V_T + rt * 12
            pk = tb + 8
            gi = [a + 0, a + 1, a + 2, a + 3, a + 8, a + 9, a + 10, a + 11]
            ui = [a + 4, a + 5, a + 6, a + 7, a + 12, a + 13, a + 14, a + 15]
            for h in range(8):
                ops.append(f"v_mul_f32 v{tb+h}, 0x{f2u(-LOG2E):08x}, v{gi[h]}")
            for h in range(8):
                ops.append(f"v_exp_f32 v{tb+h}, v{tb+h}")
            for h in range(8):
                ops.append(f"v_add_f32 v{tb+h}, 1.0, v{tb+h}")
            for h in range(8):
                ops.append(f"v_rcp_f32 v{tb+h}, v{tb+h}")
            for h in range(8):
                ops.append(f"v_mul_f32 v{tb+h}, v{tb+h}, v{ui[h]}")
            for h in range(4):
                ops.append(f"v_cvt_pk_bf16_f32 v{pk+h}, v{tb+2*h}, v{tb+2*h+1}")
            off = (rt * NKB + 4 * c + j) * 1024
            ops.append(("st", f"s_add_u32 s{S_T2}, s{S_STBASE}, {off}",
                        f"buffer_store_dwordx4 {vr(pk)}, v{V_ST}, s[16:19], s{S_T2} offen{P['hst']}"))
        return ops

    NU = 108
    T_total = NU + 3 * DELTA
    pairs = []
    for t in range(T_total):
        for j in range(4):
            u = t - j * DELTA
            if 0 <= u < NU:
                pairs.append((t, j, u))
    first_of_step = {}
    for i, (t, j, u) in enumerate(pairs):
        first_of_step.setdefault(t, i)

    for p in range(8):
        dma_x(0, p)()
    for u in range(0, 3):
        dma_w(u)()
    for p in range(8):
        dma_x(1, p)()
    for u in range(3, D):
        dma_w(u)()
    k.need(vm=[("x", 0), ("w", 0)])
    for ksl in range(4):
        for rt in range(2):
            xread(0, ksl, rt)()
    k.e("s_barrier")
    fill = []
    epi = []
    visible = 0
    issued_reads = 0
    last_mfma_n = {}

    def emit_epi(nmax, upto_inst=None):
        cnt = 0
        while epi and (cnt < nmax if upto_inst is None else epi[0][0] <= upto_inst):
            n, o = epi.pop(0)
            gap = k.n - last_mfma_n[n]
            if gap < 13:
                k.e(f"s_nop {min(15, 13 - gap)}")
            if isinstance(o, tuple):
                k.e(o[1])
                k.vmop(o[2], ("st",))
                cnt += 2
            else:
                k.e(o)
                cnt += 1

    def issue_reads_upto(i_target):
        nonlocal issued_reads
        while issued_reads <= i_target and issued_reads < len(pairs):
            t, j, u = pairs[issued_reads]
            if u > visible:
                break
            aread(issued_reads, j, u, 0)()
            aread(issued_reads, j, u, 1)()
            issued_reads += 1

    def ensure(lst, tag):
        while tag not in lst:
            fill.pop(0)()

    epi_start = {}
    for i, (t, j, u) in enumerate(pairs):
        if u % 36 == 35:
            epi_start[i + 3] = (u // 36) * 4 + j
    npairs_in_step = {}
    for (t, j, u) in pairs:
        npairs_in_step[t] = npairs_in_step.get(t, 0) + 1

    for i, (t, j, u) in enumerate(pairs):
        if first_of_step[t] == i:
            if t + 1 < NU:
                ensure(k.vm, ("w", t + 1))
                k.need(vm=("w", t + 1))
                k.e("s_barrier")
                visible = t + 1
            if t + D < NU:
                fill.append(dma_w(t + D))
            if (t + 2) % 4 == 0 and 1 <= (t + 2) // 4 <= 8:
                s = (t + 2) // 4
                def waitx(s=s):
                    k.need(vm=("x", s))
                fill.append(waitx)
                for ksl in range(4):
                    for rt in range(2):
                        fill.append(xread(s, ksl, rt))
            for (dt, ps) in ((1, range(0, 4)), (0, range(4, 8))):
                if (t + dt) % 4 == 0:
                    s = (t + dt) // 4
                    if s + 2 <= 8 and (s >= 1 or dt == 0):
                        pl = list(ps) if s >= 1 else list(range(8))
                        def waitr(s=s):
                            k.need(lg=("xf", 4 * s + 3, 1))
                        fill.append(waitr)
                        for p in pl:
                            fill.append(dma_x(s + 2, p))
            gaps_left = 2 * npairs_in_step[t]
        if i in epi_start:
            n_ = epi_start[i]
            epi.extend((n_, o) for o in epilogue(n_))
        c, ks = divmod(u, 36)
        n = c * 4 + j
        slot = n % 5
        if ks == 0 and n >= 5:
            assert all(v != n - 5 or key <= i for key, v in epi_start.items()), "epilogue not started"
            emit_epi(0, upto_inst=n - 5)
        af = vr(V_AF + (i % NB) * 4)
        issue_reads_upto(i)
        assert issued_reads > i
        needs_lg = [("af", i, 1)]
        if c == 0 and j == 0:
            ensure(k.lg, ("xf", ks, 1))
            needs_lg += [("xf", ks, 0), ("xf", ks, 1)]
        k.need(lg=needs_lg)
        for rt in range(2):
            a = acc(slot, rt)
            cin = "0" if ks == 0 else vr(a, 16)
            k.e(f"v_mfma_f32_32x32x16_bf16 {vr(a,16)}, {af}, {xf(ks,rt)}, {cin}")
            last_mfma_n[n] = k.n
            if rt == 0:
                issue_reads_upto(i + RA)
            nf = -(-len(fill) // gaps_left)
            gaps_left -= 1
            cnt = 0
            while fill and cnt < nf:
                if len(k.lg) - k.lg_done >= 11:
                    break
                fill.pop(0)()
                cnt += 1
            emit_epi(P["epg"])
    while fill:
        fill.pop(0)()
    for i in sorted(epi_start):
        if i >= len(pairs):
            n_ = epi_start[i]
            epi.extend((n_, o) for o in epilogue(n_))
    emit_epi(100000)
    k.wait_all()
    k.e("s_branch K1_END")


def k1_qkv(k, P):
    k.label("K1_QKV")
    k.c("---------------- QKV + attention path ----------------")
    k.vm, k.vm_done, k.lg, k.lg_done = [], 0, [], 0
    WST = 28672
    WB = 0
    XB = 3 * WST
    HB = XB + 65536
    GB = HB + 3 * 2048
    assert GB + 2048 <= 163840
    PITCH = 432
    V_XR = 32
    V_XE, V_XO = 36, 37
    V_WD = 40
    V_TA = 47
    V_HA = 54
    V_HB = 57
    V_GW = 59
    V_HW = 60
    V_GA = 64
    V_AF = 68
    V_XF = 84
    V_GF = 148
    V_HAF = 156
    V_HBF = 168
    k.e(f"s_lshl_b32 s{S_FG}, s43, 1")
    k.e(f"s_add_u32 s{S_FG}, s{S_FG}, s45")
    k.e(f"s_sub_u32 s{S_FG}, s{S_FG}, 6")
    srd(k, 12, 6, 7, 576 * 3456)
    k.e(f"s_mul_i32 s46, s{S_WAVE}, {7*64}")
    k.e(f"s_mul_i32 s47, s{S_FG}, 144")
    k.e("s_mov_b32 s48, 3456")
    for ii in range(7):
        k.e(f"v_add_u32 v2, s46, v0")
        k.e(f"v_add_u32 v2, {64*ii}, v2")
        k.e("v_mul_u32_u24 v3, 2428, v2")
        k.e("v_lshrrev_b32 v3, 16, v3")
        k.e("v_mul_u32_u24 v4, 27, v3")
        k.e("v_sub_u32 v4, v2, v4")
        k.e("v_mul_u32_u24 v5, 57, v4")
        k.e("v_lshrrev_b32 v5, 9, v5")
        k.e("v_mul_u32_u24 v6, 9, v5")
        k.e("v_sub_u32 v6, v4, v6")
        k.e("v_mul_lo_u32 v7, v3, s48")
        k.e("v_mul_u32_u24 v5, 1152, v5")
        k.e("v_add3_u32 v7, v7, v5, s47")
        k.e(f"v_lshl_add_u32 v{V_WD+ii}, v6, 4, v7")
        k.e("v_cmp_lt_u32 vcc, 63, v3")
        k.e("v_mov_b32 v4, 0x7ff00000")
        k.e("s_nop 0")
        k.e(f"v_cndmask_b32 v{V_WD+ii}, v{V_WD+ii}, v4, vcc")
    k.e("v_lshrrev_b32 v2, 4, v0")
    k.e("v_bfe_u32 v3, v0, 2, 2")
    k.e("v_and_b32 v4, 3, v0")
    k.e("v_lshrrev_b32 v5, 1, v2")
    k.e("v_lshl_add_u32 v5, v5, 3, v3")
    k.e(f"v_mul_u32_u24 v5, {PITCH}, v5")
    k.e("v_and_b32 v6, 1, v4")
    k.e("v_mul_u32_u24 v6, 72, v6")
    k.e("v_add_u32 v5, v5, v6")
    k.e("v_and_b32 v6, 1, v2")
    k.e("v_lshrrev_b32 v7, 1, v4")
    k.e("v_lshl_add_u32 v6, v6, 1, v7")
    for T in range(7):
        k.e(f"v_add_u32 v7, {4*T}, v6")
        k.e("v_min_u32 v7, 26, v7")
        k.e("v_mul_u32_u24 v8, 57, v7")
        k.e("v_lshrrev_b32 v8, 9, v8")
        k.e("v_mul_u32_u24 v9, 9, v8")
        k.e("v_sub_u32 v9, v7, v9")
        k.e("v_add_u32 v8, 1, v8")
        k.e("v_cmp_eq_u32 vcc, 3, v8")
        k.e("s_nop 1")
        k.e("v_cndmask_b32 v8, v8, 0, vcc")
        k.e("v_mul_u32_u24 v8, 144, v8")
        k.e("v_lshl_add_u32 v8, v9, 3, v8")
        k.e(f"v_add_u32 v{V_TA+T}, v5, v8")
    k.e("v_lshl_add_u32 v5, v2, 3, v3")
    k.e(f"v_mul_u32_u24 v5, {PITCH}, v5")
    k.e("v_and_b32 v10, 15, v0")
    k.e("v_mul_u32_u24 v10, 592, v10")
    for i in range(3):
        k.e(f"s_mul_i32 s46, s{S_WAVE}, 3")
        k.e(f"s_add_u32 s46, s46, {i}")
        k.e("s_min_u32 s46, s46, 8")
        k.e("s_lshl_b32 s46, s46, 2")
        for which in range(2):
            src = "v4" if which == 0 else "v2"
            k.e(f"v_add_u32 v7, s46, {src}")
            k.e("v_mul_u32_u24 v8, 57, v7")
            k.e("v_lshrrev_b32 v8, 9, v8")
            k.e("v_mul_u32_u24 v9, 9, v8")
            k.e("v_sub_u32 v9, v7, v9")
            k.e("v_lshrrev_b32 v11, 1, v8")
            k.e("v_and_b32 v8, 1, v8")
            if which == 0:
                k.e("v_mul_u32_u24 v8, 144, v8")
                k.e("v_mul_u32_u24 v11, 72, v11")
                k.e("v_add3_u32 v8, v8, v11, v5")
                k.e("v_lshl_add_u32 v8, v9, 3, v8")
                k.e(f"v_add_u32 v{V_HA+i}, 144, v8")
            else:
                k.e("v_mul_u32_u24 v8, 144, v8")
                k.e("v_mul_u32_u24 v11, 288, v11")
                k.e("v_add3_u32 v8, v8, v11, v10")
                k.e(f"v_lshl_add_u32 v{V_HW+i}, v9, 4, v8")
    k.e("v_and_b32 v5, 15, v0")
    k.e("v_bfe_u32 v6, v5, 1, 3")
    for k32 in range(2):
        k.e(f"v_add_u32 v7, {4*k32}, v2")
        k.e("v_xor_b32 v7, v7, v6")
        k.e("v_lshlrev_b32 v7, 4, v7")
        k.e("v_lshl_add_u32 v7, v5, 7, v7")
        k.e(f"v_add_u32 v{V_HB+k32}, {HB}, v7")
    k.e("v_lshrrev_b32 v5, 5, v0")
    k.e("v_lshlrev_b32 v5, 4, v5")
    k.e(f"v_add_u32 v{V_GW}, {GB}, v5")
    for ksl in range(4):
        k.e(f"v_add_u32 v{V_XR+ksl}, {XB}, v{V_XR+ksl}")
    k.e(f"v_mov_b32 v{V_GA}, 0")
    k.e(f"v_mov_b32 v{V_GA+1}, 0")
    k.e(f"s_lshl_b32 s{S_M0X}, s{S_WAVE}, 14")
    k.e(f"s_add_u32 s{S_M0X}, s{S_M0X}, {XB}")
    k.e(f"s_mul_i32 s{S_M0W}, s{S_WAVE}, {7*1024}")
    k.e(f"s_and_b32 s46, s{S_WAVE}, 1")
    k.e(f"s_lshl_b32 s47, s{S_RB}, 8")
    k.e("s_lshl_b32 s48, s46, 3")
    k.e("s_add_u32 s47, s47, s48")
    k.e("s_sub_u32 s47, s47, 16")
    k.e("s_mul_i32 s47, s47, 1152")
    k.e("s_cmp_eq_u32 s46, 0")
    k.e("s_cselect_b64 vcc, -1, 0")
    k.e(f"v_cndmask_b32 v63, v{V_XO}, v{V_XE}, vcc")
    k.e("v_add_u32 v63, s47, v63")
    k.e("s_lshl_b32 s49, s46, 10")
    k.e(f"s_add_u32 s49, s49, {HB}")
    k.e("s_lshl_b32 s48, s46, 10")
    k.e(f"s_add_u32 m0, s48, {GB}")
    k.e("s_nop 0")
    k.vmop("buffer_load_dwordx4 v39, s[20:23], s48 offen lds", ("gw",))

    def dma_x(s, p):
        buf = s & 1
        v = V_XE if p % 2 == 0 else V_XO
        def f():
            k.e(f"s_add_u32 m0, s{S_M0X}, {buf*8192 + p*1024}")
            k.e(f"s_add_u32 s{S_T0}, s{S_XBASE}, {p*8*1152 + s*128}")
            k.vmop(f"buffer_load_dwordx4 v{v}, s[8:11], s{S_T0} offen lds", ("x", s))
        return f

    def dma_w(s, ii):
        st = s % 3
        def f():
            k.e(f"s_add_u32 m0, s{S_M0W}, {WB + st*WST + ii*1024}")
            k.e(f"s_mov_b32 s{S_T1}, {s*64*3456}")
            k.vmop(f"buffer_load_dwordx4 v{V_WD+ii}, s[12:15], s{S_T1} offen lds", ("w", s))
        return f

    def dma_h(s):
        st = s % 3
        def f():
            k.e(f"s_add_u32 m0, s49, {st*2048}")
            k.e(f"s_mov_b32 s{S_T1}, {s*128}")
            k.vmop(f"buffer_load_dwordx4 v63, s[8:11], s{S_T1} offen lds", ("w", s))
        return f

    def xfr(s, ksl, rt):
        return V_XF + ((s & 1) * 8 + ksl * 2 + rt) * 4

    def xread(s, ksl, rt):
        def f():
            k.lgop(f"ds_read_b128 {vr(xfr(s,ksl,rt))}, v{V_XR+ksl} offset:{(s&1)*8192 + rt*4096}", ("xf", s, ksl, rt))
        return f

    def tr_addr(vbase, off):
        return vbase, off

    V_TA2 = 176
    V_HA2 = 183
    for T in range(7):
        k.e(f"v_add_u32 v{V_TA2+T}, {2*WST}, v{V_TA+T}")
    for i in range(3):
        k.e(f"v_add_u32 v{V_HA2+i}, {2*WST}, v{V_HA+i}")

    def aread(i, s, ksl, T, half):
        st = s % 3
        off = (ksl * 16 + half * 4) * PITCH
        if st == 2:
            base = V_TA2 + T
        else:
            base = V_TA + T
            off += st * WST
        d = V_AF + (i % 4) * 4 + half * 2
        k.lgop(f"ds_read_b64_tr_b16 {vr(d,2)}, v{base} offset:{off}", ("af", i, half))

    def haread(s, k32, i, half):
        st = s % 3
        off = (k32 * 32 + half * 4) * PITCH
        if st == 2:
            base = V_HA2 + i
        else:
            base = V_HA + i
            off += st * WST
        d = V_HAF + i * 4 + half * 2
        k.lgop(f"ds_read_b64_tr_b16 {vr(d,2)}, v{base} offset:{off}", ("haf", s, k32, i, half))

    def accq(T, rt):
        return (T * 2 + rt) * 16
    A_H = 224

    for p in range(8):
        dma_x(0, p)()
    for ii in range(7):
        dma_w(0, ii)()
    dma_h(0)()
    for p in range(8):
        dma_x(1, p)()
    for ii in range(7):
        dma_w(1, ii)()
    dma_h(1)()
    k.need(vm=("x", 0))
    for ksl in range(4):
        for rt in range(2):
            xread(0, ksl, rt)()

    pairs = [(s, ksl, T) for s in range(9) for ksl in range(4) for T in range(7)]
    fill = []
    issued = 0
    visible = -1

    def issue_upto(it):
        nonlocal issued
        while issued <= it and issued < len(pairs):
            s, ksl, T = pairs[issued]
            if s > visible:
                break
            aread(issued, s, ksl, T, 0)
            aread(issued, s, ksl, T, 1)
            issued += 1

    for i, (s, ksl, T) in enumerate(pairs):
        ks = 4 * s + ksl
        if ksl == 0 and T == 0:
            k.wait_all(vm=False, lg=True)
            k.need(vm=("w", s))
            k.e("s_barrier")
            visible = s
            if s + 2 <= 8:
                for p in range(8):
                    fill.append(dma_x(s + 2, p))
                for ii in range(7):
                    fill.append(dma_w(s + 2, ii))
                fill.append(dma_h(s + 2))
        if ksl == 3 and T == 0 and s + 1 <= 8:
            def wx(s=s):
                k.need(vm=("x", s + 1))
            fill.append(wx)
            for kk in range(4):
                for rt in range(2):
                    fill.append(xread(s + 1, kk, rt))
        if T == 0:
            gb = V_GF + (ks & 1) * 4
            k.lgop(f"ds_read_b128 {vr(gb)}, v{V_GW} offset:{ks*32}", ("gf", ks))
            if ksl % 2 == 0:
                k32 = ksl // 2
                k.lgop(f"ds_read_b128 {vr(V_HBF + k32*4)}, v{V_HB+k32} offset:{(s%3)*2048}", ("hbf", s, k32))
        issue_upto(i)
        assert issued > i
        need = [("af", i, 1)]
        if T == 0:
            need += [("xf", s, ksl, 0), ("xf", s, ksl, 1)]
        k.need(lg=need)
        af = vr(V_AF + (i % 4) * 4)
        for rt in range(2):
            a = accq(T, rt)
            cin = "0" if ks == 0 else ar(a, 16)
            k.e(f"v_mfma_f32_32x32x16_bf16 {ar(a,16)}, {af}, {vr(xfr(s,ksl,rt))}, {cin}")
            if rt == 0:
                issue_upto(i + 2)
            if fill:
                fill.pop(0)()
        if T == 2:
            gb = V_GF + (ks & 1) * 4
            k.need(lg=("gf", ks))
            for rt in range(2):
                x = xfr(s, ksl, rt)
                for d in range(4):
                    k.e(f"v_dot2_f32_bf16 v{V_GA+rt}, v{x+d}, v{gb+d}, v{V_GA+rt}")
        if ksl % 2 == 0 and T == 3:
            for hi in range(3):
                haread(s, ksl // 2, hi, 0)
                haread(s, ksl // 2, hi, 1)
        if ksl % 2 == 0 and T == 5:
            k32 = ksl // 2
            k.need(lg=[("haf", s, k32, 2, 1), ("hbf", s, k32)])
            for hi in range(3):
                a = A_H + hi * 4
                cin = "0" if ks == 0 else ar(a, 4)
                k.e(f"v_mfma_f32_16x16x32_bf16 {ar(a,4)}, {vr(V_HAF+hi*4)}, {vr(V_HBF+k32*4)}, {cin}")
    while fill:
        fill.pop(0)()
    k.wait_all()
    k.e("s_nop 7")
    k.e("s_nop 7")
    k.e("s_barrier")
    k.e("v_and_b32 v2, 31, v0")
    k.e("v_lshrrev_b32 v3, 5, v0")
    k.e(f"s_lshl_b32 s46, s{S_WAVE}, 6")
    k.e("s_add_u32 s46, s46, 16")
    k.e("v_add_u32 v4, s46, v2")
    k.e("v_mul_u32_u24 v4, 592, v4")
    k.e("v_mul_u32_u24 v5, 288, v3")
    k.e("v_add_u32 v4, v4, v5")
    for rt in range(2):
        for gam in range(18):
            T, qq = divmod(gam, 4)
            a = accq(T, rt) + qq * 4
            k.lgop(f"ds_write_b128 v4, {ar(a)} offset:{rt*18944 + gam*16}", ("kvw",))
            if len(k.lg) - k.lg_done >= 12:
                k.wait_all(vm=False, lg=True)
    for hi in range(3):
        k.lgop(f"ds_write_b128 v{V_HW+hi}, {ar(A_H+hi*4)}", ("kvw",))
    V_Q = 84
    sc = (18 ** -0.5) * LOG2E
    k.e(f"s_mov_b32 s46, 0x{f2u(sc):08x}")
    for rt in range(2):
        for g9 in range(9):
            gam = 18 + g9
            T, qq = divmod(gam, 4)
            a = accq(T, rt) + qq * 4
            for i in range(4):
                k.e(f"v_accvgpr_read_b32 v{V_Q + rt*36 + g9*4 + i}, a{a+i}")
    for i in range(72):
        k.e(f"v_mul_f32 v{V_Q+i}, s46, v{V_Q+i}")
    for rt in range(2):
        k.e(f"v_mov_b32 v{6+rt}, v{V_GA+rt}")
    k.e("s_nop 1")
    for rt in range(2):
        k.e(f"v_permlane32_swap_b32 v{6+rt}, v{V_GA+rt}")
    k.e("s_nop 1")
    for rt in range(2):
        k.e(f"v_add_f32 v{6+rt}, v{6+rt}, v{V_GA+rt}")
        k.e(f"v_mul_f32 v{6+rt}, 0x{f2u(-LOG2E):08x}, v{6+rt}")
        k.e(f"v_exp_f32 v{6+rt}, v{6+rt}")
        k.e("s_nop 0")
        k.e(f"v_add_f32 v{6+rt}, 1.0, v{6+rt}")
        k.e(f"v_rcp_f32 v{6+rt}, v{6+rt}")
    k.e(f"s_cmp_lg_u32 s{S_FG}, 0")
    k.e("s_cbranch_scc1 K1_NOG")
    k.e(f"s_lshl_b32 s46, s{S_RB}, 2")
    k.e(f"s_add_u32 s46, s46, s{S_WAVE}")
    k.e("s_lshl_b32 s46, s46, 8")
    k.e(f"s_add_u32 s46, s46, {G_OFF}")
    k.e("v_lshlrev_b32 v8, 2, v2")
    k.e("buffer_store_dword v6, v8, s[16:19], s46 offen")
    k.e("buffer_store_dword v7, v8, s[16:19], s46 offen offset:128")
    k.label("K1_NOG")
    k.wait_all()
    k.e("s_barrier")
    k.e(f"s_lshl_b32 s46, s{S_RB}, 2")
    k.e(f"s_add_u32 s46, s46, s{S_WAVE}")
    k.e("s_lshl_b32 s46, s46, 6")
    k.e("v_add_u32 v5, s46, v2")
    k.e(f"v_subrev_u32 v9, {14*592}, v4")
    V_K = 160
    V_L = 232
    V_P = 10
    V_O = 40
    V_SA = 236
    k.e(f"s_mul_i32 s47, s{S_FG}, 72")
    k.e("v_mul_u32_u24 v6, 36, v3")
    k.e("v_add_u32 v6, s47, v6")
    for a in range(9):
        k.e(f"v_add_u32 v7, {4*a}, v6")
        k.e("v_lshrrev_b32 v8, 4, v7")
        k.e("v_lshlrev_b32 v8, 10, v8")
        k.e("v_bfe_u32 v26, v7, 3, 1")
        k.e("v_lshl_add_u32 v8, v26, 9, v8")
        k.e("v_bfe_u32 v26, v7, 2, 1")
        k.e("v_lshl_add_u32 v8, v26, 3, v8")
        k.e(f"v_lshl_add_u32 v{V_SA+a}, v2, 4, v8")
    k.e(f"s_lshl_b32 s46, s{S_RB}, 3")
    k.e(f"s_lshl_b32 s47, s{S_WAVE}, 1")
    k.e("s_add_u32 s46, s46, s47")
    k.e(f"s_mul_i32 s{S_STBASE}, s46, {NKB*1024}")

    def kvread(rt, w, isv, buf):
        off = rt * 18944 + (14 - 2 * w) * 592 + isv * 144
        for g in range(9):
            k.lgop(f"ds_read_b128 {vr(V_K + buf*36 + g*4)}, v9 offset:{off + g*16}", ("kv", rt, w, isv))

    for rt in range(2):
        q = V_Q + rt * 36
        kvread(rt, 0, 0, 0)
        for w in range(8):
            buf = w & 1
            k.need(lg=("kv", rt, w, 0))
            if w + 1 < 8:
                kvread(rt, w + 1, 0, buf ^ 1)
            else:
                kvread(rt, 0, 1, buf ^ 1)
            kb = V_K + buf * 36
            for e in range(2):
                for d in range(9):
                    a = q + e * 18 + 2 * d
                    b = kb + e * 18 + 2 * d
                    l = V_L + e * 2
                    if d == 0:
                        k.e(f"v_pk_mul_f32 {vr(l,2)}, {vr(a,2)}, {vr(b,2)}")
                    else:
                        k.e(f"v_pk_fma_f32 {vr(l,2)}, {vr(a,2)}, {vr(b,2)}, {vr(l,2)}")
            for e in range(2):
                k.e(f"v_add_f32 v{V_P + e*8 + w}, v{V_L+e*2}, v{V_L+e*2+1}")
        k.e(f"v_add_u32 v26, {32*rt}, v5")
        k.e("v_mov_b32 v27, 0xff7fffff")
        for w in range(1, 8):
            k.e(f"v_cmp_le_u32 vcc, {2*w}, v26")
            k.e("s_nop 1")
            for e in range(2):
                k.e(f"v_cndmask_b32 v{V_P+e*8+w}, v27, v{V_P+e*8+w}, vcc")
        for e in range(2):
            p = V_P + e * 8
            m = 28 + e
            k.e(f"v_max3_f32 v{m}, v{p}, v{p+1}, v{p+2}")
            k.e(f"v_max3_f32 v{m}, v{m}, v{p+3}, v{p+4}")
            k.e(f"v_max3_f32 v{m}, v{m}, v{p+5}, v{p+6}")
            k.e(f"v_max_f32 v{m}, v{m}, v{p+7}")
        for e in range(2):
            p = V_P + e * 8
            for w in range(8):
                k.e(f"v_sub_f32 v{p+w}, v{p+w}, v{28+e}")
        for e in range(2):
            p = V_P + e * 8
            for w in range(8):
                k.e(f"v_exp_f32 v{p+w}, v{p+w}")
        k.e("s_nop 0")
        for e in range(2):
            p = V_P + e * 8
            s_ = 30 + e
            k.e(f"v_add_f32 v{s_}, v{p}, v{p+1}")
            for w in range(2, 8):
                k.e(f"v_add_f32 v{s_}, v{s_}, v{p+w}")
        for e in range(2):
            k.e(f"v_rcp_f32 v{30+e}, v{30+e}")
        k.e("s_nop 0")
        for e in range(2):
            p = V_P + e * 8
            for w in range(8):
                k.e(f"v_mul_f32 v{p+w}, v{p+w}, v{30+e}")
        for w in range(8):
            buf = (w & 1)
            k.need(lg=("kv", rt, w, 1))
            if w + 1 < 8:
                kvread(rt, w + 1, 1, buf ^ 1)
            vb = V_K + buf * 36
            for e in range(2):
                p = V_P + e * 8 + w
                pe = p & ~1
                sel = p & 1
                for d in range(9):
                    o = V_O + e * 18 + 2 * d
                    b = vb + e * 18 + 2 * d
                    if w == 0:
                        k.e(f"v_pk_mul_f32 {vr(o,2)}, {vr(pe,2)}, {vr(b,2)} op_sel:[{sel},0] op_sel_hi:[{sel},1]")
                    else:
                        k.e(f"v_pk_fma_f32 {vr(o,2)}, {vr(pe,2)}, {vr(b,2)}, {vr(o,2)} op_sel:[{sel},0,0] op_sel_hi:[{sel},1,1]")
        pk = 246
        for a in range(9):
            d = q + a * 2
            k.e(f"v_cvt_pk_bf16_f32 v{d}, v{V_O+4*a}, v{V_O+4*a+1}")
            k.e(f"v_cvt_pk_bf16_f32 v{d+1}, v{V_O+4*a+2}, v{V_O+4*a+3}")
        k.e(f"s_add_u32 s{S_T2}, s{S_STBASE}, {rt*NKB*1024}")
        for a in range(9):
            k.vmop(f"buffer_store_dwordx2 {vr(q+a*2,2)}, v{V_SA+a}, s[16:19], s{S_T2} offen{P['hst']}", ("st",))
    k.wait_all()


def gen_k1(P):
    k = KB()
    k1_prologue(k)
    k1_mlp(k, P)
    k1_qkv(k, P)
    k.label("K1_END")
    k.e("s_endpgm")
    return kstart("k1_kernel") + k.text() + kd("k1_kernel", 512, 64, 256)


def gen_k2(P):
    k = KB()
    RS = P["k2_ring"]
    DW = P["k2_dw"]
    DB = P["k2_db"]
    assert RS >= DW + 2
    SL = 12288
    k.e("s_cmp_ge_u32 s2, 240")
    k.e("s_cbranch_scc1 K2_END")
    k.e("s_load_dwordx2 s[4:5], s[0:1], 16")
    k.e("s_load_dwordx2 s[6:7], s[0:1], 48")
    k.e("s_load_dwordx2 s[30:31], s[0:1], 80")
    k.e("v_lshrrev_b32 v1, 6, v0")
    k.e("v_and_b32 v0, 63, v0")
    k.e("s_nop 0")
    k.e("v_readfirstlane_b32 s32, v1")
    k.e("s_and_b32 s40, s2, 7")
    k.e("s_lshr_b32 s41, s2, 3")
    k.e("s_and_b32 s42, s40, 1")
    k.e("s_lshr_b32 s43, s40, 1")
    k.e("s_mul_i32 s44, s43, 6")
    k.e("s_add_u32 s44, s44, s41")
    k.e("s_sub_u32 s44, s44, 24")
    k.e("s_cmp_ge_u32 s41, 24")
    k.e("s_cselect_b32 s45, s44, s41")
    k.e("s_cselect_b32 s33, 4, s43")
    k.e("s_and_b32 s46, s45, 7")
    k.e("s_lshl_b32 s34, s42, 3")
    k.e("s_add_u32 s34, s34, s46")
    k.e("s_lshr_b32 s35, s45, 3")
    k.e("s_waitcnt lgkmcnt(0)")
    srd(k, 16, 30, 31, WS_BYTES)
    k.e("s_cmp_eq_u32 s33, 4")
    k.e("s_cselect_b32 s12, s4, s6")
    k.e("s_cselect_b32 s13, s5, s7")
    k.e(f"s_mov_b32 s47, {4608*1152}")
    k.e(f"s_cselect_b32 s14, {576*1152}, s47")
    k.e("s_mov_b32 s15, 0x00020000")
    k.e(f"s_mul_i32 s46, s33, {1152*1152}")
    k.e("s_cselect_b32 s36, 0, s46")
    k.e("s_mul_i32 s46, s33, 72")
    k.e("s_add_u32 s46, s46, 36")
    k.e("s_cmp_eq_u32 s33, 4")
    k.e("s_cselect_b32 s37, 0, s46")
    k.e(f"s_mul_i32 s46, s32, {8*1152}")
    k.e("s_add_u32 s36, s36, s46")
    k.e("s_mul_i32 s46, s35, 384")
    k.e("s_add_u32 s36, s36, s46")
    k.e("s_lshl_b32 s46, s34, 2")
    k.e("s_add_u32 s46, s46, s32")
    k.e(f"s_mul_i32 s46, s46, {NKB}")
    k.e("s_add_u32 s46, s46, s37")
    k.e("s_lshl_b32 s37, s46, 10")
    k.e(f"s_mul_i32 s38, s32, 3072")
    V_WD = 2
    V_AE, V_AO = 5, 6
    V_AE2, V_AO2 = 7, 8
    V_L16 = 9
    V_SC = 10
    V_AF = 16
    V_BF = 32
    NBB = DB + 1
    V_ACC = V_BF + NBB * 8
    V_ACC = (V_ACC + 3) // 4 * 4
    nv = V_ACC + 96
    for i in range(3):
        k.e(f"v_add_u32 v11, {64*i}, v0")
        k.e("v_mul_u32_u24 v12, 2731, v11")
        k.e("v_lshrrev_b32 v12, 16, v12")
        k.e("v_mul_u32_u24 v13, 24, v12")
        k.e("v_sub_u32 v13, v11, v13")
        k.e("v_bfe_u32 v14, v12, 1, 1")
        k.e("v_lshlrev_b32 v14, 2, v14")
        k.e("v_xor_b32 v13, v13, v14")
        k.e("v_mul_u32_u24 v12, 1152, v12")
        k.e(f"v_lshl_add_u32 v{V_WD+i}, v13, 4, v12")
    k.e("v_lshrrev_b32 v11, 4, v0")
    k.e("v_bfe_u32 v12, v0, 2, 2")
    k.e("v_and_b32 v13, 3, v0")
    k.e("v_lshrrev_b32 v14, 1, v11")
    k.e("v_lshl_add_u32 v14, v14, 3, v12")
    k.e("v_mul_u32_u24 v14, 384, v14")
    k.e("v_and_b32 v15, 1, v11")
    k.e("v_lshl_add_u32 v14, v15, 5, v14")
    k.e("v_lshl_add_u32 v14, v13, 3, v14")
    k.e("v_lshrrev_b32 v15, 1, v12")
    k.e("v_lshlrev_b32 v15, 6, v15")
    k.e(f"v_add_u32 v{V_AE}, v14, v15")
    k.e(f"v_sub_u32 v{V_AO}, v14, v15")
    k.e(f"v_add_u32 v{V_AO}, 64, v{V_AO}")
    HI = 4 * SL
    k.e(f"v_add_u32 v{V_AE2}, {HI}, v{V_AE}")
    k.e(f"v_add_u32 v{V_AO2}, {HI}, v{V_AO}")
    k.e(f"v_lshlrev_b32 v{V_L16}, 4, v0")
    k.e("s_lshl_b32 s46, s34, 2")
    k.e("s_add_u32 s46, s46, s32")
    k.e("s_lshl_b32 s46, s46, 7")
    k.e(f"s_add_u32 s46, s46, {G_OFF}")
    k.e("v_and_b32 v11, 31, v0")
    k.e("v_lshlrev_b32 v11, 2, v11")
    k.vmop(f"buffer_load_dword v{V_SC}, v11, s[16:19], s46 offen", ("g",))

    NS = 36

    def dma_w(st, i):
        slot = st % RS
        def f():
            k.e(f"s_add_u32 m0, s38, {slot*SL + i*1024}")
            k.e(f"s_add_u32 s40, s36, {st*32*1152}")
            k.vmop(f"buffer_load_dwordx4 v{V_WD+i}, s[12:15], s40 offen lds", ("w", st))
        return f

    def bfr(st, kh):
        return V_BF + ((st % NBB) * 2 + kh) * 4

    def load_b(st, kh):
        def f():
            if kh == 0:
                k.e(f"s_add_u32 s41, s37, {st*2048}")
            k.vmop(f"buffer_load_dwordx4 {vr(bfr(st,kh))}, v{V_L16}, s[16:19], s41 offen offset:{kh*1024}{P['hld']}", ("b", st, kh))
        return f

    def aread(i, st, kh, a, half):
        slot = st % RS
        off = slot * SL + (16 * kh + 4 * half) * 384
        if slot >= 4:
            off -= HI
            be, bo = V_AE2, V_AO2
        else:
            be, bo = V_AE, V_AO
        if a % 2 == 0:
            base, off = be, off + a * 64
        else:
            base, off = bo, off + (a - 1) * 64
        assert 0 <= off < 65536
        d = V_AF + (i % 4) * 4 + half * 2
        k.lgop(f"ds_read_b64_tr_b16 {vr(d,2)}, v{base} offset:{off}", ("af", i, half))

    for st in range(max(DW, DB)):
        if st < DB:
            load_b(st, 0)()
            load_b(st, 1)()
        if st < DW:
            for i in range(3):
                dma_w(st, i)()
    ops = [(st, kh, a) for st in range(NS) for kh in range(2) for a in range(6)]
    fill = []
    issued = 0
    visible = -1

    def issue_upto(it):
        nonlocal issued
        while issued <= it and issued < len(ops):
            st, kh, a = ops[issued]
            if st > visible:
                break
            aread(issued, st, kh, a, 0)
            aread(issued, st, kh, a, 1)
            issued += 1

    k.need(vm=("w", 0))
    k.e("s_barrier")
    visible = 0
    for i, (st, kh, a) in enumerate(ops):
        if kh == 0 and a == 0:
            if st == 18:
                k.e("s_cmp_eq_u32 s33, 4")
                k.e("s_cbranch_scc1 K2_EPI")
            if st + 1 < NS:
                k.need(vm=("w", st + 1))
                k.e("s_barrier")
                visible = st + 1
            if st + DB < NS:
                fill.append(load_b(st + DB, 0))
                fill.append(load_b(st + DB, 1))
            if st + DW < NS:
                for ii in range(3):
                    fill.append(dma_w(st + DW, ii))
        issue_upto(i)
        assert issued > i
        if a == 0:
            k.need(vm=("b", st, kh), lg=("af", i, 1))
        else:
            k.need(lg=("af", i, 1))
        ac = V_ACC + a * 16
        cin = "0" if (st == 0 and kh == 0) else vr(ac, 16)
        k.e(f"v_mfma_f32_32x32x16_bf16 {vr(ac,16)}, {vr(V_AF+(i%4)*4)}, {vr(bfr(st,kh))}, {cin}")
        issue_upto(i + 3 if False else i + 2)
        if fill and (i % 2 == 1):
            fill.pop(0)()
    k.label("K2_EPI")
    k.wait_all()
    k.e(f"v_sub_f32 v11, 1.0, v{V_SC}")
    k.e("s_cmp_eq_u32 s33, 4")
    k.e("s_cselect_b64 vcc, -1, 0")
    k.e("s_nop 7")
    k.e("s_nop 3")
    k.e(f"v_cndmask_b32 v{V_SC}, v11, v{V_SC}, vcc")
    k.e("s_lshl_b32 s46, s33, 4")
    k.e("s_add_u32 s46, s46, s34")
    k.e("s_mul_i32 s46, s46, 3")
    k.e("s_add_u32 s46, s46, s35")
    k.e("s_lshl_b32 s46, s46, 2")
    k.e("s_add_u32 s46, s46, s32")
    k.e(f"s_mul_i32 s46, s46, {24*1024}")
    k.e(f"s_add_u32 s46, s46, {PART_OFF}")
    for a in range(6):
        for r in range(16):
            k.e(f"v_mul_f32 v{V_ACC+a*16+r}, v{V_SC}, v{V_ACC+a*16+r}")
    for a in range(6):
        k.e(f"s_add_u32 s47, s46, {a*4096}")
        for q in range(4):
            k.vmop(f"buffer_store_dwordx4 {vr(V_ACC+a*16+q*4)}, v{V_L16}, s[16:19], s47 offen offset:{q*1024}{P['pst']}", ("st",))
    k.wait_all()
    k.label("K2_END")
    k.e("s_endpgm")
    nv = (nv + 7) // 8 * 8
    return kstart("k2_kernel") + k.text() + kd("k2_kernel", nv, 64, nv), RS * SL


def gen_k3(P):
    k = KB()
    k.e("s_cmp_ge_u32 s2, 288")
    k.e("s_cbranch_scc1 K3_END")
    k.e("s_load_dwordx2 s[4:5], s[0:1], 64")
    k.e("s_load_dwordx2 s[30:31], s[0:1], 80")
    k.e("v_lshrrev_b32 v1, 6, v0")
    k.e("v_and_b32 v0, 63, v0")
    k.e("s_nop 0")
    k.e("v_readfirstlane_b32 s32, v1")
    k.e("s_lshl_b32 s33, s2, 2")
    k.e("s_add_u32 s33, s33, s32")
    k.e("s_waitcnt lgkmcnt(0)")
    srd(k, 8, 4, 5, 2048 * 576 * 2)
    srd(k, 16, 30, 31, WS_BYTES)
    k.e("s_lshl_b32 s34, s33, 12")
    k.e(f"s_add_u32 s34, s34, {PART_OFF}")
    k.e("v_lshlrev_b32 v2, 4, v0")
    for s in range(NSPLIT):
        k.e(f"s_add_u32 s35, s34, {s*2048*576*4}")
        for q in range(4):
            k.vmop(f"buffer_load_dwordx4 {vr(8+(s*4+q)*4)}, v2, s[16:19], s35 offen offset:{q*1024}{P['pld']}", ("p", s))
    k.e("s_mul_i32 s36, s33, 43691")
    k.e("s_lshr_b32 s36, s36, 18")
    k.e("s_mul_i32 s37, s36, 6")
    k.e("s_sub_u32 s37, s33, s37")
    k.e("s_and_b32 s38, s36, 3")
    k.e("s_lshr_b32 s39, s36, 2")
    k.e("s_mul_i32 s40, s39, 21846")
    k.e("s_lshr_b32 s40, s40, 16")
    k.e("s_mul_i32 s41, s40, 3")
    k.e("s_sub_u32 s41, s39, s41")
    k.e("s_lshl_b32 s42, s40, 2")
    k.e("s_add_u32 s42, s42, s38")
    k.e(f"s_mul_i32 s42, s42, {32*1152}")
    k.e("s_mul_i32 s43, s41, 384")
    k.e("s_add_u32 s42, s42, s43")
    k.e("s_lshl_b32 s43, s37, 6")
    k.e("s_add_u32 s42, s42, s43")
    k.e("v_and_b32 v3, 31, v0")
    k.e("v_mul_u32_u24 v3, 1152, v3")
    k.e("v_lshrrev_b32 v4, 5, v0")
    k.e("v_lshl_add_u32 v3, v4, 4, v3")
    for s in range(1, NSPLIT):
        k.need(vm=("p", s))
        for r in range(16):
            k.e(f"v_add_f32 v{8+r}, v{8+r}, v{8+s*16+r}")
    for q in range(4):
        k.e(f"v_cvt_pk_bf16_f32 v{96+q*2}, v{8+q*4}, v{8+q*4+1}")
        k.e(f"v_cvt_pk_bf16_f32 v{96+q*2+1}, v{8+q*4+2}, v{8+q*4+3}")
    k.e("s_nop 1")
    for pr in range(2):
        b = 96 + pr * 4
        k.e(f"v_permlane32_swap_b32 v{b}, v{b+2}")
        k.e(f"v_permlane32_swap_b32 v{b+1}, v{b+3}")
    k.e("s_nop 1")
    for pr in range(2):
        b = 96 + pr * 4
        k.vmop(f"buffer_store_dwordx4 {vr(b)}, v3, s[8:11], s42 offen offset:{pr*32}", ("st",))
    k.wait_all()
    k.label("K3_END")
    k.e("s_endpgm")
    return kstart("k3_kernel") + k.text() + kd("k3_kernel", 104, 64, 104)


HEADER = open("cdna_kernels/" + NAME + ".s.ref").read().split("; Override")[0]


def main():
    ap = argparse.ArgumentParser()
    ap.add_argument("-o", default="cdna_kernels/" + NAME + ".s")
    ap.add_argument("--delta", type=int, default=4)
    ap.add_argument("--D", type=int, default=10)
    ap.add_argument("--R", type=int, default=24)
    ap.add_argument("--ra", type=int, default=2)
    ap.add_argument("--epg", type=int, default=3)
    ap.add_argument("--hst", default="")
    ap.add_argument("--hld", default="")
    ap.add_argument("--pst", default="")
    ap.add_argument("--pld", default="")
    ap.add_argument("--k2-ring", type=int, default=6)
    ap.add_argument("--k2-dw", type=int, default=4)
    ap.add_argument("--k2-db", type=int, default=4)
    ap.add_argument("--only", default="123")
    a = ap.parse_args()
    P = vars(a)
    for key in ("hst", "hld", "pst", "pld"):
        if P[key]:
            P[key] = " " + P[key].replace("+", " ")
    k1 = gen_k1(P)
    k2, k2lds = gen_k2(P)
    k3 = gen_k3(P)
    s = HEADER
    if "1" in a.only:
        s += "; @launch kernel=k1_kernel grid=(256,1,1) block=(256,1,1) lds=163840\n"
    if "2" in a.only:
        s += f"; @launch kernel=k2_kernel grid=(240,1,1) block=(256,1,1) lds={k2lds}\n"
    if "3" in a.only:
        s += "; @launch kernel=k3_kernel grid=(288,1,1) block=(256,1,1) lds=0\n"
    s += '.amdgcn_target "amdgcn-amd-amdhsa--gfx950"\n.text\n'
    s += k1 + k2 + k3
    open(a.o, "w").write(s)
    print("wrote", a.o, len(s), "bytes")


if __name__ == "__main__":
    main()
```

```python
import sys, argparse, struct

NAME = "gated_mix__sliding_local_dilated__glu_gated_glu__prompt"

NKB = 324
G_OFF = 0x1500000
FLAG_OFF = 0x1510000
PART_OFF = 0x1600000
WS_BYTES = 268435456
DBG_OFF = 0x4000000
LOG2E = 1.4426950408889634
SPIN_MAX = 200000


def f2u(x):
    return struct.unpack("<I", struct.pack("<f", x))[0]


class KB:
    def __init__(self):
        self.lines = []
        self.vm = []
        self.vm_done = 0
        self.lg = []
        self.lg_done = 0
        self.n = 0
        self.stamps_on = False
        self.nstamp = 0

    def e(self, s):
        self.lines.append("    " + s)
        self.n += 1

    def c(self, s):
        self.lines.append("    ; " + s)

    def label(self, s):
        self.lines.append(s + ":")

    def vmop(self, s, tag):
        self.e(s)
        self.vm.append(tag)
        assert len(self.vm) - self.vm_done <= 63, "too many vm outstanding"

    def lgop(self, s, tag):
        self.e(s)
        self.lg.append(tag)
        assert len(self.lg) - self.lg_done <= 15, "too many lgkm outstanding"

    def vm_out(self):
        return len(self.vm) - self.vm_done

    def lg_out(self):
        return len(self.lg) - self.lg_done

    def _last(self, lst, tag):
        for i in range(len(lst) - 1, -1, -1):
            if lst[i] == tag:
                return i
        raise KeyError(tag)

    def need(self, vm=None, lg=None):
        parts = []
        if vm is not None:
            tags = vm if isinstance(vm, list) else [vm]
            i = max(self._last(self.vm, t) for t in tags)
            if i >= self.vm_done:
                n = len(self.vm) - 1 - i
                parts.append(f"vmcnt({n})")
                self.vm_done = len(self.vm) - n
        if lg is not None:
            tags = lg if isinstance(lg, list) else [lg]
            i = max(self._last(self.lg, t) for t in tags)
            if i >= self.lg_done:
                n = len(self.lg) - 1 - i
                parts.append(f"lgkmcnt({n})")
                self.lg_done = len(self.lg) - n
        if parts:
            self.e("s_waitcnt " + " ".join(parts))

    def wait_all(self, vm=True, lg=True):
        p = []
        if vm:
            p.append("vmcnt(0)")
            self.vm_done = len(self.vm)
        if lg:
            p.append("lgkmcnt(0)")
            self.lg_done = len(self.lg)
        self.e("s_waitcnt " + " ".join(p))

    def save(self):
        return (list(self.vm), self.vm_done, list(self.lg), self.lg_done, self.nstamp)

    def restore(self, st):
        self.vm, self.vm_done, self.lg, self.lg_done, self.nstamp = list(st[0]), st[1], list(st[2]), st[3], st[4]

    def stamp(self):
        if not self.stamps_on:
            return
        i = self.nstamp
        self.nstamp += 1
        assert i < 15
        self.e(f"s_memrealtime s[{70+2*i}:{71+2*i}]")
        self.e(f"s_memtime s[100:101]")
        self.e("s_waitcnt lgkmcnt(0)")
        self.e(f"s_mov_b32 s{71+2*i}, s100")
        self.e("s_waitcnt lgkmcnt(0)")
        self.lg_done = len(self.lg)

    def stamp_flush(self):
        if not self.stamps_on:
            return
        self.e("s_lshl_b32 s100, s2, 2")
        self.e(f"s_add_u32 s100, s100, s{S_WAVE}")
        self.e("s_lshl_b32 s100, s100, 7")
        self.e(f"s_add_u32 s100, s100, {DBG_OFF}")
        self.e("v_mov_b32 v1, 0")
        for i in range(self.nstamp):
            self.e(f"v_mov_b32 v2, s{70+2*i}")
            self.e(f"buffer_store_dword v2, v1, s[16:19], s100 offen offset:{4*i}")
            self.e("s_nop 1")
            self.e(f"v_mov_b32 v2, s{71+2*i}")
            self.e(f"buffer_store_dword v2, v1, s[16:19], s100 offen offset:{64+4*i}")
            self.e("s_nop 1")
        self.e(f"v_mov_b32 v2, {self.nstamp}")
        self.e(f"buffer_store_dword v2, v1, s[16:19], s100 offen offset:60")
        self.e("s_waitcnt vmcnt(0)")

    def text(self):
        return "\n".join(self.lines) + "\n"


class Paced:
    def __init__(self, rate, cap, k=None):
        self.q, self.credit, self.rate, self.cap, self.k = [], 0, rate, cap, k

    def add(self, th, cost):
        self.q.append((th, cost))

    def gap(self, scale=1.0):
        self.credit = min(self.credit + self.rate * scale, self.cap)
        while self.q and self.q[0][1] <= self.credit and self.k.vm_out() < 58:
            th, c = self.q.pop(0)
            self.credit -= c
            th()

    def force_until(self, pred):
        while not pred():
            th, c = self.q.pop(0)
            th()

    def drain(self):
        while self.q:
            self.q.pop(0)[0]()


def srd(k, d, lo, hi, nbytes):
    k.e(f"s_mov_b32 s{d}, s{lo}")
    k.e(f"s_mov_b32 s{d+1}, s{hi}")
    k.e(f"s_mov_b32 s{d+2}, {nbytes}")
    k.e(f"s_mov_b32 s{d+3}, 0x00020000")


def vr(b, n=4):
    return f"v[{b}:{b+n-1}]"


def ar(b, n=4):
    return f"a[{b}:{b+n-1}]"


S_WAVE, S_RB, S_FG = 32, 33, 34
S_WBASE, S_STBASE, S_M0W, S_T0, S_T1, S_T2 = 36, 37, 39, 40, 41, 42
S_FQ, S_I3, S_I2, S_IDX = 43, 44, 45, 51
S_XS = 64
S_NONCE = 68
S_XW = 38
XB = 131072

V_XL, V_XL2 = 36, 37
V_XWE, V_XWO = 38, 31
V_XR = 32
V_L16 = 39


S_PX, S_PW = 3, 35


def advance(k, sc, targets):
    k.e(f"s_add_u32 s{sc}, s{sc}, 1")
    k.e(f"s_cmp_eq_u32 s{sc}, 9")
    k.e(f"s_cselect_b32 s{sc}, 0, s{sc}")
    steps = sorted(set(st for _, st in targets))
    for st in steps:
        k.e(f"s_mov_b32 s{S_T0}, {st}")
        k.e(f"s_cselect_b32 s{S_T0}, {(-8*st) & 0xFFFFFFFF}, s{S_T0}")
        for (r, st2) in targets:
            if st2 == st:
                k.e(f"s_lshl1_add_u32 s{r}, 0, s{r}") if False else None
        if len(steps) == 1:
            for (r, st2) in targets:
                k.e(f"s_add_u32 s{r}, s{r}, s{S_T0}")
        else:
            k.e(f"s_mov_b32 s{S_T0 + 1 + steps.index(st)}, s{S_T0}")
    if len(steps) > 1:
        for (r, st2) in targets:
            k.e(f"s_add_u32 s{r}, s{r}, s{S_T0 + 1 + steps.index(st2)}")


def x_load(k, s, p, dst):
    v = V_XL if p % 2 == 0 else V_XL2
    if p == 0 and s > 0:
        advance(k, S_PX, [(S_XS + i, 128) for i in range(4)])
    k.vmop(f"buffer_load_dwordx4 {dst}, v{v}, s[8:11], s{S_XS + p//2} offen", ("x", s))


def x_write(k, s, p, src):
    v = V_XWE if p % 2 == 0 else V_XWO
    k.lgop(f"ds_write_b128 v{v}, {src} offset:{p*1024}", ("xw", s))


def x_read(k, s, ksl, rt, dst):
    k.lgop(f"ds_read_b128 {dst}, v{V_XR+ksl} offset:{rt*4096}", ("xf", 4 * s + ksl, rt))


def prologue(k, P):
    k.e("s_cmp_ge_u32 s2, 256")
    k.e("s_cbranch_scc1 L_END")
    k.stamp()
    k.e("s_load_dwordx4 s[4:7], s[0:1], 0")
    k.e("s_load_dwordx4 s[24:27], s[0:1], 32")
    k.e("s_load_dwordx4 s[52:55], s[0:1], 48")
    k.e("s_load_dwordx4 s[28:31], s[0:1], 64")
    k.e("s_load_dwordx2 s[58:59], s[0:1], 80")
    k.e("s_load_dwordx2 s[56:57], s[0:1], 16")
    k.e("v_lshrrev_b32 v1, 6, v0")
    k.e("v_and_b32 v0, 63, v0")
    k.e("v_lshrrev_b32 v2, 3, v0")
    k.e(f"v_readfirstlane_b32 s{S_WAVE}, v1")
    k.e("v_and_b32 v3, 7, v0")
    k.e("v_mul_u32_u24 v7, 1152, v2")
    k.e(f"v_lshl_add_u32 v{V_XL}, v3, 4, v7")
    k.e(f"v_add_u32 v{V_XL2}, {8*1152}, v{V_XL}")
    k.e("s_and_b32 s50, s2, 7")
    k.e(f"s_lshr_b32 s{S_IDX}, s2, 3")
    k.e("s_and_b32 s46, s50, 1")
    k.e(f"s_lshr_b32 s{S_FQ}, s50, 1")
    k.e(f"s_lshl_b32 s{S_RB}, s46, 2")
    k.e(f"s_and_b32 s{S_I3}, s{S_IDX}, 3")
    k.e(f"s_add_u32 s{S_RB}, s{S_RB}, s{S_I3}")
    k.e(f"s_lshr_b32 s{S_I2}, s{S_IDX}, 2")
    k.e(f"s_lshl_b32 s47, s{S_RB}, 2")
    k.e(f"s_add_u32 s47, s47, s{S_WAVE}")
    k.e(f"s_mul_i32 s{S_XS}, s47, {64*1152}")
    k.e(f"s_lshl_b32 s{S_PX}, s{S_I3}, 1")
    k.e(f"s_add_u32 s{S_PX}, s{S_PX}, s{S_I2}")
    if not P["rot"]:
        k.e(f"s_mov_b32 s{S_PX}, 0")
    k.e(f"s_sub_u32 s47, s{S_PX}, 9")
    k.e(f"s_cmp_ge_u32 s{S_PX}, 9")
    k.e(f"s_cselect_b32 s{S_PX}, s47, s{S_PX}")
    k.e(f"s_mov_b32 s{S_PW}, s{S_PX}")
    k.e(f"s_lshl_b32 s47, s{S_PX}, 7")
    k.e(f"s_add_u32 s{S_XS}, s{S_XS}, s47")
    for i in range(1, 4):
        k.e(f"s_add_u32 s{S_XS+i}, s{S_XS}, {i*16*1152}")
    k.e(f"s_lshl_b32 s{S_XW}, s{S_WAVE}, 13")
    k.e(f"s_add_u32 s{S_XW}, s{S_XW}, {XB}")
    k.e("s_waitcnt lgkmcnt(0)")
    srd(k, 8, 4, 5, 2048 * 1152)
    k.e(f"s_cmp_ge_u32 s{S_IDX}, 24")
    k.e("s_cbranch_scc1 L_QKV")


def common2(k):
    srd(k, 16, 58, 59, WS_BYTES)
    k.e("v_lshrrev_b32 v2, 3, v0")
    k.e("v_and_b32 v3, 7, v0")
    k.e("v_lshrrev_b32 v4, 1, v2")
    k.e("v_xor_b32 v5, v3, v4")
    k.e("v_xor_b32 v6, 4, v5")
    k.e("v_lshlrev_b32 v7, 7, v2")
    k.e(f"v_add_u32 v7, s{S_XW}, v7")
    k.e(f"v_lshl_add_u32 v{V_XWE}, v5, 4, v7")
    k.e(f"v_lshl_add_u32 v{V_XWO}, v6, 4, v7")
    k.e("v_and_b32 v2, 31, v0")
    k.e("v_lshrrev_b32 v3, 5, v0")
    k.e("v_bfe_u32 v4, v2, 1, 3")
    k.e("v_lshlrev_b32 v5, 7, v2")
    k.e(f"v_add_u32 v5, s{S_XW}, v5")
    for ksl in range(4):
        k.e(f"v_add_u32 v6, {2*ksl}, v3")
        k.e("v_xor_b32 v6, v6, v4")
        k.e(f"v_lshl_add_u32 v{V_XR+ksl}, v6, 4, v5")
    k.e(f"v_lshlrev_b32 v{V_L16}, 4, v0")


def nonce_create(k):
    srd(k, 20, 30, 31, 256)
    k.e(f"s_or_b32 s46, s2, s{S_WAVE}")
    k.e("s_cmp_lg_u32 s46, 0")
    k.e("s_cbranch_scc1 L_NONCE_SKIP")
    k.e("s_memrealtime s[46:47]")
    k.e("s_waitcnt lgkmcnt(0)")
    k.e("s_or_b32 s46, s46, 1")
    k.e("v_mov_b32 v4, s46")
    k.e("v_mov_b32 v5, 0")
    k.e("s_mov_b64 exec, 1")
    k.e("buffer_store_dword v4, v5, s[20:23], 0 offen sc0 sc1")
    k.e("s_mov_b64 exec, -1")
    k.label("L_NONCE_SKIP")


def nonce_issue(k, vbase):
    srd(k, 20, 30, 31, 256)
    k.e(f"v_mov_b32 v{vbase+1}, 0")
    k.vmop(f"buffer_load_dword v{vbase}, v{vbase+1}, s[20:23], 0 offen sc0 sc1", ("nonce",))


def nonce_get(k, vbase):
    lbl = f"L_NG{k.n}"
    k.need(vm=("nonce",))
    k.e(f"s_mov_b32 s69, {SPIN_MAX}")
    k.label(lbl)
    k.e(f"v_readfirstlane_b32 s{S_NONCE}, v{vbase}")
    k.e("s_nop 3")
    k.e(f"s_cmp_lg_u32 s{S_NONCE}, 0")
    k.e(f"s_cbranch_scc1 {lbl}_D")
    k.e("s_sub_u32 s69, s69, 1")
    k.e("s_cmp_eq_u32 s69, 0")
    k.e(f"s_cbranch_scc1 {lbl}_D")
    k.e("s_sleep 4")
    k.e(f"buffer_load_dword v{vbase}, v{vbase+1}, s[20:23], 0 offen sc0 sc1")
    k.e("s_waitcnt vmcnt(0)")
    k.e(f"s_branch {lbl}")
    k.label(lbl + "_D")


def publish(k, s_flag_off, vt, tag):
    lbl = f"L_PUB{k.n}"
    k.need(vm=tag)
    k.e("s_barrier")
    k.e(f"s_cmp_lg_u32 s{S_WAVE}, 0")
    k.e(f"s_cbranch_scc1 {lbl}")
    k.e(f"v_mov_b32 v{vt}, s{S_NONCE}")
    k.e(f"v_mov_b32 v{vt+1}, 0")
    k.e("s_mov_b64 exec, 1")
    k.e(f"buffer_store_dword v{vt}, v{vt+1}, s[16:19], s{s_flag_off} offen sc0 sc1")
    k.e("s_mov_b64 exec, -1")
    k.label(lbl)


def poll(k, s_line_off, nflags, vt):
    lbl = f"L_POLL{k.n}"
    k.e(f"v_lshlrev_b32 v{vt}, 2, v0")
    k.e(f"s_mov_b32 s69, {SPIN_MAX}")
    k.e(f"s_mov_b64 exec, {(1 << nflags) - 1}")
    k.label(lbl)
    k.e(f"buffer_load_dword v{vt+1}, v{vt}, s[16:19], s{s_line_off} offen sc0 sc1")
    k.e("s_waitcnt vmcnt(0)")
    k.e(f"v_cmp_ne_u32 vcc, s{S_NONCE}, v{vt+1}")
    k.e("s_sub_u32 s69, s69, 1")
    k.e("s_nop 4")
    k.e(f"s_cbranch_vccz {lbl}_D")
    k.e("s_cmp_eq_u32 s69, 0")
    k.e(f"s_cbranch_scc1 {lbl}_D")
    k.e("s_sleep 2")
    k.e(f"s_branch {lbl}")
    k.label(lbl + "_D")
    k.e("s_mov_b64 exec, -1")
    k.vm_done = len(k.vm)


def phaseA_mlp(k, P):
    DELTA, D, R, NB, RA = P["delta"], P["D"], P["R"], 4, P["ra"]
    assert R * 4096 <= XB
    assert R >= D + 3 * DELTA + 2
    V_AF = 8
    V_WA, V_WB2 = 24, 40
    V_WD = 28
    V_T = 44
    V_XF = 64
    V_ACC = 96

    def xf(ks, rt):
        if ks < 32:
            return ar((ks * 2 + rt) * 4)
        return vr(V_XF + ((ks - 32) * 2 + rt) * 4)

    def xq(s, p):
        return xf(4 * s + p // 2, p % 2)

    def acc(slot, rt):
        return V_ACC + (slot * 2 + rt) * 16

    k.c("---------------- phase A: MLP path ----------------")
    nonce_create(k)
    for p in range(8):
        x_load(k, 0, p, xq(0, p))
    k.e(f"s_mul_i32 s{S_FG}, s{S_FQ}, 6")
    k.e(f"s_add_u32 s{S_FG}, s{S_FG}, s{S_I2}")
    k.e(f"s_cmp_ge_u32 s{S_WAVE}, 2")
    k.e("s_cselect_b32 s12, s26, s24")
    k.e("s_cselect_b32 s13, s27, s25")
    k.e(f"s_mov_b32 s14, {576*9216}")
    k.e("s_mov_b32 s15, 0x00020000")
    k.e("v_lshrrev_b32 v2, 3, v0")
    k.e("v_and_b32 v3, 7, v0")
    k.e("v_bfe_u32 v4, v2, 1, 1")
    k.e(f"s_and_b32 s46, s{S_WAVE}, 2")
    k.e("v_or_b32 v4, s46, v4")
    k.e("v_lshlrev_b32 v4, 1, v4")
    k.e("v_xor_b32 v3, v3, v4")
    k.e("s_mov_b32 s47, 9216")
    k.e("v_mul_lo_u32 v2, v2, s47")
    k.e(f"v_lshl_add_u32 v{V_WD}, v3, 4, v2")
    k.e(f"s_and_b32 s46, s{S_WAVE}, 1")
    k.e(f"s_mul_i32 s{S_WBASE}, s46, {8*9216}")
    k.e(f"s_lshl_b32 s47, s{S_FG}, 7")
    k.e(f"s_add_u32 s{S_WBASE}, s{S_WBASE}, s47")
    k.e(f"s_mul_i32 s47, s{S_PW}, {64*9216}")
    k.e(f"s_add_u32 s{S_WBASE}, s{S_WBASE}, s47")
    k.e(f"s_lshl_b32 s{S_M0W}, s{S_WAVE}, 10")

    def dma_w(u):
        c, ks = divmod(u, 36)
        slot = u % R
        def f():
            if u > 0 and u % 4 == 0:
                advance(k, S_PW, [(S_WBASE, 64 * 9216)])
            k.e(f"s_add_u32 m0, s{S_M0W}, {slot*4096}")
            k.e(f"s_add_u32 s{S_T1}, s{S_WBASE}, {(ks%4)*16*9216 + c*24*128}")
            k.vmop(f"buffer_load_dwordx4 v{V_WD}, s[12:15], s{S_T1} offen lds", ("w", u))
        return f

    NX0 = P["nx0"]
    D0 = min(P["d0"], D)
    wi = 0
    for s in range(1, NX0 + 1):
        for u in range(wi, min(D0, wi + 4)):
            dma_w(u)()
        wi = min(D0, wi + 4)
        if s < NX0:
            for p in range(8):
                x_load(k, s, p, xq(s, p))
    for u in range(wi, D0):
        dma_w(u)()
    next_w = D0
    common2(k)
    k.e("v_lshrrev_b32 v2, 4, v0")
    k.e("v_bfe_u32 v3, v0, 2, 2")
    k.e("v_and_b32 v4, 3, v0")
    k.e("v_lshrrev_b32 v5, 1, v4")
    k.e("v_lshrrev_b32 v6, 1, v2")
    k.e("v_lshl_add_u32 v6, v6, 3, v3")
    k.e("v_lshlrev_b32 v6, 7, v6")
    k.e("v_lshl_add_u32 v6, v5, 11, v6")
    k.e("v_and_b32 v7, 1, v4")
    k.e("v_lshl_add_u32 v6, v7, 4, v6")
    k.e("v_and_b32 v7, 1, v2")
    k.e("v_lshl_add_u32 v6, v7, 3, v6")
    k.e("v_lshrrev_b32 v7, 1, v3")
    k.e("v_lshl_or_b32 v7, v5, 1, v7")
    for j in range(4):
        k.e(f"v_xor_b32 v5, {j}, v7")
        k.e(f"v_lshl_add_u32 v{V_WA+j}, v5, 5, v6")
        k.e(f"v_add_u32 v{V_WB2+j}, 0x10000, v{V_WA+j}")
    k.e(f"s_lshl_b32 s46, s{S_RB}, 3")
    k.e(f"s_lshl_b32 s47, s{S_WAVE}, 1")
    k.e("s_add_u32 s46, s46, s47")
    k.e(f"s_mul_i32 s46, s46, {NKB}")
    k.e(f"s_mul_i32 s47, s{S_FQ}, 72")
    k.e("s_add_u32 s46, s46, s47")
    k.e(f"s_lshl_b32 s47, s{S_I2}, 2")
    k.e("s_add_u32 s46, s46, s47")
    k.e("s_add_u32 s46, s46, 36")
    k.e(f"s_lshl_b32 s{S_STBASE}, s46, 10")

    def aread(i, j, u, half):
        slot = u % R
        off = slot * 4096 + half * 512
        base = V_WA + j
        if off >= 65536:
            off -= 65536
            base = V_WB2 + j
        d = V_AF + (i % NB) * 4 + half * 2
        k.lgop(f"ds_read_b64_tr_b16 {vr(d,2)}, v{base} offset:{off}", ("af", i, half))

    def epilogue(n):
        c, j = divmod(n, 4)
        slot = n % 5
        ops = []
        for rt in range(2):
            a = acc(slot, rt)
            tb = V_T
            pk = V_T + 8 + rt * 4
            gi = [a + 0, a + 1, a + 2, a + 3, a + 8, a + 9, a + 10, a + 11]
            ui = [a + 4, a + 5, a + 6, a + 7, a + 12, a + 13, a + 14, a + 15]
            for h in range(8):
                ops.append(f"v_mul_f32 v{tb+h}, 0x{f2u(-LOG2E):08x}, v{gi[h]}")
            for h in range(8):
                ops.append(f"v_exp_f32 v{tb+h}, v{tb+h}")
            for h in range(8):
                ops.append(f"v_add_f32 v{tb+h}, 1.0, v{tb+h}")
            for h in range(8):
                ops.append(f"v_rcp_f32 v{tb+h}, v{tb+h}")
            for h in range(8):
                ops.append(f"v_mul_f32 v{tb+h}, v{tb+h}, v{ui[h]}")
            for h in range(4):
                ops.append(f"v_cvt_pk_bf16_f32 v{pk+h}, v{tb+2*h}, v{tb+2*h+1}")
            off = (rt * NKB + 24 * c + j) * 1024
            ops.append(("st", f"s_add_u32 s{S_T2}, s{S_STBASE}, {off}",
                        f"buffer_store_dwordx4 {vr(pk)}, v{V_L16}, s[16:19], s{S_T2} offen sc0 sc1"))
        return ops

    NU = 108
    sched = {}
    for j in range(4):
        for u in range(NU):
            if u < 36 and P["spread"]:
                t = -(-u * (36 + j * DELTA) // 36)
            else:
                t = u + j * DELTA
            sched.setdefault(t, []).append((t, j, u))
    pairs = []
    for t in range(NU + 3 * DELTA):
        pairs.extend(sched[t])
    first_of_step, npairs_in_step = {}, {}
    for i, (t, j, u) in enumerate(pairs):
        first_of_step.setdefault(t, i)
        npairs_in_step[t] = npairs_in_step.get(t, 0) + 1

    fill = []
    vq = Paced(P["vrate"], P["vcap"], k)
    epi = []
    visible = -1
    issued_reads = 0
    last_mfma_n = {}

    def x_convert(s):
        th = []
        def wx():
            vq.force_until(lambda: k.vm.count(("x", s)) == 8)
            k.need(vm=("x", s))
        th.append(wx)
        for p in range(8):
            th.append(lambda p=p: x_write(k, s, p, xq(s, p)))
        for ksl in range(4):
            for rt in range(2):
                th.append(lambda ksl=ksl, rt=rt: x_read(k, s, ksl, rt, xf(4 * s + ksl, rt)))
        return th

    def run_fill(th):
        if k.lg_out() >= 13:
            k.need(lg=k.lg[k.lg_done + 4])
        th()

    xc0 = x_convert(0)
    run_fill(xc0[0])
    next_x = NX0
    for s_ in range(NX0, NX0 + P["nx1"]):
        for p in range(8):
            x_load(k, s_, p, xq(s_, p))
        next_x += 1
        for u in range(next_w, min(next_w + 4, D, P["d1"])):
            dma_w(u)()
        next_w = max(next_w, min(next_w + 4, D, P["d1"]))
    for th in xc0[1:]:
        run_fill(th)
    k.need(vm=("w", 0))
    k.e("s_barrier")
    visible = 0

    def emit_epi(nmax, upto_inst=None):
        cnt = 0
        while epi and (cnt < nmax if upto_inst is None else epi[0][0] <= upto_inst):
            n, o = epi.pop(0)
            gap = k.n - last_mfma_n[n]
            if gap < 13:
                k.e(f"s_nop {min(15, 13 - gap)}")
            if isinstance(o, tuple):
                k.e(o[1])
                k.vmop(o[2], ("st",))
                cnt += 2
            else:
                k.e(o)
                cnt += 1

    def issue_reads_upto(i_target):
        nonlocal issued_reads
        while issued_reads <= i_target and issued_reads < len(pairs):
            t, j, u = pairs[issued_reads]
            if u > visible:
                break
            if k.lg_out() >= 13:
                k.need(lg=k.lg[k.lg_done + 4])
            aread(issued_reads, j, u, 0)
            aread(issued_reads, j, u, 1)
            issued_reads += 1

    def ensure(lst, tag):
        while tag not in lst:
            run_fill(fill.pop(0))

    epi_start = {}
    for i, (t, j, u) in enumerate(pairs):
        if u % 36 == 35:
            epi_start[i + 3] = (u // 36) * 4 + j

    for i, (t, j, u) in enumerate(pairs):
        if first_of_step[t] == i:
            if t in (0, 12, 36):
                k.stamp()
            if t + 1 < NU:
                vq.force_until(lambda: ("w", t + 1) in k.vm)
                k.need(vm=("w", t + 1))
                k.e("s_barrier")
                visible = t + 1
            for _ in range(2):
                if next_w <= t + D and next_w < NU:
                    vq.add(dma_w(next_w), 19)
                    next_w += 1
            if (t + P["xlead"]) % 4 == 0 and 1 <= (t + P["xlead"]) // 4 <= 8:
                s = (t + P["xlead"]) // 4
                assert next_x > s, (t, s, next_x)
                fill.extend(x_convert(s))
            if next_x <= 8:
                XP = P["xper"]
                nst = 8 // XP
                for p in range(XP * (t % nst), XP * (t % nst) + XP):
                    vq.add(lambda s=next_x, p=p: x_load(k, s, p, xq(s, p)), 19)
                if t % nst == nst - 1:
                    next_x += 1
            if t == NU - D + 1:
                def touch2():
                    srd(k, 60, 52, 53, 4608 * 1152)
                    k.e("v_mul_u32_u24 v2, 7282, v0")
                    k.e("v_lshrrev_b32 v2, 16, v2")
                    k.e("v_mul_u32_u24 v3, 9, v2")
                    k.e("v_sub_u32 v3, v0, v3")
                    k.e("v_min_u32 v2, 3, v2")
                    k.e("v_mul_u32_u24 v2, 1152, v2")
                    k.e("v_lshl_add_u32 v2, v3, 7, v2")
                    k.e(f"s_lshl_b32 s46, s{S_IDX}, 2")
                    k.e(f"s_add_u32 s46, s46, s{S_WAVE}")
                    k.e(f"s_mul_i32 s47, s{S_FQ}, 96")
                    k.e("s_add_u32 s46, s46, s47")
                    k.e(f"s_mul_i32 s46, s46, {4*1152}")
                    for c in range(3):
                        k.vmop(f"buffer_load_dword v{4+c}, v2, s[60:63], s46 offen", ("touch",))
                        if c < 2:
                            k.e(f"s_add_u32 s46, s46, {1536*1152}")
                if P["touch2"]:
                    vq.add(touch2, 40)
                vq.add(lambda: nonce_issue(k, 60), 10)
            gaps_left = 2 * npairs_in_step[t]
        if i in epi_start:
            n_ = epi_start[i]
            epi.extend((n_, o) for o in epilogue(n_))
        c, ks = divmod(u, 36)
        n = c * 4 + j
        slot = n % 5
        if ks == 0 and n >= 5:
            assert all(v != n - 5 or key <= i for key, v in epi_start.items())
            emit_epi(0, upto_inst=n - 5)
        af = vr(V_AF + (i % NB) * 4)
        issue_reads_upto(i)
        assert issued_reads > i
        needs_lg = [("af", i, 1)]
        if c == 0 and j == 0:
            ensure(k.lg, ("xf", ks, 1))
            needs_lg += [("xf", ks, 0), ("xf", ks, 1)]
        k.need(lg=needs_lg)
        for rt in range(2):
            a = acc(slot, rt)
            cin = "0" if ks == 0 else vr(a, 16)
            k.e(f"v_mfma_f32_32x32x16_bf16 {vr(a,16)}, {af}, {xf(ks,rt)}, {cin}")
            last_mfma_n[n] = k.n
            if rt == 0:
                issue_reads_upto(i + RA)
            nf = -(-len(fill) // gaps_left)
            gaps_left -= 1
            cnt = 0
            while fill and cnt < nf:
                if k.lg_out() >= 10:
                    break
                fill.pop(0)()
                cnt += 1
            vq.gap()
            emit_epi(P["epg"])
    while fill:
        run_fill(fill.pop(0))
    vq.drain()
    k.stamp()
    return epi, epi_start, len(pairs), epilogue, emit_epi


def phaseA_qkv(k, P):
    k.label("L_QKV")
    k.c("---------------- phase A: QKV + attention path ----------------")
    NST = 4
    WST = 28672
    HB = NST * WST
    GB = HB + NST * 2048
    assert GB + 2048 <= XB
    PITCH = 448
    V_WD = 40
    V_TA = 47
    V_HA = 54
    V_HB = 57
    V_GW = 59
    V_HW = 60
    V_HV = 63
    V_GA = 64
    V_AF = 68
    V_TA2 = 84
    V_HA2 = 91
    V_XF = 96
    V_GF = 224
    V_HAF = 232
    V_HBF = 244
    NXS = 4

    def xfr(s, ksl, rt):
        return V_XF + ((s % NXS) * 8 + ksl * 2 + rt) * 4

    def xq(s, p):
        return vr(V_XF + ((s % NXS) * 8 + p) * 4)

    for p in range(8):
        x_load(k, 0, p, xq(0, p))
    k.e(f"s_lshl_b32 s{S_FG}, s{S_FQ}, 1")
    k.e(f"s_add_u32 s{S_FG}, s{S_FG}, s{S_I2}")
    k.e(f"s_sub_u32 s{S_FG}, s{S_FG}, 6")
    srd(k, 12, 6, 7, 576 * 3456)
    k.e(f"s_mul_i32 s46, s{S_WAVE}, {7*64}")
    k.e(f"s_mul_i32 s47, s{S_FG}, 144")
    k.e("s_mov_b32 s48, 3456")
    k.e(f"s_mul_i32 s{S_M0W}, s{S_WAVE}, {7*1024}")
    k.e(f"s_mul_i32 s{S_WBASE}, s{S_PW}, {64*3456}")
    k.e(f"s_lshl_b32 s{S_STBASE}, s{S_PW}, 7")

    def dma_w(s, ii):
        st = s % NST
        def f():
            if ii == 0 and s > 0:
                advance(k, S_PW, [(S_WBASE, 64 * 3456), (S_STBASE, 128)])
            k.e(f"s_add_u32 m0, s{S_M0W}, {st*WST + ii*1024}")
            k.e("s_nop 0")
            k.vmop(f"buffer_load_dwordx4 v{V_WD+ii}, s[12:15], s{S_WBASE} offen lds", ("w", s))
        return f

    for ii in range(7):
        k.e(f"v_add_u32 v2, s46, v0")
        k.e(f"v_add_u32 v2, {64*ii}, v2")
        k.e("v_mul_u32_u24 v3, 2341, v2")
        k.e("v_lshrrev_b32 v3, 16, v3")
        k.e("v_mul_u32_u24 v4, 28, v3")
        k.e("v_sub_u32 v4, v2, v4")
        k.e("v_mul_u32_u24 v5, 57, v4")
        k.e("v_lshrrev_b32 v5, 9, v5")
        k.e("v_mul_u32_u24 v6, 9, v5")
        k.e("v_sub_u32 v6, v4, v6")
        k.e("v_mul_lo_u32 v7, v3, s48")
        k.e("v_mul_u32_u24 v5, 1152, v5")
        k.e("v_add3_u32 v7, v7, v5, s47")
        k.e(f"v_lshl_add_u32 v{V_WD+ii}, v6, 4, v7")
        k.e("v_cmp_eq_u32 vcc, 27, v4")
        k.e("v_mov_b32 v4, 0x7ff00000")
        k.e("s_nop 0")
        k.e(f"v_cndmask_b32 v{V_WD+ii}, v{V_WD+ii}, v4, vcc")
        dma_w(0, ii)()
    k.e(f"s_and_b32 s46, s{S_WAVE}, 1")
    k.e("v_lshrrev_b32 v2, 3, v0")
    k.e("v_and_b32 v3, 7, v0")
    k.e("v_lshrrev_b32 v4, 1, v2")
    k.e("s_lshl_b32 s47, s46, 2")
    k.e("v_or_b32 v4, s47, v4")
    k.e("v_xor_b32 v3, v3, v4")
    k.e("v_mul_u32_u24 v7, 1152, v2")
    k.e("v_lshl_add_u32 v7, v3, 4, v7")
    k.e(f"s_lshl_b32 s47, s{S_RB}, 8")
    k.e("s_lshl_b32 s48, s46, 3")
    k.e("s_add_u32 s47, s47, s48")
    k.e("s_sub_u32 s47, s47, 16")
    k.e("s_mul_i32 s47, s47, 1152")
    k.e(f"v_add_u32 v{V_HV}, s47, v7")
    k.e("s_lshl_b32 s49, s46, 10")
    k.e(f"s_add_u32 s49, s49, {HB}")

    def dma_h(s):
        st = s % NST
        def f():
            k.e(f"s_add_u32 m0, s49, {st*2048}")
            k.e("s_nop 0")
            k.vmop(f"buffer_load_dwordx4 v{V_HV}, s[8:11], s{S_STBASE} offen lds", ("w", s))
        return f

    k.e(f"v_lshlrev_b32 v{V_L16}, 4, v0")
    dma_h(0)()
    for s in range(1, 3):
        for p in range(8):
            x_load(k, s, p, xq(s, p))
        for ii in range(7):
            dma_w(s, ii)()
        dma_h(s)()
    for p in range(8):
        x_load(k, 3, p, xq(3, p))
    common2(k)
    k.e("v_lshrrev_b32 v2, 4, v0")
    k.e("v_bfe_u32 v3, v0, 2, 2")
    k.e("v_and_b32 v4, 3, v0")
    k.e("v_lshrrev_b32 v5, 1, v2")
    k.e("v_lshl_add_u32 v5, v5, 3, v3")
    k.e(f"v_mul_u32_u24 v5, {PITCH}, v5")
    k.e("v_and_b32 v6, 1, v2")
    k.e("v_lshl_add_u32 v5, v6, 5, v5")
    k.e(f"v_lshl_add_u32 v{V_TA}, v4, 3, v5")
    k.e(f"v_add_u32 v{V_TA2}, {2*WST}, v{V_TA}")
    k.e("v_lshl_add_u32 v5, v2, 3, v3")
    k.e(f"v_mul_u32_u24 v5, {PITCH}, v5")
    k.e("v_lshl_add_u32 v5, v4, 3, v5")
    k.e("v_and_b32 v10, 15, v0")
    k.e("v_mul_u32_u24 v10, 592, v10")
    k.e("v_lshl_add_u32 v10, v2, 4, v10")
    for i in range(3):
        k.e(f"s_mul_i32 s46, s{S_WAVE}, 3")
        k.e(f"s_add_u32 s46, s46, {i}")
        k.e("s_min_u32 s46, s46, 8")
        k.e("s_lshl_b32 s47, s46, 5")
        k.e("s_add_u32 s47, s47, 144")
        k.e(f"v_add_u32 v{V_HA+i}, s47, v5")
        k.e(f"v_add_u32 v{V_HA2+i}, {2*WST}, v{V_HA+i}")
        k.e("s_lshl_b32 s47, s46, 6")
        k.e(f"v_add_u32 v{V_HW+i}, s47, v10")
    k.e("v_and_b32 v5, 15, v0")
    k.e("v_bfe_u32 v6, v5, 1, 3")
    for k32 in range(2):
        k.e(f"v_add_u32 v7, {4*k32}, v2")
        k.e("v_xor_b32 v7, v7, v6")
        k.e("v_lshlrev_b32 v7, 4, v7")
        k.e("v_lshl_add_u32 v7, v5, 7, v7")
        k.e(f"v_add_u32 v{V_HB+k32}, {HB}, v7")

    def aread(i, s, ksl, T, half):
        st = s % NST
        off = (ksl * 16 + half * 4) * PITCH + (st % 2) * WST + 64 * T
        base = (V_TA2 if st >= 2 else V_TA)
        d = V_AF + (i % 4) * 4 + half * 2
        k.lgop(f"ds_read_b64_tr_b16 {vr(d,2)}, v{base} offset:{off}", ("af", i, half))

    def haread(s, k32, i, half):
        st = s % NST
        off = (k32 * 32 + half * 4) * PITCH + (st % 2) * WST
        base = (V_HA2 if st >= 2 else V_HA) + i
        d = V_HAF + i * 4 + half * 2
        k.lgop(f"ds_read_b64_tr_b16 {vr(d,2)}, v{base} offset:{off}", ("haf", s, k32, i, half))

    def accq(T, rt):
        return (T * 2 + rt) * 16
    A_H = 224

    def x_convert(s):
        def wx():
            vq.force_until(lambda: k.vm.count(("x", s)) == 8)
            k.need(vm=("x", s))
        th = [wx]
        for p in range(8):
            th.append(lambda p=p: x_write(k, s, p, xq(s, p)))
        for ksl in range(4):
            for rt in range(2):
                th.append(lambda ksl=ksl, rt=rt: x_read(k, s, ksl, rt, vr(xfr(s, ksl, rt))))
        return th

    vq = Paced(P["vrate"], P["vcap"], k)

    def guard():
        if k.lg_out() >= 13:
            k.need(lg=k.lg[k.lg_done + 4])

    for th in x_convert(0):
        guard()
        th()
    k.need(vm=("w", 0))
    k.e("s_barrier")

    pairs = [(s, ksl, T) for s in range(9) for ksl in range(4) for T in range(7)]
    fill = []
    issued = 0
    visible = 0

    def issue_upto(it):
        nonlocal issued
        while issued <= it and issued < len(pairs):
            s, ksl, T = pairs[issued]
            if s > visible:
                break
            guard()
            aread(issued, s, ksl, T, 0)
            aread(issued, s, ksl, T, 1)
            issued += 1

    for i, (s, ksl, T) in enumerate(pairs):
        ks = 4 * s + ksl
        if ksl == 0 and T == 0:
            if s in (0, 2):
                k.stamp()
            while fill:
                guard()
                fill.pop(0)()
            if s + 1 <= 8:
                vq.force_until(lambda: k.vm.count(("w", s + 1)) == 8)
                k.need(vm=("w", s + 1))
                k.e("s_barrier")
                visible = s + 1
            if s + 3 <= 8:
                for ii in range(7):
                    vq.add(dma_w(s + 3, ii), 33)
                    if s >= 1:
                        vq.add(lambda s=s, p=ii: x_load(k, s + 3, p, xq(s + 3, p)), 19)
                vq.add(dma_h(s + 3), 19)
                if s >= 1:
                    vq.add(lambda s=s: x_load(k, s + 3, 7, xq(s + 3, 7)), 19)
        if ksl == 2 and T == 0 and s + 1 <= 8:
            xc = x_convert(s + 1)
            if "noxw" in P["exp"]:
                xc = xc[:1] + xc[9:]
            fill.extend(xc)
        if s == 7 and ksl == 0 and T == 1:
            def touch3():
                srd(k, 60, 56, 57, 576 * 1152)
                k.e("v_mul_u32_u24 v2, 7282, v0")
                k.e("v_lshrrev_b32 v2, 16, v2")
                k.e("v_mul_u32_u24 v3, 9, v2")
                k.e("v_sub_u32 v3, v0, v3")
                k.e("v_min_u32 v2, 5, v2")
                k.e("v_mul_u32_u24 v2, 1152, v2")
                k.e("v_lshl_add_u32 v2, v3, 7, v2")
                k.e(f"s_sub_u32 s46, s{S_IDX}, 24")
                k.e("s_lshl_b32 s46, s46, 2")
                k.e(f"s_add_u32 s46, s46, s{S_WAVE}")
                k.e(f"s_mul_i32 s46, s46, {18*1152}")
                for z in range(3):
                    k.vmop(f"buffer_load_dword v{4+z}, v2, s[60:63], s46 offen", ("touch",))
                    k.e(f"s_add_u32 s46, s46, {6*1152}")
            if P["touch2"]:
                vq.add(touch3, 40)
        if s == 8 and ksl == 0 and T == 1:
            vq.add(lambda: nonce_issue(k, 252), 10)
        if T == 0:
            guard()
            if ksl % 2 == 0:
                k32 = ksl // 2
                k.lgop(f"ds_read_b128 {vr(V_HBF + k32*4)}, v{V_HB+k32} offset:{(s%NST)*2048}", ("hbf", s, k32))
        issue_upto(i)
        assert issued > i
        need = [("af", i, 1)]
        if T == 0:
            need += [("xf", ks, 0), ("xf", ks, 1)]
        k.need(lg=need)
        af = vr(V_AF + (i % 4) * 4)
        for rt in range(2):
            a = accq(T, rt)
            cin = "0" if ks == 0 else ar(a, 16)
            k.e(f"v_mfma_f32_32x32x16_bf16 {ar(a,16)}, {af}, {vr(xfr(s,ksl,rt))}, {cin}")
            if rt == 0:
                issue_upto(i + 2)
            if fill and k.lg_out() < 9:
                fill.pop(0)()
            vq.gap()
        if ksl % 2 == 0 and T in (1, 2, 3) and "nohalo" not in P["exp"]:
            guard()
            haread(s, ksl // 2, T - 1, 0)
            haread(s, ksl // 2, T - 1, 1)
        if ksl % 2 == 0 and T in (4, 5, 6) and "nohalo" not in P["exp"]:
            k32 = ksl // 2
            hi = T - 4
            k.need(lg=[("haf", s, k32, hi, 1), ("hbf", s, k32)])
            a = A_H + hi * 4
            cin = "0" if ks == 0 else ar(a, 4)
            k.e(f"v_mfma_f32_16x16x32_bf16 {ar(a,4)}, {vr(V_HAF+hi*4)}, {vr(V_HBF+k32*4)}, {cin}")
    while fill:
        guard()
        fill.pop(0)()
    vq.drain()
    k.wait_all(vm=False)
    k.e("s_nop 7")
    k.e("s_nop 7")
    k.e("s_barrier")
    k.stamp()
    k.e("v_and_b32 v2, 31, v0")
    k.e("v_lshrrev_b32 v3, 5, v0")
    k.e(f"s_lshl_b32 s46, s{S_WAVE}, 6")
    k.e("s_add_u32 s46, s46, 16")
    k.need(vm=("touch",)) if P["touch2"] else None
    k.e("v_add_u32 v4, s46, v2")
    k.e("v_mul_u32_u24 v4, 592, v4")
    k.e("v_lshl_add_u32 v8, v3, 4, v4")
    k.e("v_mul_u32_u24 v5, 144, v3")
    k.e("v_add_u32 v4, v4, v5")
    V_Q = 84
    combos = [(T, qq) for T in range(7) for qq in range(4)]
    for rt in range(2):
        for (T, qq) in combos:
            g2 = 8 * T + 2 * qq
            if g2 < 18:
                guard()
                k.lgop(f"ds_write_b128 v8, {ar(accq(T, rt) + qq*4)} offset:{rt*18944 + g2*16}", ("qw",))
    for rt in range(2):
        for g9 in range(9):
            guard()
            k.lgop(f"ds_read_b128 {vr(V_Q + rt*36 + g9*4)}, v4 offset:{rt*18944 + g9*16}", ("qr",))
    for rt in range(2):
        for (T, qq) in combos:
            g2 = 8 * T + 2 * qq
            if 18 <= g2 < 54:
                guard()
                k.lgop(f"ds_write_b128 v8, {ar(accq(T, rt) + qq*4)} offset:{rt*18944 + (g2-18)*16}", ("kvw",))
    for hi in range(3):
        guard()
        k.lgop(f"ds_write_b128 v{V_HW+hi}, {ar(A_H+hi*4)}", ("kvw",))
    sc = (18 ** -0.5) * LOG2E
    k.e(f"s_mov_b32 s46, 0x{f2u(sc):08x}")
    k.need(lg=("qr",))
    for i in range(72):
        k.e(f"v_mul_f32 v{V_Q+i}, s46, v{V_Q+i}")
    k.wait_all()
    nonce_get(k, 252)
    k.e("s_barrier")
    k.stamp()
    k.e(f"s_lshl_b32 s46, s{S_RB}, 2")
    k.e(f"s_add_u32 s46, s46, s{S_WAVE}")
    k.e("s_lshl_b32 s46, s46, 6")
    k.e("v_add_u32 v5, s46, v2")
    k.e(f"v_subrev_u32 v9, {14*592}, v4")
    V_K = 160
    V_L = 232
    V_P = 10
    V_O = 40
    V_SA = 240
    k.e(f"s_mul_i32 s47, s{S_FG}, 72")
    k.e("v_mul_u32_u24 v6, 36, v3")
    k.e("v_add_u32 v6, s47, v6")
    for a in range(9):
        k.e(f"v_add_u32 v7, {4*a}, v6")
        k.e("v_lshrrev_b32 v8, 4, v7")
        k.e("v_lshlrev_b32 v8, 10, v8")
        k.e("v_bfe_u32 v26, v7, 3, 1")
        k.e("v_lshl_add_u32 v8, v26, 9, v8")
        k.e("v_bfe_u32 v26, v7, 2, 1")
        k.e("v_lshl_add_u32 v8, v26, 3, v8")
        k.e(f"v_lshl_add_u32 v{V_SA+a}, v2, 4, v8")
    k.e(f"s_lshl_b32 s46, s{S_RB}, 3")
    k.e(f"s_lshl_b32 s47, s{S_WAVE}, 1")
    k.e("s_add_u32 s46, s46, s47")
    k.e(f"s_mul_i32 s{S_STBASE}, s46, {NKB*1024}")

    def kvread(rt, w, isv, buf):
        off = rt * 18944 + (14 - 2 * w) * 592 + isv * 288
        for g in range(9):
            k.lgop(f"ds_read_b128 {vr(V_K + buf*36 + g*4)}, v9 offset:{off + g*16}", ("kv", rt, w, isv))

    for rt in range(2):
        q = V_Q + rt * 36
        kvread(rt, 0, 0, 0)
        for w in range(8):
            buf = w & 1
            k.need(lg=("kv", rt, w, 0))
            if w + 1 < 8:
                kvread(rt, w + 1, 0, buf ^ 1)
            else:
                kvread(rt, 0, 1, buf ^ 1)
            kb = V_K + buf * 36
            for d in range(9):
                for e in range(2):
                    a = q + e * 18 + 2 * d
                    b = kb + e * 18 + 2 * d
                    l = V_L + e * 4 + (d & 1) * 2
                    if d < 2:
                        k.e(f"v_pk_mul_f32 {vr(l,2)}, {vr(a,2)}, {vr(b,2)}")
                    else:
                        k.e(f"v_pk_fma_f32 {vr(l,2)}, {vr(a,2)}, {vr(b,2)}, {vr(l,2)}")
            for e in range(2):
                k.e(f"v_pk_add_f32 {vr(V_L+e*4,2)}, {vr(V_L+e*4,2)}, {vr(V_L+e*4+2,2)}")
            for e in range(2):
                k.e(f"v_add_f32 v{V_P + e*8 + w}, v{V_L+e*4}, v{V_L+e*4+1}")
        k.e(f"v_add_u32 v26, {32*rt}, v5")
        k.e("v_mov_b32 v27, 0xff7fffff")
        for w in range(1, 8):
            k.e(f"v_cmp_le_u32 vcc, {2*w}, v26")
            k.e("s_nop 1")
            for e in range(2):
                k.e(f"v_cndmask_b32 v{V_P+e*8+w}, v27, v{V_P+e*8+w}, vcc")
        for e in range(2):
            p = V_P + e * 8
            m = 28 + e
            k.e(f"v_max3_f32 v{m}, v{p}, v{p+1}, v{p+2}")
            k.e(f"v_max3_f32 v{m}, v{m}, v{p+3}, v{p+4}")
            k.e(f"v_max3_f32 v{m}, v{m}, v{p+5}, v{p+6}")
            k.e(f"v_max_f32 v{m}, v{m}, v{p+7}")
        for e in range(2):
            p = V_P + e * 8
            for w in range(8):
                k.e(f"v_sub_f32 v{p+w}, v{p+w}, v{28+e}")
        for e in range(2):
            p = V_P + e * 8
            for w in range(8):
                k.e(f"v_exp_f32 v{p+w}, v{p+w}")
        k.e("s_nop 0")
        for e in range(2):
            p = V_P + e * 8
            k.e(f"v_add_f32 v{28+e}, v{p}, v{p+1}")
        for w in range(2, 8):
            for e in range(2):
                p = V_P + e * 8
                k.e(f"v_add_f32 v{28+e}, v{28+e}, v{p+w}")
        for e in range(2):
            k.e(f"v_rcp_f32 v{28+e}, v{28+e}")
        k.e("s_nop 0")
        for e in range(2):
            p = V_P + e * 8
            for w in range(8):
                k.e(f"v_mul_f32 v{p+w}, v{p+w}, v{28+e}")
        for w in range(8):
            buf = (w & 1)
            k.need(lg=("kv", rt, w, 1))
            if w + 1 < 8:
                kvread(rt, w + 1, 1, buf ^ 1)
            vb = V_K + buf * 36
            for e in range(2):
                p = V_P + e * 8 + w
                pe = p & ~1
                sel = p & 1
                for d in range(9):
                    o = V_O + e * 18 + 2 * d
                    b = vb + e * 18 + 2 * d
                    if w == 0:
                        k.e(f"v_pk_mul_f32 {vr(o,2)}, {vr(pe,2)}, {vr(b,2)} op_sel:[{sel},0] op_sel_hi:[{sel},1]")
                    else:
                        k.e(f"v_pk_fma_f32 {vr(o,2)}, {vr(pe,2)}, {vr(b,2)}, {vr(o,2)} op_sel:[{sel},0,0] op_sel_hi:[{sel},1,1]")
        for a in range(9):
            d = q + a * 2
            k.e(f"v_cvt_pk_bf16_f32 v{d}, v{V_O+4*a}, v{V_O+4*a+1}")
            k.e(f"v_cvt_pk_bf16_f32 v{d+1}, v{V_O+4*a+2}, v{V_O+4*a+3}")
        k.e(f"s_add_u32 s{S_T2}, s{S_STBASE}, {rt*NKB*1024}")
        for a in range(9):
            k.vmop(f"buffer_store_dwordx2 {vr(q+a*2,2)}, v{V_SA+a}, s[16:19], s{S_T2} offen sc0 sc1", ("st",))
    k.stamp()


S_RT, S_NT, S_SPLIT = 47, 48, 49
S_SEG = 64
S_BB = 67
S_FL = 35


class PhaseB:
    def __init__(self, k, P, is_o):
        self.k, self.P, self.is_o = k, P, is_o
        self.NS = 18 if is_o else 36
        self.RS = P["b_ring"]
        self.DW = P["b_dw"]
        self.DB = P["b_db"]
        assert self.RS >= self.DW + 2
        self.SL = 12288
        self.V_WD = 64
        self.V_AE = 67
        self.V_SC = 73
        self.V_T = 74
        self.V_AF = 8
        self.V_ACC = 96
        self.NBB = self.DB + 1

    def setup(self):
        k, P = self.k, self.P
        t = self.V_T
        if self.is_o:
            k.e(f"s_and_b32 s46, s{S_FG}, 1")
            k.e(f"s_lshr_b32 s{S_NT}, s{S_FG}, 1")
            k.e(f"s_mov_b32 s{S_SPLIT}, 4")
            srd(k, 12, 56, 57, 576 * 1152)
        else:
            k.e(f"s_and_b32 s46, s{S_I2}, 1")
            k.e(f"s_lshr_b32 s{S_NT}, s{S_I2}, 1")
            k.e(f"s_mov_b32 s{S_SPLIT}, s{S_FQ}")
            srd(k, 12, 52, 53, 4608 * 1152)
        k.e(f"s_lshl_b32 s{S_RT}, s{S_RB}, 1")
        k.e(f"s_add_u32 s{S_RT}, s{S_RT}, s46")
        k.e(f"s_mul_i32 s{S_SEG}, s{S_WAVE}, {8*1152}")
        k.e(f"s_mul_i32 s46, s{S_NT}, 384")
        k.e(f"s_add_u32 s{S_SEG}, s{S_SEG}, s46")
        if not self.is_o:
            k.e(f"s_mul_i32 s46, s{S_SPLIT}, {384*1152}")
            k.e(f"s_add_u32 s{S_SEG}, s{S_SEG}, s46")
        k.e(f"s_lshl_b32 s46, s{S_RT}, 2")
        k.e(f"s_add_u32 s46, s46, s{S_WAVE}")
        k.e(f"s_mul_i32 s46, s46, {NKB}")
        if not self.is_o:
            k.e(f"s_mul_i32 s{S_BB}, s{S_SPLIT}, 72")
            k.e(f"s_add_u32 s46, s46, s{S_BB}")
            k.e("s_add_u32 s46, s46, 36")
        k.e(f"s_lshl_b32 s{S_BB}, s46, 10")
        k.e(f"s_mul_i32 s{S_M0W}, s{S_WAVE}, 3072")
        for i in range(3):
            k.e(f"v_add_u32 v{t}, {64*i}, v0")
            k.e(f"v_mul_u32_u24 v{t+1}, 2731, v{t}")
            k.e(f"v_lshrrev_b32 v{t+1}, 16, v{t+1}")
            k.e(f"v_mul_u32_u24 v{t+2}, 24, v{t+1}")
            k.e(f"v_sub_u32 v{t+2}, v{t}, v{t+2}")
            k.e(f"v_bfe_u32 v{t+3}, v{t+1}, 1, 1")
            k.e(f"v_lshlrev_b32 v{t+3}, 2, v{t+3}")
            k.e(f"v_xor_b32 v{t+2}, v{t+2}, v{t+3}")
            k.e(f"v_mul_u32_u24 v{t+1}, 1152, v{t+1}")
            k.e(f"v_lshl_add_u32 v{self.V_WD+i}, v{t+2}, 4, v{t+1}")
        for st in range(self.DW):
            for i in range(3):
                self.dma_w(st, i)
        k.e(f"v_lshrrev_b32 v{t}, 4, v0")
        k.e(f"v_bfe_u32 v{t+1}, v0, 2, 2")
        k.e(f"v_and_b32 v{t+2}, 3, v0")
        k.e(f"v_lshrrev_b32 v{t+3}, 1, v{t}")
        k.e(f"v_lshl_add_u32 v{t+3}, v{t+3}, 3, v{t+1}")
        k.e(f"v_mul_u32_u24 v{t+3}, 384, v{t+3}")
        k.e(f"v_and_b32 v{t+4}, 1, v{t}")
        k.e(f"v_lshl_add_u32 v{t+3}, v{t+4}, 5, v{t+3}")
        k.e(f"v_lshl_add_u32 v{t+3}, v{t+2}, 3, v{t+3}")
        k.e(f"v_lshrrev_b32 v{t+4}, 1, v{t+1}")
        k.e(f"v_lshlrev_b32 v{t+4}, 6, v{t+4}")
        ae = self.V_AE
        k.e(f"v_add_u32 v{ae}, v{t+3}, v{t+4}")
        k.e(f"v_sub_u32 v{ae+1}, v{t+3}, v{t+4}")
        k.e(f"v_add_u32 v{ae+1}, 64, v{ae+1}")
        for z in (1, 2):
            k.e(f"v_add_u32 v{ae+2*z}, {z*4*self.SL}, v{ae}")
            k.e(f"v_add_u32 v{ae+2*z+1}, {z*4*self.SL}, v{ae+1}")

    def dma_w(self, st, i):
        k = self.k
        slot = st % self.RS
        seg, r = divmod(st, 12)
        segstride = 384 if self.is_o else 1536
        k.e(f"s_add_u32 m0, s{S_M0W}, {slot*self.SL + i*1024}")
        k.e(f"s_add_u32 s{S_T1}, s{S_SEG}, {(seg*segstride + r*32)*1152}")
        k.vmop(f"buffer_load_dwordx4 v{self.V_WD+i}, s[12:15], s{S_T1} offen lds", ("bw", st))

    def bfr(self, st, kh):
        return ((st % self.NBB) * 2 + kh) * 4

    def load_b(self, st, kh):
        k = self.k
        if kh == 0:
            k.e(f"s_add_u32 s{S_T0}, s{S_BB}, {st*2048}")
        k.vmop(f"buffer_load_dwordx4 {ar(self.bfr(st,kh))}, v{V_L16}, s[16:19], s{S_T0} offen offset:{kh*1024} sc0 sc1", ("b", st, kh))

    def aread(self, i, st, kh, a, half):
        k = self.k
        slot = st % self.RS
        z, sl = divmod(slot, 4)
        off = sl * self.SL + (16 * kh + 4 * half) * 384
        be, bo = self.V_AE + 2 * z, self.V_AE + 2 * z + 1
        if a % 2 == 0:
            base, off = be, off + a * 64
        else:
            base, off = bo, off + (a - 1) * 64
        assert 0 <= off < 65536
        d = self.V_AF + (i % 4) * 4 + half * 2
        k.lgop(f"ds_read_b64_tr_b16 {vr(d,2)}, v{base} offset:{off}", ("baf", i, half))

    def main(self):
        k, P = self.k, self.P
        NS, DW, DB = self.NS, self.DW, self.DB
        for st in range(DB):
            self.load_b(st, 0)
            self.load_b(st, 1)
        ops = [(st, kh, a) for st in range(NS) for kh in range(2) for a in range(6)]
        fill = []
        issued = 0
        visible = 0
        visible = DW - 1

        def issue_upto(it):
            nonlocal issued
            while issued <= it and issued < len(ops):
                st, kh, a = ops[issued]
                if st > visible:
                    break
                self.aread(issued, st, kh, a, 0)
                self.aread(issued, st, kh, a, 1)
                issued += 1

        for i, (st, kh, a) in enumerate(ops):
            if kh == 0 and a == 0:
                while fill:
                    fill.pop(0)()
                if st >= 1:
                    if st + 1 < NS and st + 1 > visible:
                        k.need(vm=("bw", st + 1))
                        visible = st + 1
                    k.e("s_barrier")
                if st + DB < NS:
                    fill.append(lambda st=st: self.load_b(st + DB, 0))
                    fill.append(lambda st=st: self.load_b(st + DB, 1))
                if st + DW < NS:
                    for ii in range(3):
                        fill.append(lambda st=st, ii=ii: self.dma_w(st + DW, ii))
            issue_upto(i)
            assert issued > i
            if a == 0:
                k.need(vm=("b", st, kh), lg=("baf", i, 1))
            else:
                k.need(lg=("baf", i, 1))
            ac = self.V_ACC + a * 16
            cin = "0" if (st == 0 and kh == 0) else vr(ac, 16)
            k.e(f"v_mfma_f32_32x32x16_bf16 {vr(ac,16)}, {vr(self.V_AF+(i%4)*4)}, {ar(self.bfr(st,kh))}, {cin}")
            issue_upto(i + 2)
            if fill and (i % 2 == 1):
                fill.pop(0)()
        k.stamp()

    def epilogue(self):
        k, P = self.k, self.P
        t = self.V_T
        sc = self.V_SC
        k.e(f"s_mul_i32 s46, s{S_RT}, 3")
        k.e(f"s_add_u32 s46, s46, s{S_NT}")
        k.e(f"s_add_u32 s{S_FL}, s46, 40")
        k.e(f"s_lshl_b32 s{S_FL}, s{S_FL}, 7")
        k.e(f"s_add_u32 s{S_FL}, s{S_FL}, {FLAG_OFF}")
        k.e("s_mul_i32 s46, s46, 20")
        k.e(f"s_add_u32 s46, s46, s{S_WAVE}")
        k.e(f"s_mul_i32 s{S_BB}, s46, 12288")
        k.e(f"s_add_u32 s{S_BB}, s{S_BB}, {PART_OFF}")
        k.e(f"s_mul_i32 s46, s{S_SPLIT}, {4*12288}")
        k.e(f"s_add_u32 s{S_STBASE}, s{S_BB}, s46")
        k.e("s_nop 3")
        PK = 192
        for pr in range(12):
            a0 = self.V_ACC + pr * 8
            for r in range(4):
                k.e(f"v_cvt_pk_bf16_f32 v{PK+pr*4+r}, v{a0+2*r}, v{a0+2*r+1}")
            if pr % 4 == 0:
                k.e(f"s_add_u32 s{S_T2}, s{S_STBASE}, {pr*1024}")
            k.vmop(f"buffer_store_dwordx4 {vr(PK+pr*4)}, v{V_L16}, s[16:19], s{S_T2} offen offset:{(pr%4)*1024} sc0 sc1", ("pst",))
        k.e(f"s_lshl_b32 s46, s{S_SPLIT}, 2")
        k.e(f"s_add_u32 s46, s46, s{S_FL}")
        k.stamp()
        publish(k, 46, t, ("pst",))
        k.stamp()

    def phaseC(self):
        k, P = self.k, self.P
        t = self.V_T
        srd(k, 8, 28, 29, 2048 * 576 * 2)
        poll(k, S_FL, 6, t)
        k.stamp()
        k.e(f"s_mul_i32 s46, s{S_SPLIT}, 3072")
        k.e(f"s_add_u32 s{S_BB}, s{S_BB}, s46")
        L = 96
        sc = self.V_SC
        k.e(f"s_lshl_b32 s46, s{S_RT}, 2")
        k.e(f"s_add_u32 s46, s46, s{S_WAVE}")
        k.e("s_lshl_b32 s46, s46, 7")
        k.e(f"s_add_u32 s46, s46, {G_OFF}")
        k.e(f"v_and_b32 v{t}, 31, v0")
        k.e(f"v_lshlrev_b32 v{t}, 2, v{t}")
        k.vmop(f"buffer_load_dword v{sc}, v{t}, s[16:19], s46 offen sc0 sc1", ("g",))
        for s in range(5):
            k.e(f"s_add_u32 s{S_T0}, s{S_BB}, {s*4*12288}")
            for pr in range(3):
                k.vmop(f"buffer_load_dwordx4 {vr(L + (s*3+pr)*4)}, v{V_L16}, s[16:19], s{S_T0} offen offset:{pr*1024} sc0 sc1", ("pl", s))
        k.e(f"s_lshl_b32 s46, s{S_RT}, 2")
        k.e(f"s_add_u32 s46, s46, s{S_WAVE}")
        k.e(f"s_mul_i32 s46, s46, {32*1152}")
        k.e(f"s_mul_i32 s{S_T1}, s{S_NT}, 384")
        k.e(f"s_add_u32 s46, s46, s{S_T1}")
        k.e(f"s_mul_i32 s{S_T1}, s{S_SPLIT}, 96")
        k.e(f"s_add_u32 s46, s46, s{S_T1}")
        k.e(f"v_and_b32 v{t}, 31, v0")
        k.e(f"v_mul_u32_u24 v{t}, 1152, v{t}")
        k.e(f"v_lshrrev_b32 v{t+1}, 5, v0")
        k.e(f"v_lshl_add_u32 v{t}, v{t+1}, 4, v{t}")
        A = 160
        TT = 192
        for s in range(5):
            k.need(vm=("pl", s))
            for d in range(12):
                src = L + s * 12 + d
                if s == 0:
                    k.e(f"v_lshlrev_b32 v{A+2*d}, 16, v{src}")
                    k.e(f"v_and_b32 v{A+2*d+1}, 0xffff0000, v{src}")
                else:
                    k.e(f"v_lshlrev_b32 v{TT+2*d}, 16, v{src}")
                    k.e(f"v_and_b32 v{TT+2*d+1}, 0xffff0000, v{src}")
            if 0 < s < 4:
                for d in range(24):
                    k.e(f"v_add_f32 v{A+d}, v{A+d}, v{TT+d}")
            if s == 3:
                k.e(f"v_sub_f32 v{t+1}, 1.0, v{sc}")
                for d in range(24):
                    k.e(f"v_mul_f32 v{A+d}, v{t+1}, v{A+d}")
            if s == 4:
                for d in range(24):
                    k.e(f"v_fmac_f32 v{A+d}, v{sc}, v{TT+d}")
        for d in range(12):
            k.e(f"v_cvt_pk_bf16_f32 v{TT+d}, v{A+2*d}, v{A+2*d+1}")
        k.e("s_nop 1")
        for pr in range(3):
            b = TT + pr * 4
            k.e(f"v_permlane32_swap_b32 v{b}, v{b+2}")
            k.e(f"v_permlane32_swap_b32 v{b+1}, v{b+3}")
        k.e("s_nop 1")
        for pr in range(3):
            k.vmop(f"buffer_store_dwordx4 {vr(TT+pr*4)}, v{t}, s[8:11], s46 offen offset:{pr*32}", ("ost",))
        k.wait_all()
        k.stamp()


def gate_wg(k, P):
    k.c("---------------- gate rows ----------------")
    srd(k, 20, 54, 55, 1152)
    k.e("v_and_b32 v3, 7, v0")
    k.e("v_lshlrev_b32 v3, 4, v3")
    GW = 64
    for s in range(9):
        k.vmop(f"buffer_load_dwordx4 {vr(GW+4*s)}, v3, s[20:23], 0 offen offset:{s*128}", ("gw",))
    k.e(f"s_lshl_b32 s46, s{S_RB}, 1")
    k.e(f"s_add_u32 s46, s46, s{S_FG}")
    k.e(f"s_sub_u32 s{S_RT}, s46, 6")
    k.e(f"s_lshl_b32 s46, s{S_RT}, 2")
    k.e(f"s_add_u32 s46, s46, s{S_WAVE}")
    k.e(f"s_mul_i32 s{S_XS}, s46, {32*1152}")
    k.e(f"s_add_u32 s{S_XS+1}, s{S_XS}, {16*1152}")
    k.e("s_lshl_b32 s48, s46, 7")
    k.e(f"s_add_u32 s48, s48, {G_OFF}")
    X = 100
    for p in range(4):
        for s in range(9):
            v = V_XL if p % 2 == 0 else V_XL2
            k.vmop(f"buffer_load_dwordx4 {vr(X+(p*9+s)*4)}, v{v}, s[8:11], s{S_XS+p//2} offen offset:{s*128}", ("gx", p))
    for p in range(4):
        k.e(f"v_mov_b32 v{4+p}, 0")
    for p in range(4):
        k.need(vm=("gx", p))
        for s in range(9):
            for d in range(4):
                k.e(f"v_dot2_f32_bf16 v{4+p}, v{X+(p*9+s)*4+d}, v{GW+4*s+d}, v{4+p}")
    k.e("s_nop 3")
    for m in (1, 2, 4):
        for p in range(4):
            k.lgop(f"ds_swizzle_b32 v{8+p}, v{4+p} offset:{(m << 10) | 0x1f}", ("sw",))
        k.wait_all(vm=False)
        for p in range(4):
            k.e(f"v_add_f32 v{4+p}, v{4+p}, v{8+p}")
    for p in range(4):
        k.e(f"v_mul_f32 v{4+p}, 0x{f2u(-LOG2E):08x}, v{4+p}")
    for p in range(4):
        k.e(f"v_exp_f32 v{4+p}, v{4+p}")
    k.e("s_nop 0")
    for p in range(4):
        k.e(f"v_add_f32 v{4+p}, 1.0, v{4+p}")
    for p in range(4):
        k.e(f"v_rcp_f32 v{4+p}, v{4+p}")
    k.e("v_lshrrev_b32 v2, 3, v0")
    k.e("v_lshlrev_b32 v2, 2, v2")
    for p in range(4):
        k.vmop(f"buffer_store_dword v{4+p}, v2, s[16:19], s48 offen offset:{p*32} sc0 sc1", ("gst",))
    k.wait_all()
    k.e("s_barrier")
    k.e(f"s_cmp_lg_u32 s{S_WAVE}, 0")
    k.e("s_cbranch_scc1 L_QEND")
    k.e(f"s_mul_i32 s46, s{S_RT}, 3")
    k.e("s_add_u32 s46, s46, 40")
    k.e("s_lshl_b32 s46, s46, 7")
    k.e(f"s_add_u32 s46, s46, {FLAG_OFF + 20}")
    k.e(f"v_mov_b32 v4, s{S_NONCE}")
    k.e("v_lshlrev_b32 v5, 7, v0")
    k.e("s_mov_b64 exec, 7")
    k.e("buffer_store_dword v4, v5, s[16:19], s46 offen sc0 sc1")
    k.e("s_mov_b64 exec, -1")
    k.e("s_branch L_QEND")


def gen(P):
    k = KB()
    k.stamps_on = P["stamps"]
    prologue(k, P)
    st0 = k.save()
    epi, epi_start, npairs, epilogue, emit_epi = phaseA_mlp(k, P)
    B = PhaseB(k, P, False)
    k.wait_all(vm=False)
    k.e("s_barrier")
    for i in sorted(epi_start):
        if i >= npairs:
            n_ = epi_start[i]
            epi.extend((n_, o) for o in epilogue(n_))
    emit_epi(100000)
    nonce_get(k, 60)
    k.e(f"s_lshl_b32 s{S_FL}, s{S_RB}, 2")
    k.e(f"s_add_u32 s{S_FL}, s{S_FL}, s{S_FQ}")
    k.e(f"s_lshl_b32 s{S_FL}, s{S_FL}, 7")
    k.e(f"s_add_u32 s{S_FL}, s{S_FL}, {FLAG_OFF}")
    k.e(f"s_lshl_b32 s46, s{S_I2}, 2")
    k.e(f"s_add_u32 s50, s46, s{S_FL}")
    B.setup()
    publish(k, 50, 2, ("st",))
    k.stamp()
    poll(k, S_FL, 6, B.V_T)
    k.e("s_barrier")
    k.stamp()
    B.main()
    B.epilogue()
    B.phaseC()
    k.stamp_flush()
    k.e("s_branch L_END")
    k.restore(st0)
    phaseA_qkv(k, P)
    k.e(f"s_add_u32 s{S_FL}, s{S_RB}, 32")
    k.e(f"s_lshl_b32 s{S_FL}, s{S_FL}, 7")
    k.e(f"s_add_u32 s{S_FL}, s{S_FL}, {FLAG_OFF}")
    k.e(f"s_lshl_b32 s46, s{S_FG}, 2")
    k.e(f"s_add_u32 s50, s46, s{S_FL}")
    k.wait_all(vm=False)
    publish(k, 50, 2, ("st",))
    k.stamp()
    k.e(f"s_cmp_lt_u32 s{S_FG}, 6")
    k.e("s_cbranch_scc1 L_QB")
    st1 = k.save()
    k.wait_all()
    gate_wg(k, P)
    k.restore(st1)
    k.label("L_QB")
    B2 = PhaseB(k, P, True)
    B2.setup()
    poll(k, S_FL, 8, B2.V_T)
    k.e("s_barrier")
    k.stamp()
    B2.main()
    B2.epilogue()
    k.label("L_QEND")
    k.wait_all()
    k.stamp_flush()
    k.label("L_END")
    k.e("s_endpgm")
    label = NAME + "_kernel"
    s = open("cdna_kernels/" + NAME + ".s.ref").read().split("; Override")[0]
    s += "; @launch grid=(256,1,1) block=(256,1,1) lds=163840\n"
    s += '.amdgcn_target "amdgcn-amd-amdhsa--gfx950"\n.text\n'
    s += f".globl {label}\n.p2align 8\n.type {label},@function\n{label}:\n"
    s += k.text()
    s += f"""
.section .rodata,"a"
.p2align 6
.amdhsa_kernel {label}
  .amdhsa_next_free_vgpr 512
  .amdhsa_next_free_sgpr 102
  .amdhsa_accum_offset 256
  .amdhsa_group_segment_fixed_size 0
  .amdhsa_kernarg_size 88
  .amdhsa_user_sgpr_count 2
  .amdhsa_user_sgpr_kernarg_segment_ptr 1
  .amdhsa_system_sgpr_workgroup_id_x 1
.end_amdhsa_kernel
"""
    return s


def main():
    ap = argparse.ArgumentParser()
    ap.add_argument("-o", default="cdna_kernels/" + NAME + ".s")
    ap.add_argument("--delta", type=int, default=4)
    ap.add_argument("--D", type=int, default=18)
    ap.add_argument("--R", type=int, default=32)
    ap.add_argument("--ra", type=int, default=2)
    ap.add_argument("--epg", type=int, default=3)
    ap.add_argument("--nx0", type=int, default=3)
    ap.add_argument("--xlead", type=int, default=2)
    ap.add_argument("--d0", type=int, default=10)
    ap.add_argument("--spread", type=int, default=1)
    ap.add_argument("--touch2", type=int, default=1)
    ap.add_argument("--b-ring", type=int, default=10)
    ap.add_argument("--b-dw", type=int, default=8)
    ap.add_argument("--b-db", type=int, default=8)
    ap.add_argument("--stamps", action="store_true")
    ap.add_argument("--exp", default="")
    ap.add_argument("--rot", type=int, default=1)
    ap.add_argument("--nx1", type=int, default=0)
    ap.add_argument("--d1", type=int, default=18)
    ap.add_argument("--xper", type=int, default=2)
    ap.add_argument("--vrate", type=float, default=8.0)
    ap.add_argument("--vcap", type=float, default=40.0)
    a = ap.parse_args()
    P = vars(a)
    s = gen(P)
    open(a.o, "w").write(s)
    print("wrote", a.o, len(s), "bytes")


if __name__ == "__main__":
    main()
```

```python
import sys, argparse, struct

NAME = "gated_mix__sliding_local_dilated__glu_gated_glu__prompt"

NKB = 324
G_OFF = 0x1500000
FLAG_OFF = 0x1510000
PART_OFF = 0x1600000
WS_BYTES = 268435456
DBG_OFF = 0x4000000
LOG2E = 1.4426950408889634
SPIN_MAX = 200000


def f2u(x):
    return struct.unpack("<I", struct.pack("<f", x))[0]


class KB:
    def __init__(self):
        self.lines = []
        self.vm = []
        self.vm_done = 0
        self.lg = []
        self.lg_done = 0
        self.n = 0
        self.stamps_on = False
        self.nstamp = 0

    def e(self, s):
        self.lines.append("    " + s)
        self.n += 1

    def c(self, s):
        self.lines.append("    ; " + s)

    def label(self, s):
        self.lines.append(s + ":")

    def vmop(self, s, tag):
        self.e(s)
        self.vm.append(tag)
        assert len(self.vm) - self.vm_done <= 63, "too many vm outstanding"

    def lgop(self, s, tag):
        self.e(s)
        self.lg.append(tag)
        assert len(self.lg) - self.lg_done <= 15, "too many lgkm outstanding"

    def vm_out(self):
        return len(self.vm) - self.vm_done

    def lg_out(self):
        return len(self.lg) - self.lg_done

    def _last(self, lst, tag):
        for i in range(len(lst) - 1, -1, -1):
            if lst[i] == tag:
                return i
        raise KeyError(tag)

    def need(self, vm=None, lg=None):
        parts = []
        if vm is not None:
            tags = vm if isinstance(vm, list) else [vm]
            i = max(self._last(self.vm, t) for t in tags)
            if i >= self.vm_done:
                n = len(self.vm) - 1 - i
                parts.append(f"vmcnt({n})")
                self.vm_done = len(self.vm) - n
        if lg is not None:
            tags = lg if isinstance(lg, list) else [lg]
            i = max(self._last(self.lg, t) for t in tags)
            if i >= self.lg_done:
                n = len(self.lg) - 1 - i
                parts.append(f"lgkmcnt({n})")
                self.lg_done = len(self.lg) - n
        if parts:
            self.e("s_waitcnt " + " ".join(parts))

    def wait_all(self, vm=True, lg=True):
        p = []
        if vm:
            p.append("vmcnt(0)")
            self.vm_done = len(self.vm)
        if lg:
            p.append("lgkmcnt(0)")
            self.lg_done = len(self.lg)
        self.e("s_waitcnt " + " ".join(p))

    def save(self):
        return (list(self.vm), self.vm_done, list(self.lg), self.lg_done, self.nstamp)

    def restore(self, st):
        self.vm, self.vm_done, self.lg, self.lg_done, self.nstamp = list(st[0]), st[1], list(st[2]), st[3], st[4]

    def stamp(self):
        if not self.stamps_on:
            return
        i = self.nstamp
        self.nstamp += 1
        assert i < 15
        self.e(f"s_memrealtime s[{70+2*i}:{71+2*i}]")
        self.e(f"s_memtime s[100:101]")
        self.e("s_waitcnt lgkmcnt(0)")
        self.e(f"s_mov_b32 s{71+2*i}, s100")
        self.e("s_waitcnt lgkmcnt(0)")
        self.lg_done = len(self.lg)

    def stamp_flush(self):
        if not self.stamps_on:
            return
        self.e("s_lshl_b32 s100, s2, 2")
        self.e(f"s_add_u32 s100, s100, s{S_WAVE}")
        self.e("s_lshl_b32 s100, s100, 7")
        self.e(f"s_add_u32 s100, s100, {DBG_OFF}")
        self.e("v_mov_b32 v1, 0")
        for i in range(self.nstamp):
            self.e(f"v_mov_b32 v2, s{70+2*i}")
            self.e(f"buffer_store_dword v2, v1, s[16:19], s100 offen offset:{4*i}")
            self.e("s_nop 1")
            self.e(f"v_mov_b32 v2, s{71+2*i}")
            self.e(f"buffer_store_dword v2, v1, s[16:19], s100 offen offset:{64+4*i}")
            self.e("s_nop 1")
        self.e(f"v_mov_b32 v2, {self.nstamp}")
        self.e(f"buffer_store_dword v2, v1, s[16:19], s100 offen offset:60")
        self.e("s_getreg_b32 s101, hwreg(HW_REG_HW_ID)")
        self.e("s_nop 1")
        self.e("v_mov_b32 v3, s101")
        self.e(f"buffer_store_dword v3, v1, s[16:19], s100 offen offset:124")
        self.e("s_getreg_b32 s101, hwreg(HW_REG_XCC_ID)")
        self.e("s_nop 1")
        self.e("v_mov_b32 v4, s101")
        self.e(f"buffer_store_dword v4, v1, s[16:19], s100 offen offset:120")
        self.e("s_waitcnt vmcnt(0)")

    def text(self):
        return "\n".join(self.lines) + "\n"


class Paced:
    def __init__(self, rate, cap, k=None):
        self.q, self.credit, self.rate, self.cap, self.k = [], 0, rate, cap, k

    def add(self, th, cost):
        self.q.append((th, cost))

    def gap(self, scale=1.0):
        self.credit = min(self.credit + self.rate * scale, self.cap)
        while self.q and self.q[0][1] <= self.credit and self.k.vm_out() < 58:
            th, c = self.q.pop(0)
            self.credit -= c
            th()

    def force_until(self, pred):
        while not pred():
            th, c = self.q.pop(0)
            th()

    def drain(self):
        while self.q:
            self.q.pop(0)[0]()


def srd(k, d, lo, hi, nbytes):
    k.e(f"s_mov_b32 s{d}, s{lo}")
    k.e(f"s_mov_b32 s{d+1}, s{hi}")
    k.e(f"s_mov_b32 s{d+2}, {nbytes}")
    k.e(f"s_mov_b32 s{d+3}, 0x00020000")


def vr(b, n=4):
    return f"v[{b}:{b+n-1}]"


def ar(b, n=4):
    return f"a[{b}:{b+n-1}]"


S_WAVE, S_RB, S_FG = 32, 33, 34
S_WBASE, S_STBASE, S_M0W, S_T0, S_T1, S_T2 = 36, 37, 39, 40, 41, 42
S_FQ, S_I3, S_I2, S_IDX = 43, 44, 45, 51
S_XS = 64
S_NONCE = 68
S_XW = 38
XB = 131072

V_XL, V_XL2 = 36, 37
V_XWE, V_XWO = 38, 31
V_XR = 32
V_L16 = 39


S_PX, S_PW = 3, 35


def advance(k, sc, targets):
    k.e(f"s_add_u32 s{sc}, s{sc}, 1")
    k.e(f"s_cmp_eq_u32 s{sc}, 9")
    k.e(f"s_cselect_b32 s{sc}, 0, s{sc}")
    steps = sorted(set(st for _, st in targets))
    for st in steps:
        k.e(f"s_mov_b32 s{S_T0}, {st}")
        k.e(f"s_cselect_b32 s{S_T0}, {(-8*st) & 0xFFFFFFFF}, s{S_T0}")
        for (r, st2) in targets:
            if st2 == st:
                k.e(f"s_lshl1_add_u32 s{r}, 0, s{r}") if False else None
        if len(steps) == 1:
            for (r, st2) in targets:
                k.e(f"s_add_u32 s{r}, s{r}, s{S_T0}")
        else:
            k.e(f"s_mov_b32 s{S_T0 + 1 + steps.index(st)}, s{S_T0}")
    if len(steps) > 1:
        for (r, st2) in targets:
            k.e(f"s_add_u32 s{r}, s{r}, s{S_T0 + 1 + steps.index(st2)}")


def x_load(k, s, p, dst):
    v = V_XL if p % 2 == 0 else V_XL2
    if p == 0 and s > 0:
        advance(k, S_PX, [(S_XS + i, 128) for i in range(4)])
    k.vmop(f"buffer_load_dwordx4 {dst}, v{v}, s[8:11], s{S_XS + p//2} offen", ("x", s))


def x_write(k, s, p, src):
    v = V_XWE if p % 2 == 0 else V_XWO
    k.lgop(f"ds_write_b128 v{v}, {src} offset:{p*1024}", ("xw", s))


def x_read(k, s, ksl, rt, dst):
    k.lgop(f"ds_read_b128 {dst}, v{V_XR+ksl} offset:{rt*4096}", ("xf", 4 * s + ksl, rt))


def prologue(k, P):
    k.e("s_cmp_ge_u32 s2, 256")
    k.e("s_cbranch_scc1 L_END")
    k.stamp()
    k.e("s_load_dwordx4 s[4:7], s[0:1], 0")
    k.e("s_load_dwordx4 s[24:27], s[0:1], 32")
    k.e("s_load_dwordx4 s[52:55], s[0:1], 48")
    k.e("s_load_dwordx4 s[28:31], s[0:1], 64")
    k.e("s_load_dwordx2 s[58:59], s[0:1], 80")
    k.e("s_load_dwordx2 s[56:57], s[0:1], 16")
    k.e("v_lshrrev_b32 v1, 6, v0")
    k.e("v_and_b32 v0, 63, v0")
    k.e("v_lshrrev_b32 v2, 3, v0")
    k.e(f"v_readfirstlane_b32 s{S_WAVE}, v1")
    k.e("v_and_b32 v3, 7, v0")
    k.e("v_mul_u32_u24 v7, 1152, v2")
    k.e(f"v_lshl_add_u32 v{V_XL}, v3, 4, v7")
    k.e(f"v_add_u32 v{V_XL2}, {8*1152}, v{V_XL}")
    k.e("s_and_b32 s50, s2, 7")
    k.e(f"s_lshr_b32 s{S_IDX}, s2, 3")
    if P["vidx"]:
        k.e(f"s_lshr_b32 s46, s{S_IDX}, 2")
        k.e(f"s_and_b32 s47, s{S_IDX}, 3")
        k.e("s_mul_i32 s48, s46, 3")
        k.e("s_add_u32 s48, s48, s47")
        k.e("s_add_u32 s46, s46, 24")
        k.e("s_cmp_eq_u32 s47, 3")
        k.e(f"s_cselect_b32 s{S_IDX}, s46, s48")
    k.e("s_and_b32 s46, s50, 1")
    k.e(f"s_lshr_b32 s{S_FQ}, s50, 1")
    k.e(f"s_lshl_b32 s{S_RB}, s46, 2")
    k.e(f"s_and_b32 s{S_I3}, s{S_IDX}, 3")
    k.e(f"s_add_u32 s{S_RB}, s{S_RB}, s{S_I3}")
    k.e(f"s_lshr_b32 s{S_I2}, s{S_IDX}, 2")
    k.e(f"s_lshl_b32 s47, s{S_RB}, 2")
    k.e(f"s_add_u32 s47, s47, s{S_WAVE}")
    k.e(f"s_mul_i32 s{S_XS}, s47, {64*1152}")
    k.e(f"s_lshl_b32 s{S_PX}, s{S_I3}, 1")
    k.e(f"s_add_u32 s{S_PX}, s{S_PX}, s{S_I2}")
    if not P["rot"]:
        k.e(f"s_mov_b32 s{S_PX}, 0")
    k.e(f"s_sub_u32 s47, s{S_PX}, 9")
    k.e(f"s_cmp_ge_u32 s{S_PX}, 9")
    k.e(f"s_cselect_b32 s{S_PX}, s47, s{S_PX}")
    k.e(f"s_mov_b32 s{S_PW}, s{S_PX}")
    k.e(f"s_lshl_b32 s47, s{S_PX}, 7")
    k.e(f"s_add_u32 s{S_XS}, s{S_XS}, s47")
    for i in range(1, 4):
        k.e(f"s_add_u32 s{S_XS+i}, s{S_XS}, {i*16*1152}")
    k.e(f"s_lshl_b32 s{S_XW}, s{S_WAVE}, 13")
    k.e(f"s_add_u32 s{S_XW}, s{S_XW}, {XB}")
    k.e("s_waitcnt lgkmcnt(0)")
    srd(k, 8, 4, 5, 2048 * 1152)
    k.e(f"s_cmp_ge_u32 s{S_IDX}, 24")
    k.e("s_cbranch_scc1 L_QKV")


def common2(k):
    srd(k, 16, 58, 59, WS_BYTES)
    k.e("v_lshrrev_b32 v2, 3, v0")
    k.e("v_and_b32 v3, 7, v0")
    k.e("v_lshrrev_b32 v4, 1, v2")
    k.e("v_xor_b32 v5, v3, v4")
    k.e("v_xor_b32 v6, 4, v5")
    k.e("v_lshlrev_b32 v7, 7, v2")
    k.e(f"v_add_u32 v7, s{S_XW}, v7")
    k.e(f"v_lshl_add_u32 v{V_XWE}, v5, 4, v7")
    k.e(f"v_lshl_add_u32 v{V_XWO}, v6, 4, v7")
    k.e("v_and_b32 v2, 31, v0")
    k.e("v_lshrrev_b32 v3, 5, v0")
    k.e("v_bfe_u32 v4, v2, 1, 3")
    k.e("v_lshlrev_b32 v5, 7, v2")
    k.e(f"v_add_u32 v5, s{S_XW}, v5")
    for ksl in range(4):
        k.e(f"v_add_u32 v6, {2*ksl}, v3")
        k.e("v_xor_b32 v6, v6, v4")
        k.e(f"v_lshl_add_u32 v{V_XR+ksl}, v6, 4, v5")
    k.e(f"v_lshlrev_b32 v{V_L16}, 4, v0")


def nonce_create(k):
    srd(k, 20, 30, 31, 256)
    k.e(f"s_or_b32 s46, s2, s{S_WAVE}")
    k.e("s_cmp_lg_u32 s46, 0")
    k.e("s_cbranch_scc1 L_NONCE_SKIP")
    k.e("s_memrealtime s[46:47]")
    k.e("s_waitcnt lgkmcnt(0)")
    k.e("s_or_b32 s46, s46, 1")
    k.e("v_mov_b32 v4, s46")
    k.e("v_mov_b32 v5, 0")
    k.e("s_mov_b64 exec, 1")
    k.e("buffer_store_dword v4, v5, s[20:23], 0 offen sc0 sc1")
    k.e("s_mov_b64 exec, -1")
    k.label("L_NONCE_SKIP")


def nonce_issue(k, vbase):
    srd(k, 20, 30, 31, 256)
    k.e(f"v_mov_b32 v{vbase+1}, 0")
    k.vmop(f"buffer_load_dword v{vbase}, v{vbase+1}, s[20:23], 0 offen sc0 sc1", ("nonce",))


def nonce_get(k, vbase):
    lbl = f"L_NG{k.n}"
    k.need(vm=("nonce",))
    k.e(f"s_mov_b32 s69, {SPIN_MAX}")
    k.label(lbl)
    k.e(f"v_readfirstlane_b32 s{S_NONCE}, v{vbase}")
    k.e("s_nop 3")
    k.e(f"s_cmp_lg_u32 s{S_NONCE}, 0")
    k.e(f"s_cbranch_scc1 {lbl}_D")
    k.e("s_sub_u32 s69, s69, 1")
    k.e("s_cmp_eq_u32 s69, 0")
    k.e(f"s_cbranch_scc1 {lbl}_D")
    k.e("s_sleep 4")
    k.e(f"buffer_load_dword v{vbase}, v{vbase+1}, s[20:23], 0 offen sc0 sc1")
    k.e("s_waitcnt vmcnt(0)")
    k.e(f"s_branch {lbl}")
    k.label(lbl + "_D")


def publish(k, s_flag_off, vt, tag):
    lbl = f"L_PUB{k.n}"
    k.need(vm=tag)
    k.e("s_barrier")
    k.e(f"s_cmp_lg_u32 s{S_WAVE}, 0")
    k.e(f"s_cbranch_scc1 {lbl}")
    k.e(f"v_mov_b32 v{vt}, s{S_NONCE}")
    k.e(f"v_mov_b32 v{vt+1}, 0")
    k.e("s_mov_b64 exec, 1")
    k.e(f"buffer_store_dword v{vt}, v{vt+1}, s[16:19], s{s_flag_off} offen sc0 sc1")
    k.e("s_mov_b64 exec, -1")
    k.label(lbl)


def poll(k, s_line_off, nflags, vt):
    lbl = f"L_POLL{k.n}"
    k.e(f"v_lshlrev_b32 v{vt}, 2, v0")
    k.e(f"s_mov_b32 s69, {SPIN_MAX}")
    k.e(f"s_mov_b64 exec, {(1 << nflags) - 1}")
    k.label(lbl)
    k.e(f"buffer_load_dword v{vt+1}, v{vt}, s[16:19], s{s_line_off} offen sc0 sc1")
    k.e("s_waitcnt vmcnt(0)")
    k.e(f"v_cmp_ne_u32 vcc, s{S_NONCE}, v{vt+1}")
    k.e("s_sub_u32 s69, s69, 1")
    k.e("s_nop 4")
    k.e(f"s_cbranch_vccz {lbl}_D")
    k.e("s_cmp_eq_u32 s69, 0")
    k.e(f"s_cbranch_scc1 {lbl}_D")
    k.e("s_sleep 2")
    k.e(f"s_branch {lbl}")
    k.label(lbl + "_D")
    k.e("s_mov_b64 exec, -1")
    k.vm_done = len(k.vm)


def flag_store(k, s_off, imm, vt):
    k.e(f"v_mov_b32 v{vt}, s{S_NONCE}")
    k.e(f"v_mov_b32 v{vt+1}, 0")
    k.e("s_mov_b64 exec, 1")
    k.vmop(f"buffer_store_dword v{vt}, v{vt+1}, s[16:19], s{s_off} offen offset:{imm} sc0 sc1", ("flag",))
    k.e("s_mov_b64 exec, -1")


def flag_load(k, s_line_off, imm, vt, tag):
    k.e(f"v_and_b32 v{vt}, 15, v0")
    k.e(f"v_lshlrev_b32 v{vt}, 2, v{vt}")
    k.vmop(f"buffer_load_dword v{vt+1}, v{vt}, s[16:19], s{s_line_off} offen offset:{imm} sc0 sc1", tag)


def flag_check(k, s_line_off, imm, nflags, vt, tag):
    lbl = f"L_FC{k.n}"
    k.need(vm=tag)
    k.e(f"s_mov_b32 s69, {SPIN_MAX}")
    k.e(f"s_mov_b64 exec, {(1 << nflags) - 1}")
    k.label(lbl)
    k.e(f"v_cmp_ne_u32 vcc, s{S_NONCE}, v{vt+1}")
    k.e("s_sub_u32 s69, s69, 1")
    k.e("s_nop 4")
    k.e(f"s_cbranch_vccz {lbl}_D")
    k.e("s_cmp_eq_u32 s69, 0")
    k.e(f"s_cbranch_scc1 {lbl}_D")
    k.e("s_sleep 2")
    k.e(f"buffer_load_dword v{vt+1}, v{vt}, s[16:19], s{s_line_off} offen offset:{imm} sc0 sc1")
    k.e("s_waitcnt vmcnt(0)")
    k.e(f"s_branch {lbl}")
    k.label(lbl + "_D")
    k.e("s_mov_b64 exec, -1")
    k.e("s_nop 3")


def phaseA_mlp(k, P, B):
    DELTA, D, R, NB, RA = P["delta"], P["D"], P["R"], 4, P["ra"]
    assert R * 4096 <= XB
    BI = P["bi"]
    assert R >= D + 3 * DELTA + BI + 1
    V_AF = 8
    V_WA, V_WB2 = 24, 40
    V_WD = 28
    V_T = 44
    V_XF = 64
    V_ACC = 96

    def xf(ks, rt):
        if ks < 32:
            return ar((ks * 2 + rt) * 4)
        return vr(V_XF + ((ks - 32) * 2 + rt) * 4)

    def xq(s, p):
        return xf(4 * s + p // 2, p % 2)

    def acc(slot, rt):
        return V_ACC + (slot * 2 + rt) * 16

    k.c("---------------- phase A: MLP path ----------------")
    nonce_create(k)
    for p in range(8):
        x_load(k, 0, p, xq(0, p))
    k.e(f"s_mul_i32 s{S_FG}, s{S_FQ}, 6")
    k.e(f"s_add_u32 s{S_FG}, s{S_FG}, s{S_I2}")
    k.e(f"s_cmp_ge_u32 s{S_WAVE}, 2")
    k.e("s_cselect_b32 s12, s26, s24")
    k.e("s_cselect_b32 s13, s27, s25")
    k.e(f"s_mov_b32 s14, {576*9216}")
    k.e("s_mov_b32 s15, 0x00020000")
    k.e("v_lshrrev_b32 v2, 3, v0")
    k.e("v_and_b32 v3, 7, v0")
    k.e("v_bfe_u32 v4, v2, 1, 1")
    k.e(f"s_and_b32 s46, s{S_WAVE}, 2")
    k.e("v_or_b32 v4, s46, v4")
    k.e("v_lshlrev_b32 v4, 1, v4")
    k.e("v_xor_b32 v3, v3, v4")
    k.e("s_mov_b32 s47, 9216")
    k.e("v_mul_lo_u32 v2, v2, s47")
    k.e(f"v_lshl_add_u32 v{V_WD}, v3, 4, v2")
    k.e(f"s_and_b32 s46, s{S_WAVE}, 1")
    k.e(f"s_mul_i32 s{S_WBASE}, s46, {8*9216}")
    k.e(f"s_lshl_b32 s47, s{S_FG}, 7")
    k.e(f"s_add_u32 s{S_WBASE}, s{S_WBASE}, s47")
    k.e(f"s_mul_i32 s47, s{S_PW}, {64*9216}")
    k.e(f"s_add_u32 s{S_WBASE}, s{S_WBASE}, s47")
    k.e(f"s_lshl_b32 s{S_M0W}, s{S_WAVE}, 10")

    def dma_w(u):
        c, ks = divmod(u, 36)
        slot = u % R
        def f():
            if u > 0 and u % 4 == 0:
                advance(k, S_PW, [(S_WBASE, 64 * 9216)])
            k.e(f"s_add_u32 m0, s{S_M0W}, {slot*4096}")
            k.e(f"s_add_u32 s{S_T1}, s{S_WBASE}, {(ks%4)*16*9216 + c*24*128}")
            k.vmop(f"buffer_load_dwordx4 v{V_WD}, s[12:15], s{S_T1} offen lds", ("w", u))
        return f

    NX0 = P["nx0"]
    D0 = min(P["d0"], D)
    wi = 0
    for s in range(1, NX0 + 1):
        for u in range(wi, min(D0, wi + 4)):
            dma_w(u)()
        wi = min(D0, wi + 4)
        if s < NX0:
            for p in range(8):
                x_load(k, s, p, xq(s, p))
    for u in range(wi, D0):
        dma_w(u)()
    next_w = D0
    common2(k)
    k.e("v_lshrrev_b32 v2, 4, v0")
    k.e("v_bfe_u32 v3, v0, 2, 2")
    k.e("v_and_b32 v4, 3, v0")
    k.e("v_lshrrev_b32 v5, 1, v4")
    k.e("v_lshrrev_b32 v6, 1, v2")
    k.e("v_lshl_add_u32 v6, v6, 3, v3")
    k.e("v_lshlrev_b32 v6, 7, v6")
    k.e("v_lshl_add_u32 v6, v5, 11, v6")
    k.e("v_and_b32 v7, 1, v4")
    k.e("v_lshl_add_u32 v6, v7, 4, v6")
    k.e("v_and_b32 v7, 1, v2")
    k.e("v_lshl_add_u32 v6, v7, 3, v6")
    k.e("v_lshrrev_b32 v7, 1, v3")
    k.e("v_lshl_or_b32 v7, v5, 1, v7")
    for j in range(4):
        k.e(f"v_xor_b32 v5, {j}, v7")
        k.e(f"v_lshl_add_u32 v{V_WA+j}, v5, 5, v6")
        k.e(f"v_add_u32 v{V_WB2+j}, 0x10000, v{V_WA+j}")
    k.e(f"s_lshl_b32 s46, s{S_RB}, 3")
    k.e(f"s_lshl_b32 s47, s{S_WAVE}, 1")
    k.e("s_add_u32 s46, s46, s47")
    k.e(f"s_mul_i32 s46, s46, {NKB}")
    k.e(f"s_mul_i32 s47, s{S_FQ}, 72")
    k.e("s_add_u32 s46, s46, s47")
    k.e(f"s_lshl_b32 s47, s{S_I2}, 2")
    k.e("s_add_u32 s46, s46, s47")
    k.e("s_add_u32 s46, s46, 36")
    k.e(f"s_lshl_b32 s{S_STBASE}, s46, 10")

    def aread(i, j, u, half):
        slot = u % R
        off = slot * 4096 + half * 512
        base = V_WA + j
        if off >= 65536:
            off -= 65536
            base = V_WB2 + j
        d = V_AF + (i % NB) * 4 + half * 2
        k.lgop(f"ds_read_b64_tr_b16 {vr(d,2)}, v{base} offset:{off}", ("af", i, half))

    def epilogue(n):
        c, j = divmod(n, 4)
        slot = n % 5
        ops = []
        for rt in range(2):
            a = acc(slot, rt)
            tb = V_T
            pk = V_T + 8 + rt * 4
            gi = [a + 0, a + 1, a + 2, a + 3, a + 8, a + 9, a + 10, a + 11]
            ui = [a + 4, a + 5, a + 6, a + 7, a + 12, a + 13, a + 14, a + 15]
            for h in range(8):
                ops.append(f"v_mul_f32 v{tb+h}, 0x{f2u(-LOG2E):08x}, v{gi[h]}")
            for h in range(8):
                ops.append(f"v_exp_f32 v{tb+h}, v{tb+h}")
            for h in range(8):
                ops.append(f"v_add_f32 v{tb+h}, 1.0, v{tb+h}")
            for h in range(8):
                ops.append(f"v_rcp_f32 v{tb+h}, v{tb+h}")
            for h in range(8):
                ops.append(f"v_mul_f32 v{tb+h}, v{tb+h}, v{ui[h]}")
            for h in range(4):
                ops.append(f"v_cvt_pk_bf16_f32 v{pk+h}, v{tb+2*h}, v{tb+2*h+1}")
            off = (rt * NKB + 24 * c + j) * 1024
            ops.append(("st", f"s_add_u32 s{S_T2}, s{S_STBASE}, {off}",
                        f"buffer_store_dwordx4 {vr(pk)}, v{V_L16}, s[16:19], s{S_T2} offen sc0 sc1"))
        return ops

    NU = 108
    T_F0, T_F1 = 60, 96
    T_TOUCH = P["ttouch"]
    sched = {}
    for j in range(4):
        for u in range(NU):
            if u < 36 and P["spread"]:
                t = -(-u * (36 + j * DELTA) // 36)
            else:
                t = u + j * DELTA
            sched.setdefault(t, []).append((t, j, u))
    pairs = []
    for t in range(NU + 3 * DELTA):
        pairs.extend(sched[t])
    first_of_step, npairs_in_step = {}, {}
    for i, (t, j, u) in enumerate(pairs):
        first_of_step.setdefault(t, i)
        npairs_in_step[t] = npairs_in_step.get(t, 0) + 1

    fill = []
    vq = Paced(P["vrate"], P["vcap"], k)
    epi = []
    visible = -1
    issued_reads = 0
    last_mfma_n = {}

    def x_convert(s):
        th = []
        def wx():
            vq.force_until(lambda: k.vm.count(("x", s)) == 8)
            k.need(vm=("x", s))
        th.append(wx)
        for p in range(8):
            th.append(lambda p=p: x_write(k, s, p, xq(s, p)))
        for ksl in range(4):
            for rt in range(2):
                th.append(lambda ksl=ksl, rt=rt: x_read(k, s, ksl, rt, xf(4 * s + ksl, rt)))
        return th

    def run_fill(th):
        if k.lg_out() >= 13:
            k.need(lg=k.lg[k.lg_done + 4])
        th()

    xc0 = x_convert(0)
    run_fill(xc0[0])
    next_x = NX0
    for s_ in range(NX0, NX0 + P["nx1"]):
        for p in range(8):
            x_load(k, s_, p, xq(s_, p))
        next_x += 1
        for u in range(next_w, min(next_w + 4, D, P["d1"])):
            dma_w(u)()
        next_w = max(next_w, min(next_w + 4, D, P["d1"]))
    for th in xc0[1:]:
        run_fill(th)
    k.need(vm=("w", 0))
    k.e("s_barrier")
    visible = 0

    def emit_epi(nmax, upto_inst=None):
        cnt = 0
        while epi and (cnt < nmax if upto_inst is None else epi[0][0] <= upto_inst):
            n, o = epi.pop(0)
            gap = k.n - last_mfma_n[n]
            if gap < 13:
                k.e(f"s_nop {min(15, 13 - gap)}")
            if isinstance(o, tuple):
                k.e(o[1])
                k.vmop(o[2], ("st", n))
                cnt += 2
            else:
                k.e(o)
                cnt += 1

    def issue_reads_upto(i_target):
        nonlocal issued_reads
        while issued_reads <= i_target and issued_reads < len(pairs):
            t, j, u = pairs[issued_reads]
            if u > visible:
                break
            if k.lg_out() >= 13:
                k.need(lg=k.lg[k.lg_done + 4])
            aread(issued_reads, j, u, 0)
            aread(issued_reads, j, u, 1)
            issued_reads += 1

    def ensure(lst, tag):
        while tag not in lst:
            run_fill(fill.pop(0))

    epi_start = {}
    for i, (t, j, u) in enumerate(pairs):
        if u % 36 == 35:
            epi_start[i + 3] = (u // 36) * 4 + j

    post_bar_q = []

    def do_barrier(t, upto):
        nonlocal visible
        if upto is None:
            vq.force_until(lambda: k.vm.count(("bw", B.BI)) == 3)
            k.need(vm=("bw", B.BI))
            k.e("s_barrier")
            return
        vq.force_until(lambda: ("w", upto) in k.vm)
        k.need(vm=("w", upto))
        if t in (T_F0, T_F1):
            n_last = 3 if t == T_F0 else 7
            assert k.vm.count(("st", n_last)) == 2
            k.need(vm=("st", n_last))
        k.e("s_barrier")
        visible = upto
        if t in (T_F0, T_F1):
            flag_store(k, 50, 64 if t == T_F0 else 32, 60)

    for i, (t, j, u) in enumerate(pairs):
        if first_of_step[t] == i:
            if t in (0, 12, 36):
                k.stamp()
            pending_bar = None
            bi = BI if t >= P["bi_from"] else 1
            if t % bi == 0 and t + 1 < NU + bi:
                pending_bar = (t, min(t + bi, NU - 1))
            if t == 116:
                pending_bar = (t, None)
            if pending_bar and (visible < t or not P["bar_late"]):
                do_barrier(*pending_bar)
                pending_bar = None
            lead = D if t >= 36 else min(D, P["dfirst"])
            for _ in range(2):
                if next_w <= t + lead and next_w < NU:
                    vq.add(dma_w(next_w), 19)
                    next_w += 1
            if (t + P["xlead"]) % 4 == 0 and 1 <= (t + P["xlead"]) // 4 <= 8:
                s = (t + P["xlead"]) // 4
                assert next_x > s, (t, s, next_x)
                fill.extend(x_convert(s))
            if next_x <= 8:
                XP = P["xper"]
                nst = 8 // XP
                for p in range(XP * (t % nst), XP * (t % nst) + XP):
                    vq.add(lambda s=next_x, p=p: x_load(k, s, p, xq(s, p)), 19)
                if t % nst == nst - 1:
                    next_x += 1
            if t == 38:
                vq.add(lambda: nonce_issue(k, 60), 10)
            if t == T_TOUCH - 4:
                fill.extend(B.setup_thunks(2))
            if t == T_F0 - 3:
                fill.append(lambda: nonce_get(k, 60))
                def fl():
                    k.e(f"s_lshl_b32 s48, s{S_RB}, 2")
                    k.e(f"s_add_u32 s48, s48, s{S_FQ}")
                    k.e("s_lshl_b32 s48, s48, 7")
                    k.e(f"s_add_u32 s48, s48, {FLAG_OFF}")
                    k.e(f"s_lshl_b32 s46, s{S_I2}, 2")
                    k.e("s_add_u32 s50, s46, s48")
                fill.append(fl)
            def up(x):
                return -(-x // BI) * BI + 1
            bw_sched = {}
            for st_, tt in ((0, 88), (1, 88), (2, 92), (3, 95), (4, 98), (5, 101), (6, 104)):
                bw_sched.setdefault(up(tt), []).append(st_)
            for st in bw_sched.get(t, []):
                if st >= B.DW:
                    continue
                for ii in range(3):
                    vq.add(lambda st=st, ii=ii: B.dma_w(st, ii), 19)
            if t == 90:
                vq.add(lambda: flag_load(k, 48, 64, 62, ("fl0",)), 10)
            if t == P["tb0"]:
                vq.force_until(lambda: ("fl0",) in k.vm)
                flag_check(k, 48, 64, 6, 62, ("fl0",))
                for st in range(B.DB):
                    vq.add(lambda st=st: B.load_b(st, 0), 19)
                    vq.add(lambda st=st: B.load_b(st, 1), 19)
            if t == T_TOUCH:
                def touch2():
                    k.e("v_mul_u32_u24 v2, 7282, v0")
                    k.e("v_lshrrev_b32 v2, 16, v2")
                    k.e("v_mul_u32_u24 v3, 9, v2")
                    k.e("v_sub_u32 v3, v0, v3")
                    k.e("v_min_u32 v2, 3, v2")
                    k.e("v_mul_u32_u24 v2, 1152, v2")
                    k.e("v_lshl_add_u32 v2, v3, 7, v2")
                    k.e(f"s_lshl_b32 s46, s{S_IDX}, 2")
                    k.e(f"s_add_u32 s46, s46, s{S_WAVE}")
                    k.e(f"s_mul_i32 s47, s{S_FQ}, 96")
                    k.e("s_add_u32 s46, s46, s47")
                    k.e(f"s_mul_i32 s46, s46, {4*1152}")
                    for c in range(3):
                        k.vmop(f"buffer_load_dword v{4+c}, v2, s[60:63], s46 offen", ("touch",))
                        if c < 2:
                            k.e(f"s_add_u32 s46, s46, {1536*1152}")
                assert not fill
                if P["touch2"]:
                    vq.add(touch2, 40)
            gaps_left = 2 * npairs_in_step[t]
        if i in epi_start:
            n_ = epi_start[i]
            epi.extend((n_, o) for o in epilogue(n_))
        c, ks = divmod(u, 36)
        n = c * 4 + j
        slot = n % 5
        if ks == 0 and n >= 5:
            assert all(v != n - 5 or key <= i for key, v in epi_start.items())
            emit_epi(0, upto_inst=n - 5)
        af = vr(V_AF + (i % NB) * 4)
        issue_reads_upto(i)
        assert issued_reads > i
        needs_lg = [("af", i, 1)]
        if c == 0 and j == 0:
            ensure(k.lg, ("xf", ks, 1))
            needs_lg += [("xf", ks, 0), ("xf", ks, 1)]
        k.need(lg=needs_lg)
        for rt in range(2):
            a = acc(slot, rt)
            cin = "0" if ks == 0 else vr(a, 16)
            k.e(f"v_mfma_f32_32x32x16_bf16 {vr(a,16)}, {af}, {xf(ks,rt)}, {cin}")
            last_mfma_n[n] = k.n
            if rt == 0 and pending_bar:
                do_barrier(*pending_bar)
                pending_bar = None
            if rt == 0:
                issue_reads_upto(i + RA)
            nf = -(-len(fill) // gaps_left)
            gaps_left -= 1
            cnt = 0
            while fill and cnt < nf:
                if k.lg_out() >= 10:
                    break
                fill.pop(0)()
                cnt += 1
            vq.gap()
            emit_epi(P["epg"])
    while fill:
        run_fill(fill.pop(0))
    k.stamp()
    for i in sorted(epi_start):
        if i >= len(pairs):
            n_ = epi_start[i]
            epi.extend((n_, o) for o in epilogue(n_))
    emit_epi(0, upto_inst=9)
    F2_ST = P["f2st"]

    def pre_bar(st):
        if st == F2_ST:
            emit_epi(100000)
            k.need(vm=("st", 11))

    def post_bar(st):
        if st == F2_ST:
            flag_store(k, 50, 0, 60)
            k.stamp()
        if st == 12 - B.DB - 2:
            vq.add(lambda: flag_load(k, 48, 32, 2, ("fl1",)), 10)
        if st == 12 - B.DB:
            vq.force_until(lambda: ("fl1",) in k.vm)
            flag_check(k, 48, 32, 6, 2, ("fl1",))
        if st == 24 - B.DB - 2:
            vq.add(lambda: flag_load(k, 48, 0, 2, ("fl2",)), 10)
        if st == 24 - B.DB:
            vq.force_until(lambda: ("fl2",) in k.vm)
            flag_check(k, 48, 0, 6, 2, ("fl2",))
            k.stamp()

    B.main(B.BI, vq=vq, gap_cb=lambda: emit_epi(P["epg"]), pre_bar=pre_bar, post_bar=post_bar)


def phaseA_qkv(k, P):
    k.label("L_QKV")
    k.c("---------------- phase A: QKV + attention path ----------------")
    NST = 4
    WST = 28672
    HB = NST * WST
    GB = HB + NST * 2048
    assert GB + 2048 <= XB
    PITCH = 448
    V_WD = 40
    V_TA = 47
    V_HA = 54
    V_HB = 57
    V_GW = 59
    V_HW = 60
    V_HV = 63
    V_GA = 64
    V_AF = 68
    V_TA2 = 84
    V_HA2 = 91
    V_XF = 96
    V_GF = 224
    V_HAF = 232
    V_HBF = 244
    NXS = 4

    def xfr(s, ksl, rt):
        return V_XF + ((s % NXS) * 8 + ksl * 2 + rt) * 4

    def xq(s, p):
        return vr(V_XF + ((s % NXS) * 8 + p) * 4)

    for p in range(8):
        x_load(k, 0, p, xq(0, p))
    k.e(f"s_lshl_b32 s{S_FG}, s{S_FQ}, 1")
    k.e(f"s_add_u32 s{S_FG}, s{S_FG}, s{S_I2}")
    k.e(f"s_sub_u32 s{S_FG}, s{S_FG}, 6")
    srd(k, 12, 6, 7, 576 * 3456)
    k.e(f"s_mul_i32 s46, s{S_WAVE}, {7*64}")
    k.e(f"s_mul_i32 s47, s{S_FG}, 144")
    k.e("s_mov_b32 s48, 3456")
    k.e(f"s_mul_i32 s{S_M0W}, s{S_WAVE}, {7*1024}")
    k.e(f"s_mul_i32 s{S_WBASE}, s{S_PW}, {64*3456}")
    k.e(f"s_lshl_b32 s{S_STBASE}, s{S_PW}, 7")

    def dma_w(s, ii):
        st = s % NST
        def f():
            if ii == 0 and s > 0:
                advance(k, S_PW, [(S_WBASE, 64 * 3456), (S_STBASE, 128)])
            k.e(f"s_add_u32 m0, s{S_M0W}, {st*WST + ii*1024}")
            k.e("s_nop 0")
            k.vmop(f"buffer_load_dwordx4 v{V_WD+ii}, s[12:15], s{S_WBASE} offen lds", ("w", s))
        return f

    for ii in range(7):
        k.e(f"v_add_u32 v2, s46, v0")
        k.e(f"v_add_u32 v2, {64*ii}, v2")
        k.e("v_mul_u32_u24 v3, 2341, v2")
        k.e("v_lshrrev_b32 v3, 16, v3")
        k.e("v_mul_u32_u24 v4, 28, v3")
        k.e("v_sub_u32 v4, v2, v4")
        k.e("v_mul_u32_u24 v5, 57, v4")
        k.e("v_lshrrev_b32 v5, 9, v5")
        k.e("v_mul_u32_u24 v6, 9, v5")
        k.e("v_sub_u32 v6, v4, v6")
        k.e("v_mul_lo_u32 v7, v3, s48")
        k.e("v_mul_u32_u24 v5, 1152, v5")
        k.e("v_add3_u32 v7, v7, v5, s47")
        k.e(f"v_lshl_add_u32 v{V_WD+ii}, v6, 4, v7")
        k.e("v_cmp_eq_u32 vcc, 27, v4")
        k.e("v_mov_b32 v4, 0x7ff00000")
        k.e("s_nop 0")
        k.e(f"v_cndmask_b32 v{V_WD+ii}, v{V_WD+ii}, v4, vcc")
        dma_w(0, ii)()
    k.e(f"s_and_b32 s46, s{S_WAVE}, 1")
    k.e("v_lshrrev_b32 v2, 3, v0")
    k.e("v_and_b32 v3, 7, v0")
    k.e("v_lshrrev_b32 v4, 1, v2")
    k.e("s_lshl_b32 s47, s46, 2")
    k.e("v_or_b32 v4, s47, v4")
    k.e("v_xor_b32 v3, v3, v4")
    k.e("v_mul_u32_u24 v7, 1152, v2")
    k.e("v_lshl_add_u32 v7, v3, 4, v7")
    k.e(f"s_lshl_b32 s47, s{S_RB}, 8")
    k.e("s_lshl_b32 s48, s46, 3")
    k.e("s_add_u32 s47, s47, s48")
    k.e("s_sub_u32 s47, s47, 16")
    k.e("s_mul_i32 s47, s47, 1152")
    k.e(f"v_add_u32 v{V_HV}, s47, v7")
    k.e("s_lshl_b32 s49, s46, 10")
    k.e(f"s_add_u32 s49, s49, {HB}")

    def dma_h(s):
        st = s % NST
        def f():
            k.e(f"s_add_u32 m0, s49, {st*2048}")
            k.e("s_nop 0")
            k.vmop(f"buffer_load_dwordx4 v{V_HV}, s[8:11], s{S_STBASE} offen lds", ("w", s))
        return f

    k.e(f"v_lshlrev_b32 v{V_L16}, 4, v0")
    dma_h(0)()
    for s in range(1, 3):
        for p in range(8):
            x_load(k, s, p, xq(s, p))
        for ii in range(7):
            dma_w(s, ii)()
        dma_h(s)()
    for p in range(8):
        x_load(k, 3, p, xq(3, p))
    common2(k)
    k.e("v_lshrrev_b32 v2, 4, v0")
    k.e("v_bfe_u32 v3, v0, 2, 2")
    k.e("v_and_b32 v4, 3, v0")
    k.e("v_lshrrev_b32 v5, 1, v2")
    k.e("v_lshl_add_u32 v5, v5, 3, v3")
    k.e(f"v_mul_u32_u24 v5, {PITCH}, v5")
    k.e("v_and_b32 v6, 1, v2")
    k.e("v_lshl_add_u32 v5, v6, 5, v5")
    k.e(f"v_lshl_add_u32 v{V_TA}, v4, 3, v5")
    k.e(f"v_add_u32 v{V_TA2}, {2*WST}, v{V_TA}")
    k.e("v_lshl_add_u32 v5, v2, 3, v3")
    k.e(f"v_mul_u32_u24 v5, {PITCH}, v5")
    k.e("v_lshl_add_u32 v5, v4, 3, v5")
    k.e("v_and_b32 v10, 15, v0")
    k.e("v_mul_u32_u24 v10, 592, v10")
    k.e("v_lshl_add_u32 v10, v2, 4, v10")
    for i in range(3):
        k.e(f"s_mul_i32 s46, s{S_WAVE}, 3")
        k.e(f"s_add_u32 s46, s46, {i}")
        k.e("s_min_u32 s46, s46, 8")
        k.e("s_lshl_b32 s47, s46, 5")
        k.e("s_add_u32 s47, s47, 144")
        k.e(f"v_add_u32 v{V_HA+i}, s47, v5")
        k.e(f"v_add_u32 v{V_HA2+i}, {2*WST}, v{V_HA+i}")
        k.e("s_lshl_b32 s47, s46, 6")
        k.e(f"v_add_u32 v{V_HW+i}, s47, v10")
    k.e("v_and_b32 v5, 15, v0")
    k.e("v_bfe_u32 v6, v5, 1, 3")
    for k32 in range(2):
        k.e(f"v_add_u32 v7, {4*k32}, v2")
        k.e("v_xor_b32 v7, v7, v6")
        k.e("v_lshlrev_b32 v7, 4, v7")
        k.e("v_lshl_add_u32 v7, v5, 7, v7")
        k.e(f"v_add_u32 v{V_HB+k32}, {HB}, v7")

    def aread(i, s, ksl, T, half):
        st = s % NST
        off = (ksl * 16 + half * 4) * PITCH + (st % 2) * WST + 64 * T
        base = (V_TA2 if st >= 2 else V_TA)
        d = V_AF + (i % 4) * 4 + half * 2
        k.lgop(f"ds_read_b64_tr_b16 {vr(d,2)}, v{base} offset:{off}", ("af", i, half))

    def haread(s, k32, i, half):
        st = s % NST
        off = (k32 * 32 + half * 4) * PITCH + (st % 2) * WST
        base = (V_HA2 if st >= 2 else V_HA) + i
        d = V_HAF + i * 4 + half * 2
        k.lgop(f"ds_read_b64_tr_b16 {vr(d,2)}, v{base} offset:{off}", ("haf", s, k32, i, half))

    def accq(T, rt):
        return (T * 2 + rt) * 16
    A_H = 224

    def x_convert(s):
        def wx():
            vq.force_until(lambda: k.vm.count(("x", s)) == 8)
            k.need(vm=("x", s))
        th = [wx]
        for p in range(8):
            th.append(lambda p=p: x_write(k, s, p, xq(s, p)))
        for ksl in range(4):
            for rt in range(2):
                th.append(lambda ksl=ksl, rt=rt: x_read(k, s, ksl, rt, vr(xfr(s, ksl, rt))))
        return th

    vq = Paced(P["vrate"], P["vcap"], k)

    def guard():
        if k.lg_out() >= 13:
            k.need(lg=k.lg[k.lg_done + 4])

    for th in x_convert(0):
        guard()
        th()
    k.need(vm=("w", 0))
    k.e("s_barrier")

    pairs = [(s, ksl, T) for s in range(9) for ksl in range(4) for T in range(7)]
    fill = []
    issued = 0
    visible = 0

    def issue_upto(it):
        nonlocal issued
        while issued <= it and issued < len(pairs):
            s, ksl, T = pairs[issued]
            if s > visible:
                break
            guard()
            aread(issued, s, ksl, T, 0)
            aread(issued, s, ksl, T, 1)
            issued += 1

    for i, (s, ksl, T) in enumerate(pairs):
        ks = 4 * s + ksl
        if ksl == 0 and T == 0:
            if s in (0, 2):
                k.stamp()
            while fill:
                guard()
                fill.pop(0)()
            if s + 1 <= 8:
                vq.force_until(lambda: k.vm.count(("w", s + 1)) == 8)
                k.need(vm=("w", s + 1))
                k.e("s_barrier")
                visible = s + 1
            if s + 3 <= 8:
                for ii in range(7):
                    vq.add(dma_w(s + 3, ii), 33)
                    if s >= 1:
                        vq.add(lambda s=s, p=ii: x_load(k, s + 3, p, xq(s + 3, p)), 19)
                vq.add(dma_h(s + 3), 19)
                if s >= 1:
                    vq.add(lambda s=s: x_load(k, s + 3, 7, xq(s + 3, 7)), 19)
        if ksl == 2 and T == 0 and s + 1 <= 8:
            xc = x_convert(s + 1)
            if "noxw" in P["exp"]:
                xc = xc[:1] + xc[9:]
            fill.extend(xc)
        if s == 7 and ksl == 0 and T == 1:
            def touch3():
                srd(k, 60, 56, 57, 576 * 1152)
                k.e("v_mul_u32_u24 v2, 7282, v0")
                k.e("v_lshrrev_b32 v2, 16, v2")
                k.e("v_mul_u32_u24 v3, 9, v2")
                k.e("v_sub_u32 v3, v0, v3")
                k.e("v_min_u32 v2, 5, v2")
                k.e("v_mul_u32_u24 v2, 1152, v2")
                k.e("v_lshl_add_u32 v2, v3, 7, v2")
                k.e(f"s_sub_u32 s46, s{S_IDX}, 24")
                k.e("s_lshl_b32 s46, s46, 2")
                k.e(f"s_add_u32 s46, s46, s{S_WAVE}")
                k.e(f"s_mul_i32 s46, s46, {18*1152}")
                for z in range(3):
                    k.vmop(f"buffer_load_dword v{4+z}, v2, s[60:63], s46 offen", ("touch",))
                    k.e(f"s_add_u32 s46, s46, {6*1152}")
            if P["touch2"]:
                vq.add(touch3, 40)
        if s == 8 and ksl == 0 and T == 1:
            vq.add(lambda: nonce_issue(k, 252), 10)
        if T == 0:
            guard()
            if ksl % 2 == 0:
                k32 = ksl // 2
                k.lgop(f"ds_read_b128 {vr(V_HBF + k32*4)}, v{V_HB+k32} offset:{(s%NST)*2048}", ("hbf", s, k32))
        issue_upto(i)
        assert issued > i
        need = [("af", i, 1)]
        if T == 0:
            need += [("xf", ks, 0), ("xf", ks, 1)]
        k.need(lg=need)
        af = vr(V_AF + (i % 4) * 4)
        for rt in range(2):
            a = accq(T, rt)
            cin = "0" if ks == 0 else ar(a, 16)
            k.e(f"v_mfma_f32_32x32x16_bf16 {ar(a,16)}, {af}, {vr(xfr(s,ksl,rt))}, {cin}")
            if rt == 0:
                issue_upto(i + 2)
            if fill and k.lg_out() < 9:
                fill.pop(0)()
            vq.gap()
        if ksl % 2 == 0 and T in (1, 2, 3) and "nohalo" not in P["exp"]:
            guard()
            haread(s, ksl // 2, T - 1, 0)
            haread(s, ksl // 2, T - 1, 1)
        if ksl % 2 == 0 and T in (4, 5, 6) and "nohalo" not in P["exp"]:
            k32 = ksl // 2
            hi = T - 4
            k.need(lg=[("haf", s, k32, hi, 1), ("hbf", s, k32)])
            a = A_H + hi * 4
            cin = "0" if ks == 0 else ar(a, 4)
            k.e(f"v_mfma_f32_16x16x32_bf16 {ar(a,4)}, {vr(V_HAF+hi*4)}, {vr(V_HBF+k32*4)}, {cin}")
    while fill:
        guard()
        fill.pop(0)()
    vq.drain()
    k.wait_all(vm=False)
    k.e("s_nop 7")
    k.e("s_nop 7")
    k.e("s_barrier")
    k.stamp()
    k.e("v_and_b32 v2, 31, v0")
    k.e("v_lshrrev_b32 v3, 5, v0")
    k.e(f"s_lshl_b32 s46, s{S_WAVE}, 6")
    k.e("s_add_u32 s46, s46, 16")
    k.need(vm=("touch",)) if P["touch2"] else None
    k.e("v_add_u32 v4, s46, v2")
    k.e("v_mul_u32_u24 v4, 592, v4")
    k.e("v_lshl_add_u32 v8, v3, 4, v4")
    k.e("v_mul_u32_u24 v5, 144, v3")
    k.e("v_add_u32 v4, v4, v5")
    V_Q = 84
    combos = [(T, qq) for T in range(7) for qq in range(4)]
    for rt in range(2):
        for (T, qq) in combos:
            g2 = 8 * T + 2 * qq
            if g2 < 18:
                guard()
                k.lgop(f"ds_write_b128 v8, {ar(accq(T, rt) + qq*4)} offset:{rt*18944 + g2*16}", ("qw",))
    for rt in range(2):
        for g9 in range(9):
            guard()
            k.lgop(f"ds_read_b128 {vr(V_Q + rt*36 + g9*4)}, v4 offset:{rt*18944 + g9*16}", ("qr",))
    for rt in range(2):
        for (T, qq) in combos:
            g2 = 8 * T + 2 * qq
            if 18 <= g2 < 54:
                guard()
                k.lgop(f"ds_write_b128 v8, {ar(accq(T, rt) + qq*4)} offset:{rt*18944 + (g2-18)*16}", ("kvw",))
    for hi in range(3):
        guard()
        k.lgop(f"ds_write_b128 v{V_HW+hi}, {ar(A_H+hi*4)}", ("kvw",))
    sc = (18 ** -0.5) * LOG2E
    k.e(f"s_mov_b32 s46, 0x{f2u(sc):08x}")
    k.need(lg=("qr",))
    for i in range(72):
        k.e(f"v_mul_f32 v{V_Q+i}, s46, v{V_Q+i}")
    k.wait_all()
    nonce_get(k, 252)
    k.e("s_barrier")
    k.stamp()
    k.e(f"s_lshl_b32 s46, s{S_RB}, 2")
    k.e(f"s_add_u32 s46, s46, s{S_WAVE}")
    k.e("s_lshl_b32 s46, s46, 6")
    k.e("v_add_u32 v5, s46, v2")
    k.e(f"v_subrev_u32 v9, {14*592}, v4")
    V_K = 160
    V_L = 232
    V_P = 10
    V_O = 40
    V_SA = 240
    k.e(f"s_mul_i32 s47, s{S_FG}, {9*512}")
    k.e(f"v_mul_u32_u24 v6, {5*512}, v3")
    k.e("v_lshl_add_u32 v7, v2, 4, s47")
    k.e(f"v_add_u32 v{V_SA}, v6, v7")
    k.e(f"v_mul_u32_u24 v6, {NKB*1024}, v3")
    k.e(f"v_add3_u32 v{V_SA+1}, v6, v7, 0")
    k.e(f"v_add_u32 v{V_SA+1}, {4*512}, v{V_SA+1}")
    k.e(f"s_lshl_b32 s46, s{S_RB}, 3")
    k.e(f"s_lshl_b32 s47, s{S_WAVE}, 1")
    k.e("s_add_u32 s46, s46, s47")
    k.e(f"s_mul_i32 s{S_STBASE}, s46, {NKB*1024}")

    def kvread(rt, w, isv, buf):
        off = rt * 18944 + (14 - 2 * w) * 592 + isv * 288
        for g in range(9):
            k.lgop(f"ds_read_b128 {vr(V_K + buf*36 + g*4)}, v9 offset:{off + g*16}", ("kv", rt, w, isv))

    for rt in range(2):
        q = V_Q + rt * 36
        kvread(rt, 0, 0, 0)
        for w in range(8):
            buf = w & 1
            k.need(lg=("kv", rt, w, 0))
            if w + 1 < 8:
                kvread(rt, w + 1, 0, buf ^ 1)
            else:
                kvread(rt, 0, 1, buf ^ 1)
            kb = V_K + buf * 36
            for d in range(9):
                for e in range(2):
                    a = q + e * 18 + 2 * d
                    b = kb + e * 18 + 2 * d
                    l = V_L + e * 4 + (d & 1) * 2
                    if d < 2:
                        k.e(f"v_pk_mul_f32 {vr(l,2)}, {vr(a,2)}, {vr(b,2)}")
                    else:
                        k.e(f"v_pk_fma_f32 {vr(l,2)}, {vr(a,2)}, {vr(b,2)}, {vr(l,2)}")
            for e in range(2):
                k.e(f"v_pk_add_f32 {vr(V_L+e*4,2)}, {vr(V_L+e*4,2)}, {vr(V_L+e*4+2,2)}")
            for e in range(2):
                k.e(f"v_add_f32 v{V_P + e*8 + w}, v{V_L+e*4}, v{V_L+e*4+1}")
        k.e(f"v_add_u32 v26, {32*rt}, v5")
        k.e("v_mov_b32 v27, 0xff7fffff")
        for w in range(1, 8):
            k.e(f"v_cmp_le_u32 vcc, {2*w}, v26")
            k.e("s_nop 1")
            for e in range(2):
                k.e(f"v_cndmask_b32 v{V_P+e*8+w}, v27, v{V_P+e*8+w}, vcc")
        for e in range(2):
            p = V_P + e * 8
            m = 28 + e
            k.e(f"v_max3_f32 v{m}, v{p}, v{p+1}, v{p+2}")
            k.e(f"v_max3_f32 v{m}, v{m}, v{p+3}, v{p+4}")
            k.e(f"v_max3_f32 v{m}, v{m}, v{p+5}, v{p+6}")
            k.e(f"v_max_f32 v{m}, v{m}, v{p+7}")
        for e in range(2):
            p = V_P + e * 8
            for w in range(8):
                k.e(f"v_sub_f32 v{p+w}, v{p+w}, v{28+e}")
        for e in range(2):
            p = V_P + e * 8
            for w in range(8):
                k.e(f"v_exp_f32 v{p+w}, v{p+w}")
        k.e("s_nop 0")
        for e in range(2):
            p = V_P + e * 8
            k.e(f"v_add_f32 v{28+e}, v{p}, v{p+1}")
        for w in range(2, 8):
            for e in range(2):
                p = V_P + e * 8
                k.e(f"v_add_f32 v{28+e}, v{28+e}, v{p+w}")
        for e in range(2):
            k.e(f"v_rcp_f32 v{28+e}, v{28+e}")
        k.e("s_nop 0")
        for e in range(2):
            p = V_P + e * 8
            for w in range(8):
                k.e(f"v_mul_f32 v{p+w}, v{p+w}, v{28+e}")
        for w in range(8):
            buf = (w & 1)
            k.need(lg=("kv", rt, w, 1))
            if w + 1 < 8:
                kvread(rt, w + 1, 1, buf ^ 1)
            vb = V_K + buf * 36
            for e in range(2):
                p = V_P + e * 8 + w
                pe = p & ~1
                sel = p & 1
                for d in range(9):
                    o = V_O + e * 18 + 2 * d
                    b = vb + e * 18 + 2 * d
                    if w == 0:
                        k.e(f"v_pk_mul_f32 {vr(o,2)}, {vr(pe,2)}, {vr(b,2)} op_sel:[{sel},0] op_sel_hi:[{sel},1]")
                    else:
                        k.e(f"v_pk_fma_f32 {vr(o,2)}, {vr(pe,2)}, {vr(b,2)}, {vr(o,2)} op_sel:[{sel},0,0] op_sel_hi:[{sel},1,1]")
        for a in range(9):
            d = q + a * 2
            k.e(f"v_cvt_pk_bf16_f32 v{d}, v{V_O+4*a}, v{V_O+4*a+1}")
            k.e(f"v_cvt_pk_bf16_f32 v{d+1}, v{V_O+4*a+2}, v{V_O+4*a+3}")
        k.e("v_cmp_ne_u32 vcc, 0, v3")
        k.e(f"s_add_u32 s{S_T2}, s{S_STBASE}, {rt*NKB*1024}")
        k.e("s_nop 0")
        for i in range(16):
            k.e(f"v_cndmask_b32 v{q+20+i}, v{q+i}, v{q+i+2}, vcc")
        for i in range(2):
            k.e(f"v_cndmask_b32 v{V_SA+4+2*rt+i}, v{q+16+i}, v{q+i}, vcc")
        for m in range(4):
            k.vmop(f"buffer_store_dwordx4 {vr(q+20+4*m)}, v{V_SA}, s[16:19], s{S_T2} offen offset:{m*512} sc0 sc1", ("st",))
    k.e("s_nop 1")
    k.e(f"v_permlane32_swap_b32 v{V_SA+4}, v{V_SA+6}")
    k.e(f"v_permlane32_swap_b32 v{V_SA+5}, v{V_SA+7}")
    k.e("s_nop 1")
    k.vmop(f"buffer_store_dwordx4 {vr(V_SA+4)}, v{V_SA+1}, s[16:19], s{S_STBASE} offen sc0 sc1", ("st",))
    k.stamp()


S_RT, S_NT, S_SPLIT = 65, 66, 49
S_SEG = 64
S_M0B = 38
S_BB = 67
S_FL = 35


class PhaseB:
    LB = 49152

    def __init__(self, k, P, is_o):
        self.k, self.P, self.is_o = k, P, is_o
        self.NS = 18 if is_o else 36
        self.RS = 9
        self.DW = 8 - P["b_bi"]
        self.DB = P["b_db"]
        self.SL = 12288
        self.V_WD = [32, 33, 34]
        self.V_AE = [35, 36, 37, 38, 31, 30]
        self.V_SC = 8
        self.V_T = 10
        self.V_AF = 64
        self.NAF = 8
        self.RA = P["b_ra"]
        self.BI = P["b_bi"]
        self.V_ACC = 160
        self.NBB = self.DB + 1

    def pos(self, st):
        return (st + 7) % 9

    def setup_thunks(self, t):
        k, P = self.k, self.P
        th = []

        def f0():
            if self.is_o:
                k.e(f"s_and_b32 s46, s{S_FG}, 1")
                k.e(f"s_lshr_b32 s{S_NT}, s{S_FG}, 1")
                k.e(f"s_mov_b32 s{S_SPLIT}, 4")
                srd(k, 60, 56, 57, 576 * 1152)
            else:
                k.e(f"s_and_b32 s46, s{S_I2}, 1")
                k.e(f"s_lshr_b32 s{S_NT}, s{S_I2}, 1")
                k.e(f"s_mov_b32 s{S_SPLIT}, s{S_FQ}")
                srd(k, 60, 52, 53, 4608 * 1152)
            k.e(f"s_lshl_b32 s{S_RT}, s{S_RB}, 1")
            k.e(f"s_add_u32 s{S_RT}, s{S_RT}, s46")
        th.append(f0)

        def f1():
            k.e(f"s_mul_i32 s{S_SEG}, s{S_WAVE}, {8*1152}")
            k.e(f"s_mul_i32 s46, s{S_NT}, 384")
            k.e(f"s_add_u32 s{S_SEG}, s{S_SEG}, s46")
            if not self.is_o:
                k.e(f"s_mul_i32 s46, s{S_SPLIT}, {384*1152}")
                k.e(f"s_add_u32 s{S_SEG}, s{S_SEG}, s46")
            k.e(f"s_mul_i32 s{S_M0B}, s{S_WAVE}, 3072")
        th.append(f1)

        def f2():
            k.e(f"s_lshl_b32 s46, s{S_RT}, 2")
            k.e(f"s_add_u32 s46, s46, s{S_WAVE}")
            k.e(f"s_mul_i32 s46, s46, {NKB}")
            if not self.is_o:
                k.e(f"s_mul_i32 s{S_BB}, s{S_SPLIT}, 72")
                k.e(f"s_add_u32 s46, s46, s{S_BB}")
                k.e("s_add_u32 s46, s46, 36")
            k.e(f"s_lshl_b32 s{S_BB}, s46, 10")
        th.append(f2)
        for i in range(3):
            def g0(i=i):
                k.e(f"v_add_u32 v{t}, {64*i}, v0")
                k.e(f"v_mul_u32_u24 v{t+1}, 2731, v{t}")
                k.e(f"v_lshrrev_b32 v{t+1}, 16, v{t+1}")
                k.e(f"v_mul_u32_u24 v{t+2}, 24, v{t+1}")
                k.e(f"v_sub_u32 v{t+2}, v{t}, v{t+2}")
            def g1(i=i):
                k.e(f"v_bfe_u32 v{t+3}, v{t+1}, 1, 1")
                k.e(f"v_lshlrev_b32 v{t+3}, 2, v{t+3}")
                k.e(f"v_xor_b32 v{t+2}, v{t+2}, v{t+3}")
                k.e(f"v_mul_u32_u24 v{t+1}, 1152, v{t+1}")
                k.e(f"v_lshl_add_u32 v{self.V_WD[i]}, v{t+2}, 4, v{t+1}")
            th += [g0, g1]

        def h0():
            k.e(f"v_lshrrev_b32 v{t}, 4, v0")
            k.e(f"v_bfe_u32 v{t+1}, v0, 2, 2")
            k.e(f"v_and_b32 v{t+2}, 3, v0")
            k.e(f"v_lshrrev_b32 v{t+3}, 1, v{t}")
            k.e(f"v_lshl_add_u32 v{t+3}, v{t+3}, 3, v{t+1}")
        def h1():
            k.e(f"v_mul_u32_u24 v{t+3}, 384, v{t+3}")
            k.e(f"v_and_b32 v{t+4}, 1, v{t}")
            k.e(f"v_lshl_add_u32 v{t+3}, v{t+4}, 5, v{t+3}")
            k.e(f"v_lshl_add_u32 v{t+3}, v{t+2}, 3, v{t+3}")
            k.e(f"v_lshrrev_b32 v{t+4}, 1, v{t+1}")
        def h2():
            ae = self.V_AE
            k.e(f"v_lshlrev_b32 v{t+4}, 6, v{t+4}")
            k.e(f"v_add_u32 v{t+3}, {self.LB}, v{t+3}")
            k.e(f"v_add_u32 v{ae[0]}, v{t+3}, v{t+4}")
            k.e(f"v_sub_u32 v{ae[1]}, v{t+3}, v{t+4}")
            k.e(f"v_add_u32 v{ae[1]}, 64, v{ae[1]}")
        def h3():
            ae = self.V_AE
            for z in (1, 2):
                k.e(f"v_add_u32 v{ae[2*z]}, {z*4*self.SL}, v{ae[0]}")
                k.e(f"v_add_u32 v{ae[2*z+1]}, {z*4*self.SL}, v{ae[1]}")
        th += [h0, h1, h2, h3]
        return th

    def dma_w(self, st, i):
        k = self.k
        seg, r = divmod(st, 12)
        segstride = 384 if self.is_o else 1536
        k.e(f"s_add_u32 m0, s{S_M0B}, {self.LB + self.pos(st)*self.SL + i*1024}")
        k.e(f"s_add_u32 s{S_T1}, s{S_SEG}, {(seg*segstride + r*32)*1152}")
        k.vmop(f"buffer_load_dwordx4 v{self.V_WD[i]}, s[60:63], s{S_T1} offen lds", ("bw", st))

    def bfr(self, st, kh):
        return ((st % self.NBB) * 2 + kh) * 4

    def load_b(self, st, kh):
        k = self.k
        k.e(f"s_add_u32 s{S_T0}, s{S_BB}, {st*2048}")
        k.vmop(f"buffer_load_dwordx4 {ar(self.bfr(st,kh))}, v{V_L16}, s[16:19], s{S_T0} offen offset:{kh*1024} {self.P['ldscope']}", ("b", st, kh))

    def aread(self, i, st, kh, a, half):
        k = self.k
        z, sl = divmod(self.pos(st), 4)
        off = sl * self.SL + (16 * kh + 4 * half) * 384
        be, bo = self.V_AE[2 * z], self.V_AE[2 * z + 1]
        if a % 2 == 0:
            base, off = be, off + a * 64
        else:
            base, off = bo, off + (a - 1) * 64
        assert 0 <= off < 65536
        d = self.V_AF + (i % self.NAF) * 4 + half * 2
        k.lgop(f"ds_read_b64_tr_b16 {vr(d,2)}, v{base} offset:{off}", ("baf", i, half))

    def main(self, visible, vq=None, gap_cb=None, pre_bar=None, post_bar=None):
        k, P = self.k, self.P
        NS, DW, DB = self.NS, self.DW, self.DB
        if vq is None:
            vq = Paced(P["brate"], P["vcap"], k)
        vq.rate = P["brate"]
        ops = [(st, kh, a) for st in range(NS) for kh in range(2) for a in range(6)]
        issued = 0

        def issue_upto(it):
            nonlocal issued
            while issued <= it and issued < len(ops):
                st, kh, a = ops[issued]
                if st > visible:
                    break
                self.aread(issued, st, kh, a, 0)
                self.aread(issued, st, kh, a, 1)
                issued += 1

        BI = self.BI

        def boundary(st):
            nonlocal visible
            if st >= 1 and st % BI == 0:
                upto = min(st + BI, NS - 1)
                if upto > visible:
                    vq.force_until(lambda: k.vm.count(("bw", upto)) == 3)
                    k.need(vm=("bw", upto))
                    visible = upto
                if pre_bar:
                    pre_bar(st)
                k.e("s_barrier")
            if post_bar and st >= 1:
                post_bar(st)
            if st + DB < NS:
                vq.add(lambda st=st: self.load_b(st + DB, 0), 19)
                vq.add(lambda st=st: self.load_b(st + DB, 1), 19)
            if st + DW < NS:
                for ii in range(3):
                    vq.add(lambda st=st, ii=ii: self.dma_w(st + DW, ii), 19)

        for i, (st, kh, a) in enumerate(ops):
            issue_upto(i)
            assert issued > i
            if a == 0:
                vq.force_until(lambda: ("b", st, kh) in k.vm)
                k.need(vm=("b", st, kh), lg=("baf", i, 1))
            else:
                k.need(lg=("baf", i, 1))
            ac = self.V_ACC + a * 16
            cin = "0" if (st == 0 and kh == 0) else vr(ac, 16)
            k.e(f"v_mfma_f32_32x32x16_bf16 {vr(ac,16)}, {vr(self.V_AF+(i%self.NAF)*4)}, {ar(self.bfr(st,kh))}, {cin}")
            if kh == 0 and a == 0:
                boundary(st)
            issue_upto(i + self.RA)
            vq.gap()
            if gap_cb:
                gap_cb()
        vq.drain()
        k.stamp()

    def epilogue(self):
        k, P = self.k, self.P
        t = self.V_T
        sc = self.V_SC
        k.e(f"s_mul_i32 s46, s{S_RT}, 3")
        k.e(f"s_add_u32 s46, s46, s{S_NT}")
        k.e(f"s_add_u32 s{S_FL}, s46, 40")
        k.e(f"s_lshl_b32 s{S_FL}, s{S_FL}, 7")
        k.e(f"s_add_u32 s{S_FL}, s{S_FL}, {FLAG_OFF}")
        k.e("s_mul_i32 s46, s46, 20")
        k.e(f"s_add_u32 s46, s46, s{S_WAVE}")
        k.e(f"s_mul_i32 s{S_BB}, s46, 12288")
        k.e(f"s_add_u32 s{S_BB}, s{S_BB}, {PART_OFF}")
        k.e(f"s_mul_i32 s46, s{S_SPLIT}, {4*12288}")
        k.e(f"s_add_u32 s{S_STBASE}, s{S_BB}, s46")
        k.e("s_nop 3")
        PK = 96
        for pr in range(12):
            a0 = self.V_ACC + pr * 8
            for r in range(4):
                k.e(f"v_cvt_pk_bf16_f32 v{PK+pr*4+r}, v{a0+2*r}, v{a0+2*r+1}")
            if pr % 4 == 0:
                k.e(f"s_add_u32 s{S_T2}, s{S_STBASE}, {pr*1024}")
            k.vmop(f"buffer_store_dwordx4 {vr(PK+pr*4)}, v{V_L16}, s[16:19], s{S_T2} offen offset:{(pr%4)*1024} sc0 sc1", ("pst",))
        k.e(f"s_lshl_b32 s46, s{S_SPLIT}, 2")
        k.e(f"s_add_u32 s46, s46, s{S_FL}")
        k.stamp()
        publish(k, 46, t, ("pst",))
        k.stamp()

    def phaseC(self):
        k, P = self.k, self.P
        t = self.V_T
        srd(k, 8, 28, 29, 2048 * 576 * 2)
        poll(k, S_FL, 6, t)
        k.stamp()
        k.e(f"s_mul_i32 s46, s{S_SPLIT}, 3072")
        k.e(f"s_add_u32 s{S_BB}, s{S_BB}, s46")
        L = 96
        sc = self.V_SC
        k.e(f"s_lshl_b32 s46, s{S_RT}, 2")
        k.e(f"s_add_u32 s46, s46, s{S_WAVE}")
        k.e("s_lshl_b32 s46, s46, 7")
        k.e(f"s_add_u32 s46, s46, {G_OFF}")
        k.e(f"v_and_b32 v{t}, 31, v0")
        k.e(f"v_lshlrev_b32 v{t}, 2, v{t}")
        k.vmop(f"buffer_load_dword v{sc}, v{t}, s[16:19], s46 offen sc0 sc1", ("g",))
        for s in range(5):
            k.e(f"s_add_u32 s{S_T0}, s{S_BB}, {s*4*12288}")
            for pr in range(3):
                k.vmop(f"buffer_load_dwordx4 {vr(L + (s*3+pr)*4)}, v{V_L16}, s[16:19], s{S_T0} offen offset:{pr*1024} sc0 sc1", ("pl", s))
        k.e(f"s_lshl_b32 s46, s{S_RT}, 2")
        k.e(f"s_add_u32 s46, s46, s{S_WAVE}")
        k.e(f"s_mul_i32 s46, s46, {32*1152}")
        k.e(f"s_mul_i32 s{S_T1}, s{S_NT}, 384")
        k.e(f"s_add_u32 s46, s46, s{S_T1}")
        k.e(f"s_mul_i32 s{S_T1}, s{S_SPLIT}, 96")
        k.e(f"s_add_u32 s46, s46, s{S_T1}")
        k.e(f"v_and_b32 v{t}, 31, v0")
        k.e(f"v_mul_u32_u24 v{t}, 1152, v{t}")
        k.e(f"v_lshrrev_b32 v{t+1}, 5, v0")
        k.e(f"v_lshl_add_u32 v{t}, v{t+1}, 4, v{t}")
        A = 160
        TT = 192
        for s in range(5):
            k.need(vm=("pl", s))
            for d in range(12):
                src = L + s * 12 + d
                if s == 0:
                    k.e(f"v_lshlrev_b32 v{A+2*d}, 16, v{src}")
                    k.e(f"v_and_b32 v{A+2*d+1}, 0xffff0000, v{src}")
                else:
                    k.e(f"v_lshlrev_b32 v{TT+2*d}, 16, v{src}")
                    k.e(f"v_and_b32 v{TT+2*d+1}, 0xffff0000, v{src}")
            if 0 < s < 4:
                for d in range(24):
                    k.e(f"v_add_f32 v{A+d}, v{A+d}, v{TT+d}")
            if s == 3:
                k.e(f"v_sub_f32 v{t+1}, 1.0, v{sc}")
                for d in range(24):
                    k.e(f"v_mul_f32 v{A+d}, v{t+1}, v{A+d}")
            if s == 4:
                for d in range(24):
                    k.e(f"v_fmac_f32 v{A+d}, v{sc}, v{TT+d}")
        for d in range(12):
            k.e(f"v_cvt_pk_bf16_f32 v{TT+d}, v{A+2*d}, v{A+2*d+1}")
        k.e("s_nop 1")
        for pr in range(3):
            b = TT + pr * 4
            k.e(f"v_permlane32_swap_b32 v{b}, v{b+2}")
            k.e(f"v_permlane32_swap_b32 v{b+1}, v{b+3}")
        k.e("s_nop 1")
        for pr in range(3):
            k.vmop(f"buffer_store_dwordx4 {vr(TT+pr*4)}, v{t}, s[8:11], s46 offen offset:{pr*32}", ("ost",))
        k.wait_all()
        k.stamp()


def gate_wg(k, P):
    k.c("---------------- gate rows ----------------")
    srd(k, 20, 54, 55, 1152)
    k.e("v_and_b32 v3, 7, v0")
    k.e("v_lshlrev_b32 v3, 4, v3")
    GW = 64
    for s in range(9):
        k.vmop(f"buffer_load_dwordx4 {vr(GW+4*s)}, v3, s[20:23], 0 offen offset:{s*128}", ("gw",))
    k.e(f"s_lshl_b32 s46, s{S_RB}, 1")
    k.e(f"s_add_u32 s46, s46, s{S_FG}")
    k.e(f"s_sub_u32 s49, s46, 6")
    k.e(f"s_lshl_b32 s46, s49, 2")
    k.e(f"s_add_u32 s46, s46, s{S_WAVE}")
    k.e(f"s_mul_i32 s{S_XS}, s46, {32*1152}")
    k.e(f"s_add_u32 s{S_XS+1}, s{S_XS}, {16*1152}")
    k.e("s_lshl_b32 s48, s46, 7")
    k.e(f"s_add_u32 s48, s48, {G_OFF}")
    X = 100
    for p in range(4):
        for s in range(9):
            v = V_XL if p % 2 == 0 else V_XL2
            k.vmop(f"buffer_load_dwordx4 {vr(X+(p*9+s)*4)}, v{v}, s[8:11], s{S_XS+p//2} offen offset:{s*128}", ("gx", p))
    for p in range(4):
        k.e(f"v_mov_b32 v{4+p}, 0")
    for p in range(4):
        k.need(vm=("gx", p))
        for s in range(9):
            for d in range(4):
                k.e(f"v_dot2_f32_bf16 v{4+p}, v{X+(p*9+s)*4+d}, v{GW+4*s+d}, v{4+p}")
    k.e("s_nop 3")
    for m in (1, 2, 4):
        for p in range(4):
            k.lgop(f"ds_swizzle_b32 v{8+p}, v{4+p} offset:{(m << 10) | 0x1f}", ("sw",))
        k.wait_all(vm=False)
        for p in range(4):
            k.e(f"v_add_f32 v{4+p}, v{4+p}, v{8+p}")
    for p in range(4):
        k.e(f"v_mul_f32 v{4+p}, 0x{f2u(-LOG2E):08x}, v{4+p}")
    for p in range(4):
        k.e(f"v_exp_f32 v{4+p}, v{4+p}")
    k.e("s_nop 0")
    for p in range(4):
        k.e(f"v_add_f32 v{4+p}, 1.0, v{4+p}")
    for p in range(4):
        k.e(f"v_rcp_f32 v{4+p}, v{4+p}")
    k.e("v_lshrrev_b32 v2, 3, v0")
    k.e("v_lshlrev_b32 v2, 2, v2")
    for p in range(4):
        k.vmop(f"buffer_store_dword v{4+p}, v2, s[16:19], s48 offen offset:{p*32} sc0 sc1", ("gst",))
    k.wait_all()
    k.e("s_barrier")
    k.e(f"s_cmp_lg_u32 s{S_WAVE}, 0")
    k.e("s_cbranch_scc1 L_QEND")
    k.e(f"s_mul_i32 s46, s49, 3")
    k.e("s_add_u32 s46, s46, 40")
    k.e("s_lshl_b32 s46, s46, 7")
    k.e(f"s_add_u32 s46, s46, {FLAG_OFF + 20}")
    k.e(f"v_mov_b32 v4, s{S_NONCE}")
    k.e("v_lshlrev_b32 v5, 7, v0")
    k.e("s_mov_b64 exec, 7")
    k.e("buffer_store_dword v4, v5, s[16:19], s46 offen sc0 sc1")
    k.e("s_mov_b64 exec, -1")
    k.e("s_branch L_QEND")


def gen(P):
    k = KB()
    k.stamps_on = P["stamps"]
    prologue(k, P)
    st0 = k.save()
    B = PhaseB(k, P, False)
    phaseA_mlp(k, P, B)
    B.epilogue()
    B.phaseC()
    k.stamp_flush()
    k.e("s_branch L_END")
    k.restore(st0)
    phaseA_qkv(k, P)
    k.e(f"s_add_u32 s{S_FL}, s{S_RB}, 32")
    k.e(f"s_lshl_b32 s{S_FL}, s{S_FL}, 7")
    k.e(f"s_add_u32 s{S_FL}, s{S_FL}, {FLAG_OFF}")
    k.e(f"s_lshl_b32 s46, s{S_FG}, 2")
    k.e(f"s_add_u32 s50, s46, s{S_FL}")
    k.wait_all(vm=False)
    publish(k, 50, 2, ("st",))
    k.stamp()
    k.e(f"s_cmp_lt_u32 s{S_FG}, 6")
    k.e("s_cbranch_scc1 L_QB")
    st1 = k.save()
    k.wait_all()
    gate_wg(k, P)
    k.restore(st1)
    k.label("L_QB")
    B2 = PhaseB(k, P, True)
    for th in B2.setup_thunks(2):
        th()
    for st in range(B2.DW):
        for ii in range(3):
            B2.dma_w(st, ii)
    poll(k, S_FL, 8, B2.V_T)
    k.e("s_barrier")
    k.stamp()
    for st in range(B2.DB):
        B2.load_b(st, 0)
        B2.load_b(st, 1)
    B2.main(B2.DW - 1)
    B2.epilogue()
    k.label("L_QEND")
    k.wait_all()
    k.stamp_flush()
    k.label("L_END")
    k.e("s_endpgm")
    label = NAME + "_kernel"
    s = open("cdna_kernels/" + NAME + ".s.ref").read().split("; Override")[0]
    s += "; @launch grid=(256,1,1) block=(256,1,1) lds=163840\n"
    s += '.amdgcn_target "amdgcn-amd-amdhsa--gfx950"\n.text\n'
    s += f".globl {label}\n.p2align 8\n.type {label},@function\n{label}:\n"
    s += k.text()
    s += f"""
.section .rodata,"a"
.p2align 6
.amdhsa_kernel {label}
  .amdhsa_next_free_vgpr 512
  .amdhsa_next_free_sgpr 102
  .amdhsa_accum_offset 256
  .amdhsa_group_segment_fixed_size 0
  .amdhsa_kernarg_size 88
  .amdhsa_user_sgpr_count 2
  .amdhsa_user_sgpr_kernarg_segment_ptr 1
  .amdhsa_system_sgpr_workgroup_id_x 1
.end_amdhsa_kernel
"""
    return s


def main():
    ap = argparse.ArgumentParser()
    ap.add_argument("-o", default="cdna_kernels/" + NAME + ".s")
    ap.add_argument("--delta", type=int, default=4)
    ap.add_argument("--D", type=int, default=15)
    ap.add_argument("--R", type=int, default=32)
    ap.add_argument("--ra", type=int, default=3)
    ap.add_argument("--epg", type=int, default=3)
    ap.add_argument("--nx0", type=int, default=2)
    ap.add_argument("--xlead", type=int, default=2)
    ap.add_argument("--d0", type=int, default=9)
    ap.add_argument("--spread", type=int, default=1)
    ap.add_argument("--touch2", type=int, default=1)
    ap.add_argument("--b-ring", type=int, default=10)
    ap.add_argument("--b-dw", type=int, default=8)
    ap.add_argument("--b-db", type=int, default=8)
    ap.add_argument("--stamps", action="store_true")
    ap.add_argument("--exp", default="")
    ap.add_argument("--vidx", type=int, default=1)
    ap.add_argument("--bi", type=int, default=4)
    ap.add_argument("--bi-from", type=int, default=0)
    ap.add_argument("--bar-late", type=int, default=1)
    ap.add_argument("--b-ra", type=int, default=5)
    ap.add_argument("--b-bi", type=int, default=2)
    ap.add_argument("--ttouch", type=int, default=66)
    ap.add_argument("--tb0", type=int, default=105)
    ap.add_argument("--dfirst", type=int, default=18)
    ap.add_argument("--brate", type=float, default=9.0)
    ap.add_argument("--f2st", type=int, default=8)
    ap.add_argument("--ldscope", default="sc0 sc1")
    ap.add_argument("--rot", type=int, default=1)
    ap.add_argument("--nx1", type=int, default=0)
    ap.add_argument("--d1", type=int, default=18)
    ap.add_argument("--xper", type=int, default=4)
    ap.add_argument("--vrate", type=float, default=12.0)
    ap.add_argument("--vcap", type=float, default=40.0)
    a = ap.parse_args()
    P = vars(a)
    s = gen(P)
    open(a.o, "w").write(s)
    print("wrote", a.o, len(s), "bytes")


if __name__ == "__main__":
    main()
```

```python
import sys, argparse, struct

NAME = "gated_mix__sliding_local_dilated__glu_gated_glu__prompt"

NKB = 324
G_OFF = 0x1500000
FLAG_OFF = 0x1510000
PART_OFF = 0x1600000
WS_BYTES = 268435456
DBG_OFF = 0x4000000
LOG2E = 1.4426950408889634
SPIN_MAX = 200000


def f2u(x):
    return struct.unpack("<I", struct.pack("<f", x))[0]


class KB:
    def __init__(self):
        self.lines = []
        self.vm = []
        self.vm_done = 0
        self.lg = []
        self.lg_done = 0
        self.n = 0
        self.stamps_on = False
        self.nstamp = 0

    def e(self, s):
        self.lines.append("    " + s)
        self.n += 1

    def c(self, s):
        self.lines.append("    ; " + s)

    def label(self, s):
        self.lines.append(s + ":")

    def vmop(self, s, tag):
        self.e(s)
        self.vm.append(tag)
        assert len(self.vm) - self.vm_done <= 63, "too many vm outstanding"

    def lgop(self, s, tag):
        self.e(s)
        self.lg.append(tag)
        assert len(self.lg) - self.lg_done <= 15, "too many lgkm outstanding"

    def vm_out(self):
        return len(self.vm) - self.vm_done

    def lg_out(self):
        return len(self.lg) - self.lg_done

    def _last(self, lst, tag):
        for i in range(len(lst) - 1, -1, -1):
            if lst[i] == tag:
                return i
        raise KeyError(tag)

    def need(self, vm=None, lg=None):
        parts = []
        if vm is not None:
            tags = vm if isinstance(vm, list) else [vm]
            i = max(self._last(self.vm, t) for t in tags)
            if i >= self.vm_done:
                n = len(self.vm) - 1 - i
                parts.append(f"vmcnt({n})")
                self.vm_done = len(self.vm) - n
        if lg is not None:
            tags = lg if isinstance(lg, list) else [lg]
            i = max(self._last(self.lg, t) for t in tags)
            if i >= self.lg_done:
                n = len(self.lg) - 1 - i
                parts.append(f"lgkmcnt({n})")
                self.lg_done = len(self.lg) - n
        if parts:
            self.e("s_waitcnt " + " ".join(parts))

    def wait_all(self, vm=True, lg=True):
        p = []
        if vm:
            p.append("vmcnt(0)")
            self.vm_done = len(self.vm)
        if lg:
            p.append("lgkmcnt(0)")
            self.lg_done = len(self.lg)
        self.e("s_waitcnt " + " ".join(p))

    def save(self):
        return (list(self.vm), self.vm_done, list(self.lg), self.lg_done, self.nstamp)

    def restore(self, st):
        self.vm, self.vm_done, self.lg, self.lg_done, self.nstamp = list(st[0]), st[1], list(st[2]), st[3], st[4]

    def stamp(self):
        if not self.stamps_on:
            return
        i = self.nstamp
        self.nstamp += 1
        assert i < 15
        self.e(f"s_memrealtime s[{70+2*i}:{71+2*i}]")
        self.e(f"s_memtime s[100:101]")
        self.e("s_waitcnt lgkmcnt(0)")
        self.e(f"s_mov_b32 s{71+2*i}, s100")
        self.e("s_waitcnt lgkmcnt(0)")
        self.lg_done = len(self.lg)

    def stamp_flush(self):
        if not self.stamps_on:
            return
        self.e("s_lshl_b32 s100, s2, 2")
        self.e(f"s_add_u32 s100, s100, s{S_WAVE}")
        self.e("s_lshl_b32 s100, s100, 7")
        self.e(f"s_add_u32 s100, s100, {DBG_OFF}")
        self.e("v_mov_b32 v1, 0")
        for i in range(self.nstamp):
            self.e(f"v_mov_b32 v2, s{70+2*i}")
            self.e(f"buffer_store_dword v2, v1, s[16:19], s100 offen offset:{4*i}")
            self.e("s_nop 1")
            self.e(f"v_mov_b32 v2, s{71+2*i}")
            self.e(f"buffer_store_dword v2, v1, s[16:19], s100 offen offset:{64+4*i}")
            self.e("s_nop 1")
        self.e(f"v_mov_b32 v2, {self.nstamp}")
        self.e(f"buffer_store_dword v2, v1, s[16:19], s100 offen offset:60")
        self.e("s_getreg_b32 s101, hwreg(HW_REG_HW_ID)")
        self.e("s_nop 1")
        self.e("v_mov_b32 v3, s101")
        self.e(f"buffer_store_dword v3, v1, s[16:19], s100 offen offset:124")
        self.e("s_getreg_b32 s101, hwreg(HW_REG_XCC_ID)")
        self.e("s_nop 1")
        self.e("v_mov_b32 v4, s101")
        self.e(f"buffer_store_dword v4, v1, s[16:19], s100 offen offset:120")
        self.e("s_waitcnt vmcnt(0)")

    def text(self):
        return "\n".join(self.lines) + "\n"


class Paced:
    def __init__(self, rate, cap, k=None):
        self.q, self.credit, self.rate, self.cap, self.k = [], 0, rate, cap, k

    def add(self, th, cost):
        self.q.append((th, cost))

    def gap(self, scale=1.0):
        self.credit = min(self.credit + self.rate * scale, self.cap)
        while self.q and self.q[0][1] <= self.credit and self.k.vm_out() < 58:
            th, c = self.q.pop(0)
            self.credit -= c
            th()

    def force_until(self, pred):
        while not pred():
            th, c = self.q.pop(0)
            th()

    def drain(self):
        while self.q:
            self.q.pop(0)[0]()


def srd(k, d, lo, hi, nbytes):
    k.e(f"s_mov_b32 s{d}, s{lo}")
    k.e(f"s_mov_b32 s{d+1}, s{hi}")
    k.e(f"s_mov_b32 s{d+2}, {nbytes}")
    k.e(f"s_mov_b32 s{d+3}, 0x00020000")


def vr(b, n=4):
    return f"v[{b}:{b+n-1}]"


def ar(b, n=4):
    return f"a[{b}:{b+n-1}]"


S_WAVE, S_RB, S_FG = 32, 33, 34
S_WBASE, S_STBASE, S_M0W, S_T0, S_T1, S_T2 = 36, 37, 39, 40, 41, 42
S_FQ, S_I3, S_I2, S_IDX = 43, 44, 45, 51
S_XS = 64
S_NONCE = 68
S_XW = 38
XB = 131072

V_XL, V_XL2 = 36, 37
V_XWE, V_XWO = 38, 31
V_XR = 32
V_L16 = 39


S_PX, S_PW = 3, 35


def advance(k, sc, targets):
    k.e(f"s_add_u32 s{sc}, s{sc}, 1")
    k.e(f"s_cmp_eq_u32 s{sc}, 9")
    k.e(f"s_cselect_b32 s{sc}, 0, s{sc}")
    steps = sorted(set(st for _, st in targets))
    for st in steps:
        k.e(f"s_mov_b32 s{S_T0}, {st}")
        k.e(f"s_cselect_b32 s{S_T0}, {(-8*st) & 0xFFFFFFFF}, s{S_T0}")
        for (r, st2) in targets:
            if st2 == st:
                k.e(f"s_lshl1_add_u32 s{r}, 0, s{r}") if False else None
        if len(steps) == 1:
            for (r, st2) in targets:
                k.e(f"s_add_u32 s{r}, s{r}, s{S_T0}")
        else:
            k.e(f"s_mov_b32 s{S_T0 + 1 + steps.index(st)}, s{S_T0}")
    if len(steps) > 1:
        for (r, st2) in targets:
            k.e(f"s_add_u32 s{r}, s{r}, s{S_T0 + 1 + steps.index(st2)}")


def x_load(k, s, p, dst):
    v = V_XL if p % 2 == 0 else V_XL2
    if p == 0 and s > 0:
        advance(k, S_PX, [(S_XS + i, 128) for i in range(4)])
    k.vmop(f"buffer_load_dwordx4 {dst}, v{v}, s[8:11], s{S_XS + p//2} offen", ("x", s))


def x_write(k, s, p, src):
    v = V_XWE if p % 2 == 0 else V_XWO
    k.lgop(f"ds_write_b128 v{v}, {src} offset:{p*1024}", ("xw", s))


def x_read(k, s, ksl, rt, dst):
    k.lgop(f"ds_read_b128 {dst}, v{V_XR+ksl} offset:{rt*4096}", ("xf", 4 * s + ksl, rt))


def prologue(k, P):
    k.e("s_cmp_ge_u32 s2, 256")
    k.e("s_cbranch_scc1 L_END")
    k.stamp()
    k.e("s_load_dwordx4 s[4:7], s[0:1], 0")
    k.e("s_load_dwordx4 s[24:27], s[0:1], 32")
    k.e("s_load_dwordx4 s[52:55], s[0:1], 48")
    k.e("s_load_dwordx4 s[28:31], s[0:1], 64")
    k.e("s_load_dwordx2 s[58:59], s[0:1], 80")
    k.e("s_load_dwordx2 s[56:57], s[0:1], 16")
    k.e("v_lshrrev_b32 v1, 6, v0")
    k.e("v_and_b32 v0, 63, v0")
    k.e("v_lshrrev_b32 v2, 3, v0")
    k.e(f"v_readfirstlane_b32 s{S_WAVE}, v1")
    k.e("v_and_b32 v3, 7, v0")
    k.e("v_mul_u32_u24 v7, 1152, v2")
    k.e(f"v_lshl_add_u32 v{V_XL}, v3, 4, v7")
    k.e(f"v_add_u32 v{V_XL2}, {8*1152}, v{V_XL}")
    k.e("s_and_b32 s50, s2, 7")
    k.e(f"s_lshr_b32 s{S_IDX}, s2, 3")
    if P["vidx"]:
        k.e(f"s_lshr_b32 s46, s{S_IDX}, 2")
        k.e(f"s_and_b32 s47, s{S_IDX}, 3")
        k.e("s_mul_i32 s48, s46, 3")
        k.e("s_add_u32 s48, s48, s47")
        k.e("s_add_u32 s46, s46, 24")
        k.e("s_cmp_eq_u32 s47, 3")
        k.e(f"s_cselect_b32 s{S_IDX}, s46, s48")
    k.e("s_and_b32 s46, s50, 1")
    k.e(f"s_lshr_b32 s{S_FQ}, s50, 1")
    k.e(f"s_lshl_b32 s{S_RB}, s46, 2")
    k.e(f"s_and_b32 s{S_I3}, s{S_IDX}, 3")
    k.e(f"s_add_u32 s{S_RB}, s{S_RB}, s{S_I3}")
    k.e(f"s_lshr_b32 s{S_I2}, s{S_IDX}, 2")
    k.e(f"s_lshl_b32 s47, s{S_RB}, 2")
    k.e(f"s_add_u32 s47, s47, s{S_WAVE}")
    k.e(f"s_mul_i32 s{S_XS}, s47, {64*1152}")
    k.e(f"s_lshl_b32 s{S_PX}, s{S_I3}, 1")
    k.e(f"s_add_u32 s{S_PX}, s{S_PX}, s{S_I2}")
    if not P["rot"]:
        k.e(f"s_mov_b32 s{S_PX}, 0")
    k.e(f"s_sub_u32 s47, s{S_PX}, 9")
    k.e(f"s_cmp_ge_u32 s{S_PX}, 9")
    k.e(f"s_cselect_b32 s{S_PX}, s47, s{S_PX}")
    k.e(f"s_mov_b32 s{S_PW}, s{S_PX}")
    k.e(f"s_lshl_b32 s47, s{S_PX}, 7")
    k.e(f"s_add_u32 s{S_XS}, s{S_XS}, s47")
    for i in range(1, 4):
        k.e(f"s_add_u32 s{S_XS+i}, s{S_XS}, {i*16*1152}")
    k.e(f"s_lshl_b32 s{S_XW}, s{S_WAVE}, 13")
    k.e(f"s_add_u32 s{S_XW}, s{S_XW}, {XB}")
    if P["ctouch"]:
        k.e("s_getpc_b64 s[60:61]")
        k.label("L_PC")
        k.e(f"s_sub_u32 s60, s60, L_PC-{NAME}_kernel")
        k.e("s_subb_u32 s61, s61, 0")
        k.e(f"s_mov_b32 s62, L_CODE_END-{NAME}_kernel")
        k.e("s_mov_b32 s63, 0x00020000")
        k.e("s_lshr_b32 s46, s2, 3")
        k.e(f"s_lshl_b32 s47, s{S_WAVE}, 5")
        k.e("s_add_u32 s46, s46, s47")
        k.e("s_lshl_b32 s46, s46, 10")
        k.e("v_and_b32 v4, 7, v0")
        k.e("v_lshlrev_b32 v4, 7, v4")
        k.vmop("buffer_load_dword v1, v4, s[60:63], s46 offen", ("ctouch",))
    k.e("s_waitcnt lgkmcnt(0)")
    srd(k, 8, 4, 5, 2048 * 1152)
    k.e(f"s_cmp_ge_u32 s{S_IDX}, 24")
    k.e("s_cbranch_scc1 L_QKV")


def common2(k):
    srd(k, 16, 58, 59, WS_BYTES)
    k.e("v_lshrrev_b32 v2, 3, v0")
    k.e("v_and_b32 v3, 7, v0")
    k.e("v_lshrrev_b32 v4, 1, v2")
    k.e("v_xor_b32 v5, v3, v4")
    k.e("v_xor_b32 v6, 4, v5")
    k.e("v_lshlrev_b32 v7, 7, v2")
    k.e(f"v_add_u32 v7, s{S_XW}, v7")
    k.e(f"v_lshl_add_u32 v{V_XWE}, v5, 4, v7")
    k.e(f"v_lshl_add_u32 v{V_XWO}, v6, 4, v7")
    k.e("v_and_b32 v2, 31, v0")
    k.e("v_lshrrev_b32 v3, 5, v0")
    k.e("v_bfe_u32 v4, v2, 1, 3")
    k.e("v_lshlrev_b32 v5, 7, v2")
    k.e(f"v_add_u32 v5, s{S_XW}, v5")
    for ksl in range(4):
        k.e(f"v_add_u32 v6, {2*ksl}, v3")
        k.e("v_xor_b32 v6, v6, v4")
        k.e(f"v_lshl_add_u32 v{V_XR+ksl}, v6, 4, v5")
    k.e(f"v_lshlrev_b32 v{V_L16}, 4, v0")


def nonce_create(k):
    srd(k, 20, 30, 31, 256)
    k.e(f"s_or_b32 s46, s2, s{S_WAVE}")
    k.e("s_cmp_lg_u32 s46, 0")
    k.e("s_cbranch_scc1 L_NONCE_SKIP")
    k.e("s_memrealtime s[46:47]")
    k.e("s_waitcnt lgkmcnt(0)")
    k.e("s_or_b32 s46, s46, 1")
    k.e("v_mov_b32 v4, s46")
    k.e("v_mov_b32 v5, 0")
    k.e("s_mov_b64 exec, 1")
    k.e("buffer_store_dword v4, v5, s[20:23], 0 offen sc0 sc1")
    k.e("s_mov_b64 exec, -1")
    k.label("L_NONCE_SKIP")


def nonce_issue(k, vbase):
    srd(k, 20, 30, 31, 256)
    k.e(f"v_mov_b32 v{vbase+1}, 0")
    k.vmop(f"buffer_load_dword v{vbase}, v{vbase+1}, s[20:23], 0 offen sc0 sc1", ("nonce",))


def nonce_get(k, vbase):
    lbl = f"L_NG{k.n}"
    k.need(vm=("nonce",))
    k.e(f"s_mov_b32 s69, {SPIN_MAX}")
    k.label(lbl)
    k.e(f"v_readfirstlane_b32 s{S_NONCE}, v{vbase}")
    k.e("s_nop 3")
    k.e(f"s_cmp_lg_u32 s{S_NONCE}, 0")
    k.e(f"s_cbranch_scc1 {lbl}_D")
    k.e("s_sub_u32 s69, s69, 1")
    k.e("s_cmp_eq_u32 s69, 0")
    k.e(f"s_cbranch_scc1 {lbl}_D")
    k.e("s_sleep 4")
    k.e(f"buffer_load_dword v{vbase}, v{vbase+1}, s[20:23], 0 offen sc0 sc1")
    k.e("s_waitcnt vmcnt(0)")
    k.e(f"s_branch {lbl}")
    k.label(lbl + "_D")


def publish(k, s_flag_off, vt, tag):
    lbl = f"L_PUB{k.n}"
    k.need(vm=tag)
    k.e("s_barrier")
    k.e(f"s_cmp_lg_u32 s{S_WAVE}, 0")
    k.e(f"s_cbranch_scc1 {lbl}")
    k.e(f"v_mov_b32 v{vt}, s{S_NONCE}")
    k.e(f"v_mov_b32 v{vt+1}, 0")
    k.e("s_mov_b64 exec, 1")
    k.e(f"buffer_store_dword v{vt}, v{vt+1}, s[16:19], s{s_flag_off} offen sc0 sc1")
    k.e("s_mov_b64 exec, -1")
    k.label(lbl)


def poll(k, s_line_off, nflags, vt):
    lbl = f"L_POLL{k.n}"
    k.e(f"v_lshlrev_b32 v{vt}, 2, v0")
    k.e(f"s_mov_b32 s69, {SPIN_MAX}")
    k.e(f"s_mov_b64 exec, {(1 << nflags) - 1}")
    k.label(lbl)
    k.e(f"buffer_load_dword v{vt+1}, v{vt}, s[16:19], s{s_line_off} offen sc0 sc1")
    k.e("s_waitcnt vmcnt(0)")
    k.e(f"v_cmp_ne_u32 vcc, s{S_NONCE}, v{vt+1}")
    k.e("s_sub_u32 s69, s69, 1")
    k.e("s_nop 4")
    k.e(f"s_cbranch_vccz {lbl}_D")
    k.e("s_cmp_eq_u32 s69, 0")
    k.e(f"s_cbranch_scc1 {lbl}_D")
    k.e("s_sleep 2")
    k.e(f"s_branch {lbl}")
    k.label(lbl + "_D")
    k.e("s_mov_b64 exec, -1")
    k.vm_done = len(k.vm)


def flag_store(k, s_off, imm, vt):
    k.e(f"v_mov_b32 v{vt}, s{S_NONCE}")
    k.e(f"v_mov_b32 v{vt+1}, 0")
    k.e("s_mov_b64 exec, 1")
    k.vmop(f"buffer_store_dword v{vt}, v{vt+1}, s[16:19], s{s_off} offen offset:{imm} sc0 sc1", ("flag",))
    k.e("s_mov_b64 exec, -1")


def flag_load(k, s_line_off, imm, vt, tag):
    k.e(f"v_and_b32 v{vt}, 15, v0")
    k.e(f"v_lshlrev_b32 v{vt}, 2, v{vt}")
    k.vmop(f"buffer_load_dword v{vt+1}, v{vt}, s[16:19], s{s_line_off} offen offset:{imm} sc0 sc1", tag)


def flag_check(k, s_line_off, imm, nflags, vt, tag):
    lbl = f"L_FC{k.n}"
    k.need(vm=tag)
    k.e(f"s_mov_b32 s69, {SPIN_MAX}")
    k.e(f"s_mov_b64 exec, {(1 << nflags) - 1}")
    k.label(lbl)
    k.e(f"v_cmp_ne_u32 vcc, s{S_NONCE}, v{vt+1}")
    k.e("s_sub_u32 s69, s69, 1")
    k.e("s_nop 4")
    k.e(f"s_cbranch_vccz {lbl}_D")
    k.e("s_cmp_eq_u32 s69, 0")
    k.e(f"s_cbranch_scc1 {lbl}_D")
    k.e("s_sleep 2")
    k.e(f"buffer_load_dword v{vt+1}, v{vt}, s[16:19], s{s_line_off} offen offset:{imm} sc0 sc1")
    k.e("s_waitcnt vmcnt(0)")
    k.e(f"s_branch {lbl}")
    k.label(lbl + "_D")
    k.e("s_mov_b64 exec, -1")
    k.e("s_nop 3")


def phaseA_mlp(k, P, B):
    DELTA, D, R, NB, RA = P["delta"], P["D"], P["R"], 4, P["ra"]
    assert R * 4096 <= XB
    BI = P["bi"]
    assert R >= D + 3 * DELTA + BI + 1
    V_AF = 8
    V_WA, V_WB2 = 24, 40
    V_WD = 28
    V_T = 44
    V_XF = 64
    V_ACC = 96

    def xf(ks, rt):
        if ks < 32:
            return ar((ks * 2 + rt) * 4)
        return vr(V_XF + ((ks - 32) * 2 + rt) * 4)

    def xq(s, p):
        return xf(4 * s + p // 2, p % 2)

    def acc(slot, rt):
        return V_ACC + (slot * 2 + rt) * 16

    k.c("---------------- phase A: MLP path ----------------")
    nonce_create(k)
    for p in range(8):
        x_load(k, 0, p, xq(0, p))
    k.e(f"s_mul_i32 s{S_FG}, s{S_FQ}, 6")
    k.e(f"s_add_u32 s{S_FG}, s{S_FG}, s{S_I2}")
    k.e(f"s_cmp_ge_u32 s{S_WAVE}, 2")
    k.e("s_cselect_b32 s12, s26, s24")
    k.e("s_cselect_b32 s13, s27, s25")
    k.e(f"s_mov_b32 s14, {576*9216}")
    k.e("s_mov_b32 s15, 0x00020000")
    k.e("v_lshrrev_b32 v2, 3, v0")
    k.e("v_and_b32 v3, 7, v0")
    k.e("v_bfe_u32 v4, v2, 1, 1")
    k.e(f"s_and_b32 s46, s{S_WAVE}, 2")
    k.e("v_or_b32 v4, s46, v4")
    k.e("v_lshlrev_b32 v4, 1, v4")
    k.e("v_xor_b32 v3, v3, v4")
    k.e("s_mov_b32 s47, 9216")
    k.e("v_mul_lo_u32 v2, v2, s47")
    k.e(f"v_lshl_add_u32 v{V_WD}, v3, 4, v2")
    k.e(f"s_and_b32 s46, s{S_WAVE}, 1")
    k.e(f"s_mul_i32 s{S_WBASE}, s46, {8*9216}")
    k.e(f"s_lshl_b32 s47, s{S_FG}, 7")
    k.e(f"s_add_u32 s{S_WBASE}, s{S_WBASE}, s47")
    k.e(f"s_mul_i32 s47, s{S_PW}, {64*9216}")
    k.e(f"s_add_u32 s{S_WBASE}, s{S_WBASE}, s47")
    k.e(f"s_lshl_b32 s{S_M0W}, s{S_WAVE}, 10")

    def dma_w(u):
        c, ks = divmod(u, 36)
        slot = u % R
        def f():
            if u > 0 and u % 4 == 0:
                advance(k, S_PW, [(S_WBASE, 64 * 9216)])
            k.e(f"s_add_u32 m0, s{S_M0W}, {slot*4096}")
            k.e(f"s_add_u32 s{S_T1}, s{S_WBASE}, {(ks%4)*16*9216 + c*24*128}")
            k.vmop(f"buffer_load_dwordx4 v{V_WD}, s[12:15], s{S_T1} offen lds", ("w", u))
        return f

    NX0 = P["nx0"]
    D0 = min(P["d0"], D)
    wi = 0
    for s in range(1, NX0 + 1):
        for u in range(wi, min(D0, wi + 4)):
            dma_w(u)()
        wi = min(D0, wi + 4)
        if s < NX0:
            for p in range(8):
                x_load(k, s, p, xq(s, p))
    for u in range(wi, D0):
        dma_w(u)()
    next_w = D0
    common2(k)
    k.e("v_lshrrev_b32 v2, 4, v0")
    k.e("v_bfe_u32 v3, v0, 2, 2")
    k.e("v_and_b32 v4, 3, v0")
    k.e("v_lshrrev_b32 v5, 1, v4")
    k.e("v_lshrrev_b32 v6, 1, v2")
    k.e("v_lshl_add_u32 v6, v6, 3, v3")
    k.e("v_lshlrev_b32 v6, 7, v6")
    k.e("v_lshl_add_u32 v6, v5, 11, v6")
    k.e("v_and_b32 v7, 1, v4")
    k.e("v_lshl_add_u32 v6, v7, 4, v6")
    k.e("v_and_b32 v7, 1, v2")
    k.e("v_lshl_add_u32 v6, v7, 3, v6")
    k.e("v_lshrrev_b32 v7, 1, v3")
    k.e("v_lshl_or_b32 v7, v5, 1, v7")
    for j in range(4):
        k.e(f"v_xor_b32 v5, {j}, v7")
        k.e(f"v_lshl_add_u32 v{V_WA+j}, v5, 5, v6")
        k.e(f"v_add_u32 v{V_WB2+j}, 0x10000, v{V_WA+j}")
    k.e(f"s_lshl_b32 s46, s{S_RB}, 3")
    k.e(f"s_lshl_b32 s47, s{S_WAVE}, 1")
    k.e("s_add_u32 s46, s46, s47")
    k.e(f"s_mul_i32 s46, s46, {NKB}")
    k.e(f"s_mul_i32 s47, s{S_FQ}, 72")
    k.e("s_add_u32 s46, s46, s47")
    k.e(f"s_lshl_b32 s47, s{S_I2}, 2")
    k.e("s_add_u32 s46, s46, s47")
    k.e("s_add_u32 s46, s46, 36")
    k.e(f"s_lshl_b32 s{S_STBASE}, s46, 10")

    def aread(i, j, u, half):
        slot = u % R
        off = slot * 4096 + half * 512
        base = V_WA + j
        if off >= 65536:
            off -= 65536
            base = V_WB2 + j
        d = V_AF + (i % NB) * 4 + half * 2
        k.lgop(f"ds_read_b64_tr_b16 {vr(d,2)}, v{base} offset:{off}", ("af", i, half))

    def epilogue(n):
        c, j = divmod(n, 4)
        slot = n % 5
        ops = []
        for rt in range(2):
            a = acc(slot, rt)
            tb = V_T
            pk = V_T + 8 + rt * 4
            gi = [a + 0, a + 1, a + 2, a + 3, a + 8, a + 9, a + 10, a + 11]
            ui = [a + 4, a + 5, a + 6, a + 7, a + 12, a + 13, a + 14, a + 15]
            for h in range(8):
                ops.append(f"v_mul_f32 v{tb+h}, 0x{f2u(-LOG2E):08x}, v{gi[h]}")
            for h in range(8):
                ops.append(f"v_exp_f32 v{tb+h}, v{tb+h}")
            for h in range(8):
                ops.append(f"v_add_f32 v{tb+h}, 1.0, v{tb+h}")
            for h in range(8):
                ops.append(f"v_rcp_f32 v{tb+h}, v{tb+h}")
            for h in range(8):
                ops.append(f"v_mul_f32 v{tb+h}, v{tb+h}, v{ui[h]}")
            for h in range(4):
                ops.append(f"v_cvt_pk_bf16_f32 v{pk+h}, v{tb+2*h}, v{tb+2*h+1}")
            off = (rt * NKB + 24 * c + j) * 1024
            ops.append(("st", f"s_add_u32 s{S_T2}, s{S_STBASE}, {off}",
                        f"buffer_store_dwordx4 {vr(pk)}, v{V_L16}, s[16:19], s{S_T2} offen sc0 sc1"))
        return ops

    NU = 108
    T_F0, T_F1 = 60, 96
    T_TOUCH = P["ttouch"]
    sched = {}
    for j in range(4):
        for u in range(NU):
            if u < 36 and P["spread"]:
                t = -(-u * (36 + j * DELTA) // 36)
            else:
                t = u + j * DELTA
            sched.setdefault(t, []).append((t, j, u))
    pairs = []
    for t in range(NU + 3 * DELTA):
        pairs.extend(sched[t])
    first_of_step, npairs_in_step = {}, {}
    for i, (t, j, u) in enumerate(pairs):
        first_of_step.setdefault(t, i)
        npairs_in_step[t] = npairs_in_step.get(t, 0) + 1

    fill = []
    vq = Paced(P["vrate"], P["vcap"], k)
    epi = []
    visible = -1
    issued_reads = 0
    last_mfma_n = {}

    def x_convert(s):
        th = []
        def wx():
            vq.force_until(lambda: k.vm.count(("x", s)) == 8)
            k.need(vm=("x", s))
        th.append(wx)
        for p in range(8):
            th.append(lambda p=p: x_write(k, s, p, xq(s, p)))
        for ksl in range(4):
            for rt in range(2):
                th.append(lambda ksl=ksl, rt=rt: x_read(k, s, ksl, rt, xf(4 * s + ksl, rt)))
        return th

    def run_fill(th):
        if k.lg_out() >= 13:
            k.need(lg=k.lg[k.lg_done + 4])
        th()

    xc0 = x_convert(0)
    run_fill(xc0[0])
    next_x = NX0
    for s_ in range(NX0, NX0 + P["nx1"]):
        for p in range(8):
            x_load(k, s_, p, xq(s_, p))
        next_x += 1
        for u in range(next_w, min(next_w + 4, D, P["d1"])):
            dma_w(u)()
        next_w = max(next_w, min(next_w + 4, D, P["d1"]))
    for th in xc0[1:]:
        run_fill(th)
    k.need(vm=("w", 0))
    k.e("s_barrier")
    visible = 0

    def emit_epi(nmax, upto_inst=None):
        cnt = 0
        while epi and (cnt < nmax if upto_inst is None else epi[0][0] <= upto_inst):
            n, o = epi.pop(0)
            gap = k.n - last_mfma_n[n]
            if gap < 13:
                k.e(f"s_nop {min(15, 13 - gap)}")
            if isinstance(o, tuple):
                k.e(o[1])
                k.vmop(o[2], ("st", n))
                cnt += 2
            else:
                k.e(o)
                cnt += 1

    def issue_reads_upto(i_target):
        nonlocal issued_reads
        while issued_reads <= i_target and issued_reads < len(pairs):
            t, j, u = pairs[issued_reads]
            if u > visible:
                break
            if k.lg_out() >= 13:
                k.need(lg=k.lg[k.lg_done + 4])
            aread(issued_reads, j, u, 0)
            aread(issued_reads, j, u, 1)
            issued_reads += 1

    def ensure(lst, tag):
        while tag not in lst:
            run_fill(fill.pop(0))

    epi_start = {}
    for i, (t, j, u) in enumerate(pairs):
        if u % 36 == 35:
            epi_start[i + 3] = (u // 36) * 4 + j

    post_bar_q = []

    def do_barrier(t, upto):
        nonlocal visible
        if upto is None:
            vq.force_until(lambda: k.vm.count(("bw", B.BI)) == 3)
            k.need(vm=("bw", B.BI))
            k.e("s_barrier")
            return
        vq.force_until(lambda: ("w", upto) in k.vm)
        k.need(vm=("w", upto))
        if t in (T_F0, T_F1):
            n_last = 3 if t == T_F0 else 7
            assert k.vm.count(("st", n_last)) == 2
            k.need(vm=("st", n_last))
        k.e("s_barrier")
        visible = upto
        if t in (T_F0, T_F1):
            flag_store(k, 50, 64 if t == T_F0 else 32, 60)

    for i, (t, j, u) in enumerate(pairs):
        if first_of_step[t] == i:
            if t in (0, 12, 36):
                k.stamp()
            pending_bar = None
            bi = BI if t >= P["bi_from"] else 1
            if t % bi == 0 and t + 1 < NU + bi:
                pending_bar = (t, min(t + bi, NU - 1))
            if t == 116:
                pending_bar = (t, None)
            if pending_bar and (visible < t or not P["bar_late"]):
                do_barrier(*pending_bar)
                pending_bar = None
            lead = D if t >= 36 else min(D, P["dfirst"])
            for _ in range(2):
                if next_w <= t + lead and next_w < NU:
                    vq.add(dma_w(next_w), 19)
                    next_w += 1
            if (t + P["xlead"]) % 4 == 0 and 1 <= (t + P["xlead"]) // 4 <= 8:
                s = (t + P["xlead"]) // 4
                assert next_x > s, (t, s, next_x)
                fill.extend(x_convert(s))
            if next_x <= 8:
                XP = P["xper"]
                nst = 8 // XP
                for p in range(XP * (t % nst), XP * (t % nst) + XP):
                    vq.add(lambda s=next_x, p=p: x_load(k, s, p, xq(s, p)), 19)
                if t % nst == nst - 1:
                    next_x += 1
            if t == 38:
                vq.add(lambda: nonce_issue(k, 60), 10)
            if t == T_TOUCH - 4:
                fill.extend(B.setup_thunks(2))
            if t == T_F0 - 3:
                fill.append(lambda: nonce_get(k, 60))
                def fl():
                    k.e(f"s_lshl_b32 s48, s{S_RB}, 2")
                    k.e(f"s_add_u32 s48, s48, s{S_FQ}")
                    k.e("s_lshl_b32 s48, s48, 7")
                    k.e(f"s_add_u32 s48, s48, {FLAG_OFF}")
                    k.e(f"s_lshl_b32 s46, s{S_I2}, 2")
                    k.e("s_add_u32 s50, s46, s48")
                fill.append(fl)
            def up(x):
                return -(-x // BI) * BI + 1
            bw_sched = {}
            for st_, tt in ((0, 88), (1, 88), (2, 92), (3, 95), (4, 98), (5, 101), (6, 104)):
                bw_sched.setdefault(up(tt), []).append(st_)
            for st in bw_sched.get(t, []):
                if st >= B.DW:
                    continue
                for ii in range(3):
                    vq.add(lambda st=st, ii=ii: B.dma_w(st, ii), 19)
            if t == 90:
                vq.add(lambda: flag_load(k, 48, 64, 62, ("fl0",)), 10)
            if t == P["tb0"]:
                vq.force_until(lambda: ("fl0",) in k.vm)
                flag_check(k, 48, 64, 6, 62, ("fl0",))
                for st in range(B.DB):
                    vq.add(lambda st=st: B.load_b(st, 0), 19)
                    vq.add(lambda st=st: B.load_b(st, 1), 19)
            if t == T_TOUCH:
                def touch2():
                    k.e("v_mul_u32_u24 v2, 7282, v0")
                    k.e("v_lshrrev_b32 v2, 16, v2")
                    k.e("v_mul_u32_u24 v3, 9, v2")
                    k.e("v_sub_u32 v3, v0, v3")
                    k.e("v_min_u32 v2, 3, v2")
                    k.e("v_mul_u32_u24 v2, 1152, v2")
                    k.e("v_lshl_add_u32 v2, v3, 7, v2")
                    k.e(f"s_lshl_b32 s46, s{S_IDX}, 2")
                    k.e(f"s_add_u32 s46, s46, s{S_WAVE}")
                    k.e(f"s_mul_i32 s47, s{S_FQ}, 96")
                    k.e("s_add_u32 s46, s46, s47")
                    k.e(f"s_mul_i32 s46, s46, {4*1152}")
                    for c in range(3):
                        k.vmop(f"buffer_load_dword v{4+c}, v2, s[60:63], s46 offen", ("touch",))
                        if c < 2:
                            k.e(f"s_add_u32 s46, s46, {1536*1152}")
                assert not fill
                if P["touch2"]:
                    vq.add(touch2, 40)
            gaps_left = 2 * npairs_in_step[t]
        if i in epi_start:
            n_ = epi_start[i]
            epi.extend((n_, o) for o in epilogue(n_))
        c, ks = divmod(u, 36)
        n = c * 4 + j
        slot = n % 5
        if ks == 0 and n >= 5:
            assert all(v != n - 5 or key <= i for key, v in epi_start.items())
            emit_epi(0, upto_inst=n - 5)
        af = vr(V_AF + (i % NB) * 4)
        issue_reads_upto(i)
        assert issued_reads > i
        needs_lg = [("af", i, 1)]
        if c == 0 and j == 0:
            ensure(k.lg, ("xf", ks, 1))
            needs_lg += [("xf", ks, 0), ("xf", ks, 1)]
        k.need(lg=needs_lg)
        for rt in range(2):
            a = acc(slot, rt)
            cin = "0" if ks == 0 else vr(a, 16)
            k.e(f"v_mfma_f32_32x32x16_bf16 {vr(a,16)}, {af}, {xf(ks,rt)}, {cin}")
            last_mfma_n[n] = k.n
            if rt == 0 and pending_bar:
                do_barrier(*pending_bar)
                pending_bar = None
            if rt == 0:
                issue_reads_upto(i + RA)
            nf = -(-len(fill) // gaps_left)
            gaps_left -= 1
            cnt = 0
            while fill and cnt < nf:
                if k.lg_out() >= 10:
                    break
                fill.pop(0)()
                cnt += 1
            vq.gap()
            emit_epi(P["epg"])
    while fill:
        run_fill(fill.pop(0))
    k.stamp()
    for i in sorted(epi_start):
        if i >= len(pairs):
            n_ = epi_start[i]
            epi.extend((n_, o) for o in epilogue(n_))
    emit_epi(0, upto_inst=9)
    F2_ST = P["f2st"]

    def pre_bar(st):
        if st == F2_ST:
            emit_epi(100000)
            k.need(vm=("st", 11))

    def post_bar(st):
        if st == F2_ST:
            flag_store(k, 50, 0, 60)
            k.stamp()
        if st == 12 - B.DB - 2:
            vq.add(lambda: flag_load(k, 48, 32, 2, ("fl1",)), 10)
        if st == 12 - B.DB:
            vq.force_until(lambda: ("fl1",) in k.vm)
            flag_check(k, 48, 32, 6, 2, ("fl1",))
        if st == 24 - B.DB - 2:
            vq.add(lambda: flag_load(k, 48, 0, 2, ("fl2",)), 10)
        if st == 24 - B.DB:
            vq.force_until(lambda: ("fl2",) in k.vm)
            flag_check(k, 48, 0, 6, 2, ("fl2",))
            k.stamp()

    B.main(B.BI, vq=vq, gap_cb=lambda: emit_epi(P["epg"]), pre_bar=pre_bar, post_bar=post_bar)


def phaseA_qkv(k, P):
    k.label("L_QKV")
    k.c("---------------- phase A: QKV + attention path ----------------")
    NST = 4
    WST = 28672
    HB = NST * WST
    GB = HB + NST * 2048
    assert GB + 2048 <= XB
    PITCH = 448
    V_WD = 40
    V_TA = 47
    V_HA = 54
    V_HB = 57
    V_GW = 59
    V_HW = 60
    V_HV = 63
    V_GA = 64
    V_AF = 68
    V_TA2 = 84
    V_HA2 = 91
    V_XF = 96
    V_GF = 224
    V_HAF = 232
    V_HBF = 244
    NXS = 4

    def xfr(s, ksl, rt):
        return V_XF + ((s % NXS) * 8 + ksl * 2 + rt) * 4

    def xq(s, p):
        return vr(V_XF + ((s % NXS) * 8 + p) * 4)

    for p in range(8):
        x_load(k, 0, p, xq(0, p))
    k.e(f"s_lshl_b32 s{S_FG}, s{S_FQ}, 1")
    k.e(f"s_add_u32 s{S_FG}, s{S_FG}, s{S_I2}")
    k.e(f"s_sub_u32 s{S_FG}, s{S_FG}, 6")
    srd(k, 12, 6, 7, 576 * 3456)
    k.e(f"s_mul_i32 s46, s{S_WAVE}, {7*64}")
    k.e(f"s_mul_i32 s47, s{S_FG}, 144")
    k.e("s_mov_b32 s48, 3456")
    k.e(f"s_mul_i32 s{S_M0W}, s{S_WAVE}, {7*1024}")
    k.e(f"s_mul_i32 s{S_WBASE}, s{S_PW}, {64*3456}")
    k.e(f"s_lshl_b32 s{S_STBASE}, s{S_PW}, 7")

    def dma_w(s, ii):
        st = s % NST
        def f():
            if ii == 0 and s > 0:
                advance(k, S_PW, [(S_WBASE, 64 * 3456), (S_STBASE, 128)])
            k.e(f"s_add_u32 m0, s{S_M0W}, {st*WST + ii*1024}")
            k.e("s_nop 0")
            k.vmop(f"buffer_load_dwordx4 v{V_WD+ii}, s[12:15], s{S_WBASE} offen lds", ("w", s))
        return f

    for ii in range(7):
        k.e(f"v_add_u32 v2, s46, v0")
        k.e(f"v_add_u32 v2, {64*ii}, v2")
        k.e("v_mul_u32_u24 v3, 2341, v2")
        k.e("v_lshrrev_b32 v3, 16, v3")
        k.e("v_mul_u32_u24 v4, 28, v3")
        k.e("v_sub_u32 v4, v2, v4")
        k.e("v_mul_u32_u24 v5, 57, v4")
        k.e("v_lshrrev_b32 v5, 9, v5")
        k.e("v_mul_u32_u24 v6, 9, v5")
        k.e("v_sub_u32 v6, v4, v6")
        k.e("v_mul_lo_u32 v7, v3, s48")
        k.e("v_mul_u32_u24 v5, 1152, v5")
        k.e("v_add3_u32 v7, v7, v5, s47")
        k.e(f"v_lshl_add_u32 v{V_WD+ii}, v6, 4, v7")
        k.e("v_cmp_eq_u32 vcc, 27, v4")
        k.e("v_mov_b32 v4, 0x7ff00000")
        k.e("s_nop 0")
        k.e(f"v_cndmask_b32 v{V_WD+ii}, v{V_WD+ii}, v4, vcc")
        dma_w(0, ii)()
    k.e(f"s_and_b32 s46, s{S_WAVE}, 1")
    k.e("v_lshrrev_b32 v2, 3, v0")
    k.e("v_and_b32 v3, 7, v0")
    k.e("v_lshrrev_b32 v4, 1, v2")
    k.e("s_lshl_b32 s47, s46, 2")
    k.e("v_or_b32 v4, s47, v4")
    k.e("v_xor_b32 v3, v3, v4")
    k.e("v_mul_u32_u24 v7, 1152, v2")
    k.e("v_lshl_add_u32 v7, v3, 4, v7")
    k.e(f"s_lshl_b32 s47, s{S_RB}, 8")
    k.e("s_lshl_b32 s48, s46, 3")
    k.e("s_add_u32 s47, s47, s48")
    k.e("s_sub_u32 s47, s47, 16")
    k.e("s_mul_i32 s47, s47, 1152")
    k.e(f"v_add_u32 v{V_HV}, s47, v7")
    k.e("s_lshl_b32 s49, s46, 10")
    k.e(f"s_add_u32 s49, s49, {HB}")

    def dma_h(s):
        st = s % NST
        def f():
            k.e(f"s_add_u32 m0, s49, {st*2048}")
            k.e("s_nop 0")
            k.vmop(f"buffer_load_dwordx4 v{V_HV}, s[8:11], s{S_STBASE} offen lds", ("w", s))
        return f

    k.e(f"v_lshlrev_b32 v{V_L16}, 4, v0")
    dma_h(0)()
    for s in range(1, 3):
        for p in range(8):
            x_load(k, s, p, xq(s, p))
        for ii in range(7):
            dma_w(s, ii)()
        dma_h(s)()
    for p in range(8):
        x_load(k, 3, p, xq(3, p))
    common2(k)
    k.e("v_lshrrev_b32 v2, 4, v0")
    k.e("v_bfe_u32 v3, v0, 2, 2")
    k.e("v_and_b32 v4, 3, v0")
    k.e("v_lshrrev_b32 v5, 1, v2")
    k.e("v_lshl_add_u32 v5, v5, 3, v3")
    k.e(f"v_mul_u32_u24 v5, {PITCH}, v5")
    k.e("v_and_b32 v6, 1, v2")
    k.e("v_lshl_add_u32 v5, v6, 5, v5")
    k.e(f"v_lshl_add_u32 v{V_TA}, v4, 3, v5")
    k.e(f"v_add_u32 v{V_TA2}, {2*WST}, v{V_TA}")
    k.e("v_lshl_add_u32 v5, v2, 3, v3")
    k.e(f"v_mul_u32_u24 v5, {PITCH}, v5")
    k.e("v_lshl_add_u32 v5, v4, 3, v5")
    k.e("v_and_b32 v10, 15, v0")
    k.e("v_mul_u32_u24 v10, 592, v10")
    k.e("v_lshl_add_u32 v10, v2, 4, v10")
    for i in range(3):
        k.e(f"s_mul_i32 s46, s{S_WAVE}, 3")
        k.e(f"s_add_u32 s46, s46, {i}")
        k.e("s_min_u32 s46, s46, 8")
        k.e("s_lshl_b32 s47, s46, 5")
        k.e("s_add_u32 s47, s47, 144")
        k.e(f"v_add_u32 v{V_HA+i}, s47, v5")
        k.e(f"v_add_u32 v{V_HA2+i}, {2*WST}, v{V_HA+i}")
        k.e("s_lshl_b32 s47, s46, 6")
        k.e(f"v_add_u32 v{V_HW+i}, s47, v10")
    k.e("v_and_b32 v5, 15, v0")
    k.e("v_bfe_u32 v6, v5, 1, 3")
    for k32 in range(2):
        k.e(f"v_add_u32 v7, {4*k32}, v2")
        k.e("v_xor_b32 v7, v7, v6")
        k.e("v_lshlrev_b32 v7, 4, v7")
        k.e("v_lshl_add_u32 v7, v5, 7, v7")
        k.e(f"v_add_u32 v{V_HB+k32}, {HB}, v7")

    def aread(i, s, ksl, T, half):
        st = s % NST
        off = (ksl * 16 + half * 4) * PITCH + (st % 2) * WST + 64 * T
        base = (V_TA2 if st >= 2 else V_TA)
        d = V_AF + (i % 4) * 4 + half * 2
        k.lgop(f"ds_read_b64_tr_b16 {vr(d,2)}, v{base} offset:{off}", ("af", i, half))

    def haread(s, k32, i, half):
        st = s % NST
        off = (k32 * 32 + half * 4) * PITCH + (st % 2) * WST
        base = (V_HA2 if st >= 2 else V_HA) + i
        d = V_HAF + i * 4 + half * 2
        k.lgop(f"ds_read_b64_tr_b16 {vr(d,2)}, v{base} offset:{off}", ("haf", s, k32, i, half))

    def accq(T, rt):
        return (T * 2 + rt) * 16
    A_H = 224

    def x_convert(s):
        def wx():
            vq.force_until(lambda: k.vm.count(("x", s)) == 8)
            k.need(vm=("x", s))
        th = [wx]
        for p in range(8):
            th.append(lambda p=p: x_write(k, s, p, xq(s, p)))
        for ksl in range(4):
            for rt in range(2):
                th.append(lambda ksl=ksl, rt=rt: x_read(k, s, ksl, rt, vr(xfr(s, ksl, rt))))
        return th

    vq = Paced(P["vrate"], P["vcap"], k)

    def guard():
        if k.lg_out() >= 13:
            k.need(lg=k.lg[k.lg_done + 4])

    for th in x_convert(0):
        guard()
        th()
    k.need(vm=("w", 0))
    k.e("s_barrier")

    pairs = [(s, ksl, T) for s in range(9) for ksl in range(4) for T in range(7)]
    fill = []
    issued = 0
    visible = 0

    def issue_upto(it):
        nonlocal issued
        while issued <= it and issued < len(pairs):
            s, ksl, T = pairs[issued]
            if s > visible:
                break
            guard()
            aread(issued, s, ksl, T, 0)
            aread(issued, s, ksl, T, 1)
            issued += 1

    for i, (s, ksl, T) in enumerate(pairs):
        ks = 4 * s + ksl
        if ksl == 0 and T == 0:
            if s in (0, 2):
                k.stamp()
            while fill:
                guard()
                fill.pop(0)()
            if s + 1 <= 8:
                vq.force_until(lambda: k.vm.count(("w", s + 1)) == 8)
                k.need(vm=("w", s + 1))
                k.e("s_barrier")
                visible = s + 1
            if s + 3 <= 8:
                for ii in range(7):
                    vq.add(dma_w(s + 3, ii), 33)
                    if s >= 1:
                        vq.add(lambda s=s, p=ii: x_load(k, s + 3, p, xq(s + 3, p)), 19)
                vq.add(dma_h(s + 3), 19)
                if s >= 1:
                    vq.add(lambda s=s: x_load(k, s + 3, 7, xq(s + 3, 7)), 19)
        if ksl == 2 and T == 0 and s + 1 <= 8:
            xc = x_convert(s + 1)
            if "noxw" in P["exp"]:
                xc = xc[:1] + xc[9:]
            fill.extend(xc)
        if s == 7 and ksl == 0 and T == 1:
            def touch3():
                srd(k, 60, 56, 57, 576 * 1152)
                k.e("v_mul_u32_u24 v2, 7282, v0")
                k.e("v_lshrrev_b32 v2, 16, v2")
                k.e("v_mul_u32_u24 v3, 9, v2")
                k.e("v_sub_u32 v3, v0, v3")
                k.e("v_min_u32 v2, 5, v2")
                k.e("v_mul_u32_u24 v2, 1152, v2")
                k.e("v_lshl_add_u32 v2, v3, 7, v2")
                k.e(f"s_sub_u32 s46, s{S_IDX}, 24")
                k.e("s_lshl_b32 s46, s46, 2")
                k.e(f"s_add_u32 s46, s46, s{S_WAVE}")
                k.e(f"s_mul_i32 s46, s46, {18*1152}")
                for z in range(3):
                    k.vmop(f"buffer_load_dword v{4+z}, v2, s[60:63], s46 offen", ("touch",))
                    k.e(f"s_add_u32 s46, s46, {6*1152}")
            if P["touch2"]:
                vq.add(touch3, 40)
        if s == 8 and ksl == 0 and T == 1:
            vq.add(lambda: nonce_issue(k, 252), 10)
        if T == 0:
            guard()
            if ksl % 2 == 0:
                k32 = ksl // 2
                k.lgop(f"ds_read_b128 {vr(V_HBF + k32*4)}, v{V_HB+k32} offset:{(s%NST)*2048}", ("hbf", s, k32))
        issue_upto(i)
        assert issued > i
        need = [("af", i, 1)]
        if T == 0:
            need += [("xf", ks, 0), ("xf", ks, 1)]
        k.need(lg=need)
        af = vr(V_AF + (i % 4) * 4)
        for rt in range(2):
            a = accq(T, rt)
            cin = "0" if ks == 0 else ar(a, 16)
            k.e(f"v_mfma_f32_32x32x16_bf16 {ar(a,16)}, {af}, {vr(xfr(s,ksl,rt))}, {cin}")
            if rt == 0:
                issue_upto(i + 2)
            if fill and k.lg_out() < 9:
                fill.pop(0)()
            vq.gap()
        if ksl % 2 == 0 and T in (1, 2, 3) and "nohalo" not in P["exp"]:
            guard()
            haread(s, ksl // 2, T - 1, 0)
            haread(s, ksl // 2, T - 1, 1)
        if ksl % 2 == 0 and T in (4, 5, 6) and "nohalo" not in P["exp"]:
            k32 = ksl // 2
            hi = T - 4
            k.need(lg=[("haf", s, k32, hi, 1), ("hbf", s, k32)])
            a = A_H + hi * 4
            cin = "0" if ks == 0 else ar(a, 4)
            k.e(f"v_mfma_f32_16x16x32_bf16 {ar(a,4)}, {vr(V_HAF+hi*4)}, {vr(V_HBF+k32*4)}, {cin}")
    while fill:
        guard()
        fill.pop(0)()
    vq.drain()
    k.wait_all(vm=False)
    k.e("s_nop 7")
    k.e("s_nop 7")
    k.e("s_barrier")
    k.stamp()
    k.e("v_and_b32 v2, 31, v0")
    k.e("v_lshrrev_b32 v3, 5, v0")
    k.e(f"s_lshl_b32 s46, s{S_WAVE}, 6")
    k.e("s_add_u32 s46, s46, 16")
    k.need(vm=("touch",)) if P["touch2"] else None
    k.e("v_add_u32 v4, s46, v2")
    k.e("v_mul_u32_u24 v4, 592, v4")
    k.e("v_lshl_add_u32 v8, v3, 4, v4")
    k.e("v_mul_u32_u24 v5, 144, v3")
    k.e("v_add_u32 v4, v4, v5")
    V_Q = 84
    combos = [(T, qq) for T in range(7) for qq in range(4)]
    for rt in range(2):
        for (T, qq) in combos:
            g2 = 8 * T + 2 * qq
            if g2 < 18:
                guard()
                k.lgop(f"ds_write_b128 v8, {ar(accq(T, rt) + qq*4)} offset:{rt*18944 + g2*16}", ("qw",))
    for rt in range(2):
        for g9 in range(9):
            guard()
            k.lgop(f"ds_read_b128 {vr(V_Q + rt*36 + g9*4)}, v4 offset:{rt*18944 + g9*16}", ("qr",))
    for rt in range(2):
        for (T, qq) in combos:
            g2 = 8 * T + 2 * qq
            if 18 <= g2 < 54:
                guard()
                k.lgop(f"ds_write_b128 v8, {ar(accq(T, rt) + qq*4)} offset:{rt*18944 + (g2-18)*16}", ("kvw",))
    for hi in range(3):
        guard()
        k.lgop(f"ds_write_b128 v{V_HW+hi}, {ar(A_H+hi*4)}", ("kvw",))
    sc = (18 ** -0.5) * LOG2E
    k.e(f"s_mov_b32 s46, 0x{f2u(sc):08x}")
    k.need(lg=("qr",))
    for i in range(72):
        k.e(f"v_mul_f32 v{V_Q+i}, s46, v{V_Q+i}")
    k.wait_all()
    nonce_get(k, 252)
    k.e("s_barrier")
    k.stamp()
    k.e(f"s_lshl_b32 s46, s{S_RB}, 2")
    k.e(f"s_add_u32 s46, s46, s{S_WAVE}")
    k.e("s_lshl_b32 s46, s46, 6")
    k.e("v_add_u32 v5, s46, v2")
    k.e(f"v_subrev_u32 v9, {14*592}, v4")
    V_K = 160
    V_L = 232
    V_P = 10
    V_O = 40
    V_SA = 240
    k.e(f"s_mul_i32 s47, s{S_FG}, {9*512}")
    k.e(f"v_mul_u32_u24 v6, {5*512}, v3")
    k.e("v_lshl_add_u32 v7, v2, 4, s47")
    k.e(f"v_add_u32 v{V_SA}, v6, v7")
    k.e(f"v_mul_u32_u24 v6, {NKB*1024}, v3")
    k.e(f"v_add3_u32 v{V_SA+1}, v6, v7, 0")
    k.e(f"v_add_u32 v{V_SA+1}, {4*512}, v{V_SA+1}")
    k.e(f"s_lshl_b32 s46, s{S_RB}, 3")
    k.e(f"s_lshl_b32 s47, s{S_WAVE}, 1")
    k.e("s_add_u32 s46, s46, s47")
    k.e(f"s_mul_i32 s{S_STBASE}, s46, {NKB*1024}")

    def kvread(rt, w, isv, buf):
        off = rt * 18944 + (14 - 2 * w) * 592 + isv * 288
        for g in range(9):
            k.lgop(f"ds_read_b128 {vr(V_K + buf*36 + g*4)}, v9 offset:{off + g*16}", ("kv", rt, w, isv))

    for rt in range(2):
        q = V_Q + rt * 36
        kvread(rt, 0, 0, 0)
        for w in range(8):
            buf = w & 1
            k.need(lg=("kv", rt, w, 0))
            if w + 1 < 8:
                kvread(rt, w + 1, 0, buf ^ 1)
            else:
                kvread(rt, 0, 1, buf ^ 1)
            kb = V_K + buf * 36
            for d in range(9):
                for e in range(2):
                    a = q + e * 18 + 2 * d
                    b = kb + e * 18 + 2 * d
                    l = V_L + e * 4 + (d & 1) * 2
                    if d < 2:
                        k.e(f"v_pk_mul_f32 {vr(l,2)}, {vr(a,2)}, {vr(b,2)}")
                    else:
                        k.e(f"v_pk_fma_f32 {vr(l,2)}, {vr(a,2)}, {vr(b,2)}, {vr(l,2)}")
            for e in range(2):
                k.e(f"v_pk_add_f32 {vr(V_L+e*4,2)}, {vr(V_L+e*4,2)}, {vr(V_L+e*4+2,2)}")
            for e in range(2):
                k.e(f"v_add_f32 v{V_P + e*8 + w}, v{V_L+e*4}, v{V_L+e*4+1}")
        k.e(f"v_add_u32 v26, {32*rt}, v5")
        k.e("v_mov_b32 v27, 0xff7fffff")
        for w in range(1, 8):
            k.e(f"v_cmp_le_u32 vcc, {2*w}, v26")
            k.e("s_nop 1")
            for e in range(2):
                k.e(f"v_cndmask_b32 v{V_P+e*8+w}, v27, v{V_P+e*8+w}, vcc")
        for e in range(2):
            p = V_P + e * 8
            m = 28 + e
            k.e(f"v_max3_f32 v{m}, v{p}, v{p+1}, v{p+2}")
            k.e(f"v_max3_f32 v{m}, v{m}, v{p+3}, v{p+4}")
            k.e(f"v_max3_f32 v{m}, v{m}, v{p+5}, v{p+6}")
            k.e(f"v_max_f32 v{m}, v{m}, v{p+7}")
        for e in range(2):
            p = V_P + e * 8
            for w in range(8):
                k.e(f"v_sub_f32 v{p+w}, v{p+w}, v{28+e}")
        for e in range(2):
            p = V_P + e * 8
            for w in range(8):
                k.e(f"v_exp_f32 v{p+w}, v{p+w}")
        k.e("s_nop 0")
        for e in range(2):
            p = V_P + e * 8
            k.e(f"v_add_f32 v{28+e}, v{p}, v{p+1}")
        for w in range(2, 8):
            for e in range(2):
                p = V_P + e * 8
                k.e(f"v_add_f32 v{28+e}, v{28+e}, v{p+w}")
        for e in range(2):
            k.e(f"v_rcp_f32 v{28+e}, v{28+e}")
        k.e("s_nop 0")
        for e in range(2):
            p = V_P + e * 8
            for w in range(8):
                k.e(f"v_mul_f32 v{p+w}, v{p+w}, v{28+e}")
        for w in range(8):
            buf = (w & 1)
            k.need(lg=("kv", rt, w, 1))
            if w + 1 < 8:
                kvread(rt, w + 1, 1, buf ^ 1)
            vb = V_K + buf * 36
            for e in range(2):
                p = V_P + e * 8 + w
                pe = p & ~1
                sel = p & 1
                for d in range(9):
                    o = V_O + e * 18 + 2 * d
                    b = vb + e * 18 + 2 * d
                    if w == 0:
                        k.e(f"v_pk_mul_f32 {vr(o,2)}, {vr(pe,2)}, {vr(b,2)} op_sel:[{sel},0] op_sel_hi:[{sel},1]")
                    else:
                        k.e(f"v_pk_fma_f32 {vr(o,2)}, {vr(pe,2)}, {vr(b,2)}, {vr(o,2)} op_sel:[{sel},0,0] op_sel_hi:[{sel},1,1]")
        for a in range(9):
            d = q + a * 2
            k.e(f"v_cvt_pk_bf16_f32 v{d}, v{V_O+4*a}, v{V_O+4*a+1}")
            k.e(f"v_cvt_pk_bf16_f32 v{d+1}, v{V_O+4*a+2}, v{V_O+4*a+3}")
        k.e("v_cmp_ne_u32 vcc, 0, v3")
        k.e(f"s_add_u32 s{S_T2}, s{S_STBASE}, {rt*NKB*1024}")
        k.e("s_nop 0")
        for i in range(16):
            k.e(f"v_cndmask_b32 v{q+20+i}, v{q+i}, v{q+i+2}, vcc")
        for i in range(2):
            k.e(f"v_cndmask_b32 v{V_SA+4+2*rt+i}, v{q+16+i}, v{q+i}, vcc")
        for m in range(4):
            k.vmop(f"buffer_store_dwordx4 {vr(q+20+4*m)}, v{V_SA}, s[16:19], s{S_T2} offen offset:{m*512} sc0 sc1", ("st",))
    k.e("s_nop 1")
    k.e(f"v_permlane32_swap_b32 v{V_SA+4}, v{V_SA+6}")
    k.e(f"v_permlane32_swap_b32 v{V_SA+5}, v{V_SA+7}")
    k.e("s_nop 1")
    k.vmop(f"buffer_store_dwordx4 {vr(V_SA+4)}, v{V_SA+1}, s[16:19], s{S_STBASE} offen sc0 sc1", ("st",))
    k.stamp()


S_RT, S_NT, S_SPLIT = 65, 66, 49
S_SEG = 64
S_M0B = 38
S_BB = 67
S_FL = 35


class PhaseB:
    LB = 49152

    def __init__(self, k, P, is_o):
        self.k, self.P, self.is_o = k, P, is_o
        self.NS = 18 if is_o else 36
        self.RS = 9
        self.DW = 8 - P["b_bi"]
        self.DB = P["b_db"]
        self.SL = 12288
        self.V_WD = [32, 33, 34]
        self.V_AE = [35, 36, 37, 38, 31, 30]
        self.V_SC = 8
        self.V_T = 10
        self.V_AF = 64
        self.NAF = 8
        self.RA = P["b_ra"]
        self.BI = P["b_bi"]
        self.V_ACC = 160
        self.NBB = self.DB + 1

    def pos(self, st):
        return (st + 7) % 9

    def setup_thunks(self, t):
        k, P = self.k, self.P
        th = []

        def f0():
            if self.is_o:
                k.e(f"s_and_b32 s46, s{S_FG}, 1")
                k.e(f"s_lshr_b32 s{S_NT}, s{S_FG}, 1")
                k.e(f"s_mov_b32 s{S_SPLIT}, 4")
                srd(k, 60, 56, 57, 576 * 1152)
            else:
                k.e(f"s_and_b32 s46, s{S_I2}, 1")
                k.e(f"s_lshr_b32 s{S_NT}, s{S_I2}, 1")
                k.e(f"s_mov_b32 s{S_SPLIT}, s{S_FQ}")
                srd(k, 60, 52, 53, 4608 * 1152)
            k.e(f"s_lshl_b32 s{S_RT}, s{S_RB}, 1")
            k.e(f"s_add_u32 s{S_RT}, s{S_RT}, s46")
        th.append(f0)

        def f1():
            k.e(f"s_mul_i32 s{S_SEG}, s{S_WAVE}, {8*1152}")
            k.e(f"s_mul_i32 s46, s{S_NT}, 384")
            k.e(f"s_add_u32 s{S_SEG}, s{S_SEG}, s46")
            if not self.is_o:
                k.e(f"s_mul_i32 s46, s{S_SPLIT}, {384*1152}")
                k.e(f"s_add_u32 s{S_SEG}, s{S_SEG}, s46")
            k.e(f"s_mul_i32 s{S_M0B}, s{S_WAVE}, 3072")
        th.append(f1)

        def f2():
            k.e(f"s_lshl_b32 s46, s{S_RT}, 2")
            k.e(f"s_add_u32 s46, s46, s{S_WAVE}")
            k.e(f"s_mul_i32 s46, s46, {NKB}")
            if not self.is_o:
                k.e(f"s_mul_i32 s{S_BB}, s{S_SPLIT}, 72")
                k.e(f"s_add_u32 s46, s46, s{S_BB}")
                k.e("s_add_u32 s46, s46, 36")
            k.e(f"s_lshl_b32 s{S_BB}, s46, 10")
        th.append(f2)
        for i in range(3):
            def g0(i=i):
                k.e(f"v_add_u32 v{t}, {64*i}, v0")
                k.e(f"v_mul_u32_u24 v{t+1}, 2731, v{t}")
                k.e(f"v_lshrrev_b32 v{t+1}, 16, v{t+1}")
                k.e(f"v_mul_u32_u24 v{t+2}, 24, v{t+1}")
                k.e(f"v_sub_u32 v{t+2}, v{t}, v{t+2}")
            def g1(i=i):
                k.e(f"v_bfe_u32 v{t+3}, v{t+1}, 1, 1")
                k.e(f"v_lshlrev_b32 v{t+3}, 2, v{t+3}")
                k.e(f"v_xor_b32 v{t+2}, v{t+2}, v{t+3}")
                k.e(f"v_mul_u32_u24 v{t+1}, 1152, v{t+1}")
                k.e(f"v_lshl_add_u32 v{self.V_WD[i]}, v{t+2}, 4, v{t+1}")
            th += [g0, g1]

        def h0():
            k.e(f"v_lshrrev_b32 v{t}, 4, v0")
            k.e(f"v_bfe_u32 v{t+1}, v0, 2, 2")
            k.e(f"v_and_b32 v{t+2}, 3, v0")
            k.e(f"v_lshrrev_b32 v{t+3}, 1, v{t}")
            k.e(f"v_lshl_add_u32 v{t+3}, v{t+3}, 3, v{t+1}")
        def h1():
            k.e(f"v_mul_u32_u24 v{t+3}, 384, v{t+3}")
            k.e(f"v_and_b32 v{t+4}, 1, v{t}")
            k.e(f"v_lshl_add_u32 v{t+3}, v{t+4}, 5, v{t+3}")
            k.e(f"v_lshl_add_u32 v{t+3}, v{t+2}, 3, v{t+3}")
            k.e(f"v_lshrrev_b32 v{t+4}, 1, v{t+1}")
        def h2():
            ae = self.V_AE
            k.e(f"v_lshlrev_b32 v{t+4}, 6, v{t+4}")
            k.e(f"v_add_u32 v{t+3}, {self.LB}, v{t+3}")
            k.e(f"v_add_u32 v{ae[0]}, v{t+3}, v{t+4}")
            k.e(f"v_sub_u32 v{ae[1]}, v{t+3}, v{t+4}")
            k.e(f"v_add_u32 v{ae[1]}, 64, v{ae[1]}")
        def h3():
            ae = self.V_AE
            for z in (1, 2):
                k.e(f"v_add_u32 v{ae[2*z]}, {z*4*self.SL}, v{ae[0]}")
                k.e(f"v_add_u32 v{ae[2*z+1]}, {z*4*self.SL}, v{ae[1]}")
        th += [h0, h1, h2, h3]
        return th

    def dma_w(self, st, i):
        k = self.k
        seg, r = divmod(st, 12)
        segstride = 384 if self.is_o else 1536
        k.e(f"s_add_u32 m0, s{S_M0B}, {self.LB + self.pos(st)*self.SL + i*1024}")
        k.e(f"s_add_u32 s{S_T1}, s{S_SEG}, {(seg*segstride + r*32)*1152}")
        k.vmop(f"buffer_load_dwordx4 v{self.V_WD[i]}, s[60:63], s{S_T1} offen lds", ("bw", st))

    def bfr(self, st, kh):
        return ((st % self.NBB) * 2 + kh) * 4

    def load_b(self, st, kh):
        k = self.k
        k.e(f"s_add_u32 s{S_T0}, s{S_BB}, {st*2048}")
        k.vmop(f"buffer_load_dwordx4 {ar(self.bfr(st,kh))}, v{V_L16}, s[16:19], s{S_T0} offen offset:{kh*1024} {self.P['ldscope']}", ("b", st, kh))

    def aread(self, i, st, kh, a, half):
        k = self.k
        z, sl = divmod(self.pos(st), 4)
        off = sl * self.SL + (16 * kh + 4 * half) * 384
        be, bo = self.V_AE[2 * z], self.V_AE[2 * z + 1]
        if a % 2 == 0:
            base, off = be, off + a * 64
        else:
            base, off = bo, off + (a - 1) * 64
        assert 0 <= off < 65536
        d = self.V_AF + (i % self.NAF) * 4 + half * 2
        k.lgop(f"ds_read_b64_tr_b16 {vr(d,2)}, v{base} offset:{off}", ("baf", i, half))

    def main(self, visible, vq=None, gap_cb=None, pre_bar=None, post_bar=None):
        k, P = self.k, self.P
        NS, DW, DB = self.NS, self.DW, self.DB
        if vq is None:
            vq = Paced(P["brate"], P["vcap"], k)
        vq.rate = P["brate"]
        ops = [(st, kh, a) for st in range(NS) for kh in range(2) for a in range(6)]
        issued = 0

        def issue_upto(it):
            nonlocal issued
            while issued <= it and issued < len(ops):
                st, kh, a = ops[issued]
                if st > visible:
                    break
                self.aread(issued, st, kh, a, 0)
                self.aread(issued, st, kh, a, 1)
                issued += 1

        BI = self.BI

        def boundary(st):
            nonlocal visible
            if st >= 1 and st % BI == 0:
                upto = min(st + BI, NS - 1)
                if upto > visible:
                    vq.force_until(lambda: k.vm.count(("bw", upto)) == 3)
                    k.need(vm=("bw", upto))
                    visible = upto
                if pre_bar:
                    pre_bar(st)
                k.e("s_barrier")
            if post_bar and st >= 1:
                post_bar(st)
            if st + DB < NS:
                vq.add(lambda st=st: self.load_b(st + DB, 0), 19)
                vq.add(lambda st=st: self.load_b(st + DB, 1), 19)
            if st + DW < NS:
                for ii in range(3):
                    vq.add(lambda st=st, ii=ii: self.dma_w(st + DW, ii), 19)

        for i, (st, kh, a) in enumerate(ops):
            issue_upto(i)
            assert issued > i
            if a == 0:
                vq.force_until(lambda: ("b", st, kh) in k.vm)
                k.need(vm=("b", st, kh), lg=("baf", i, 1))
            else:
                k.need(lg=("baf", i, 1))
            ac = self.V_ACC + a * 16
            cin = "0" if (st == 0 and kh == 0) else vr(ac, 16)
            k.e(f"v_mfma_f32_32x32x16_bf16 {vr(ac,16)}, {vr(self.V_AF+(i%self.NAF)*4)}, {ar(self.bfr(st,kh))}, {cin}")
            if kh == 0 and a == 0:
                boundary(st)
            issue_upto(i + self.RA)
            vq.gap()
            if gap_cb:
                gap_cb()
        vq.drain()
        k.stamp()

    def epilogue(self):
        k, P = self.k, self.P
        t = self.V_T
        sc = self.V_SC
        k.e(f"s_mul_i32 s46, s{S_RT}, 3")
        k.e(f"s_add_u32 s46, s46, s{S_NT}")
        k.e(f"s_add_u32 s{S_FL}, s46, 40")
        k.e(f"s_lshl_b32 s{S_FL}, s{S_FL}, 7")
        k.e(f"s_add_u32 s{S_FL}, s{S_FL}, {FLAG_OFF}")
        k.e("s_mul_i32 s46, s46, 20")
        k.e(f"s_add_u32 s46, s46, s{S_WAVE}")
        k.e(f"s_mul_i32 s{S_BB}, s46, 12288")
        k.e(f"s_add_u32 s{S_BB}, s{S_BB}, {PART_OFF}")
        k.e(f"s_mul_i32 s46, s{S_SPLIT}, {4*12288}")
        k.e(f"s_add_u32 s{S_STBASE}, s{S_BB}, s46")
        k.e("s_nop 3")
        PK = 96
        for pr in range(12):
            a0 = self.V_ACC + pr * 8
            for r in range(4):
                k.e(f"v_cvt_pk_bf16_f32 v{PK+pr*4+r}, v{a0+2*r}, v{a0+2*r+1}")
            if pr % 4 == 0:
                k.e(f"s_add_u32 s{S_T2}, s{S_STBASE}, {pr*1024}")
            k.vmop(f"buffer_store_dwordx4 {vr(PK+pr*4)}, v{V_L16}, s[16:19], s{S_T2} offen offset:{(pr%4)*1024} sc0 sc1", ("pst",))
        k.e(f"s_lshl_b32 s46, s{S_SPLIT}, 2")
        k.e(f"s_add_u32 s46, s46, s{S_FL}")
        k.stamp()
        publish(k, 46, t, ("pst",))
        k.stamp()

    def phaseC(self):
        k, P = self.k, self.P
        t = self.V_T
        srd(k, 8, 28, 29, 2048 * 576 * 2)
        poll(k, S_FL, 6, t)
        k.stamp()
        k.e(f"s_mul_i32 s46, s{S_SPLIT}, 3072")
        k.e(f"s_add_u32 s{S_BB}, s{S_BB}, s46")
        L = 96
        sc = self.V_SC
        k.e(f"s_lshl_b32 s46, s{S_RT}, 2")
        k.e(f"s_add_u32 s46, s46, s{S_WAVE}")
        k.e("s_lshl_b32 s46, s46, 7")
        k.e(f"s_add_u32 s46, s46, {G_OFF}")
        k.e(f"v_and_b32 v{t}, 31, v0")
        k.e(f"v_lshlrev_b32 v{t}, 2, v{t}")
        k.vmop(f"buffer_load_dword v{sc}, v{t}, s[16:19], s46 offen sc0 sc1", ("g",))
        for s in range(5):
            k.e(f"s_add_u32 s{S_T0}, s{S_BB}, {s*4*12288}")
            for pr in range(3):
                k.vmop(f"buffer_load_dwordx4 {vr(L + (s*3+pr)*4)}, v{V_L16}, s[16:19], s{S_T0} offen offset:{pr*1024} sc0 sc1", ("pl", s))
        k.e(f"s_lshl_b32 s46, s{S_RT}, 2")
        k.e(f"s_add_u32 s46, s46, s{S_WAVE}")
        k.e(f"s_mul_i32 s46, s46, {32*1152}")
        k.e(f"s_mul_i32 s{S_T1}, s{S_NT}, 384")
        k.e(f"s_add_u32 s46, s46, s{S_T1}")
        k.e(f"s_mul_i32 s{S_T1}, s{S_SPLIT}, 96")
        k.e(f"s_add_u32 s46, s46, s{S_T1}")
        k.e(f"v_and_b32 v{t}, 31, v0")
        k.e(f"v_mul_u32_u24 v{t}, 1152, v{t}")
        k.e(f"v_lshrrev_b32 v{t+1}, 5, v0")
        k.e(f"v_lshl_add_u32 v{t}, v{t+1}, 4, v{t}")
        A = 160
        TT = 192
        for s in range(5):
            k.need(vm=("pl", s))
            for d in range(12):
                src = L + s * 12 + d
                if s == 0:
                    k.e(f"v_lshlrev_b32 v{A+2*d}, 16, v{src}")
                    k.e(f"v_and_b32 v{A+2*d+1}, 0xffff0000, v{src}")
                else:
                    k.e(f"v_lshlrev_b32 v{TT+2*d}, 16, v{src}")
                    k.e(f"v_and_b32 v{TT+2*d+1}, 0xffff0000, v{src}")
            if 0 < s < 4:
                for d in range(24):
                    k.e(f"v_add_f32 v{A+d}, v{A+d}, v{TT+d}")
            if s == 3:
                k.e(f"v_sub_f32 v{t+1}, 1.0, v{sc}")
                for d in range(24):
                    k.e(f"v_mul_f32 v{A+d}, v{t+1}, v{A+d}")
            if s == 4:
                for d in range(24):
                    k.e(f"v_fmac_f32 v{A+d}, v{sc}, v{TT+d}")
        for d in range(12):
            k.e(f"v_cvt_pk_bf16_f32 v{TT+d}, v{A+2*d}, v{A+2*d+1}")
        k.e("s_nop 1")
        for pr in range(3):
            b = TT + pr * 4
            k.e(f"v_permlane32_swap_b32 v{b}, v{b+2}")
            k.e(f"v_permlane32_swap_b32 v{b+1}, v{b+3}")
        k.e("s_nop 1")
        for pr in range(3):
            k.vmop(f"buffer_store_dwordx4 {vr(TT+pr*4)}, v{t}, s[8:11], s46 offen offset:{pr*32}", ("ost",))
        k.wait_all()
        k.stamp()


def gate_wg(k, P):
    k.c("---------------- gate rows ----------------")
    srd(k, 20, 54, 55, 1152)
    k.e("v_and_b32 v3, 7, v0")
    k.e("v_lshlrev_b32 v3, 4, v3")
    GW = 64
    for s in range(9):
        k.vmop(f"buffer_load_dwordx4 {vr(GW+4*s)}, v3, s[20:23], 0 offen offset:{s*128}", ("gw",))
    k.e(f"s_lshl_b32 s46, s{S_RB}, 1")
    k.e(f"s_add_u32 s46, s46, s{S_FG}")
    k.e(f"s_sub_u32 s49, s46, 6")
    k.e(f"s_lshl_b32 s46, s49, 2")
    k.e(f"s_add_u32 s46, s46, s{S_WAVE}")
    k.e(f"s_mul_i32 s{S_XS}, s46, {32*1152}")
    k.e(f"s_add_u32 s{S_XS+1}, s{S_XS}, {16*1152}")
    k.e("s_lshl_b32 s48, s46, 7")
    k.e(f"s_add_u32 s48, s48, {G_OFF}")
    X = 100
    for p in range(4):
        for s in range(9):
            v = V_XL if p % 2 == 0 else V_XL2
            k.vmop(f"buffer_load_dwordx4 {vr(X+(p*9+s)*4)}, v{v}, s[8:11], s{S_XS+p//2} offen offset:{s*128}", ("gx", p))
    for p in range(4):
        k.e(f"v_mov_b32 v{4+p}, 0")
    for p in range(4):
        k.need(vm=("gx", p))
        for s in range(9):
            for d in range(4):
                k.e(f"v_dot2_f32_bf16 v{4+p}, v{X+(p*9+s)*4+d}, v{GW+4*s+d}, v{4+p}")
    k.e("s_nop 3")
    for m in (1, 2, 4):
        for p in range(4):
            k.lgop(f"ds_swizzle_b32 v{8+p}, v{4+p} offset:{(m << 10) | 0x1f}", ("sw",))
        k.wait_all(vm=False)
        for p in range(4):
            k.e(f"v_add_f32 v{4+p}, v{4+p}, v{8+p}")
    for p in range(4):
        k.e(f"v_mul_f32 v{4+p}, 0x{f2u(-LOG2E):08x}, v{4+p}")
    for p in range(4):
        k.e(f"v_exp_f32 v{4+p}, v{4+p}")
    k.e("s_nop 0")
    for p in range(4):
        k.e(f"v_add_f32 v{4+p}, 1.0, v{4+p}")
    for p in range(4):
        k.e(f"v_rcp_f32 v{4+p}, v{4+p}")
    k.e("v_lshrrev_b32 v2, 3, v0")
    k.e("v_lshlrev_b32 v2, 2, v2")
    for p in range(4):
        k.vmop(f"buffer_store_dword v{4+p}, v2, s[16:19], s48 offen offset:{p*32} sc0 sc1", ("gst",))
    k.wait_all()
    k.e("s_barrier")
    k.e(f"s_cmp_lg_u32 s{S_WAVE}, 0")
    k.e("s_cbranch_scc1 L_QEND")
    k.e(f"s_mul_i32 s46, s49, 3")
    k.e("s_add_u32 s46, s46, 40")
    k.e("s_lshl_b32 s46, s46, 7")
    k.e(f"s_add_u32 s46, s46, {FLAG_OFF + 20}")
    k.e(f"v_mov_b32 v4, s{S_NONCE}")
    k.e("v_lshlrev_b32 v5, 7, v0")
    k.e("s_mov_b64 exec, 7")
    k.e("buffer_store_dword v4, v5, s[16:19], s46 offen sc0 sc1")
    k.e("s_mov_b64 exec, -1")
    k.e("s_branch L_QEND")


def gen(P):
    k = KB()
    k.stamps_on = P["stamps"]
    prologue(k, P)
    st0 = k.save()
    B = PhaseB(k, P, False)
    phaseA_mlp(k, P, B)
    B.epilogue()
    B.phaseC()
    k.stamp_flush()
    k.e("s_branch L_END")
    k.restore(st0)
    phaseA_qkv(k, P)
    k.e(f"s_add_u32 s{S_FL}, s{S_RB}, 32")
    k.e(f"s_lshl_b32 s{S_FL}, s{S_FL}, 7")
    k.e(f"s_add_u32 s{S_FL}, s{S_FL}, {FLAG_OFF}")
    k.e(f"s_lshl_b32 s46, s{S_FG}, 2")
    k.e(f"s_add_u32 s50, s46, s{S_FL}")
    k.wait_all(vm=False)
    publish(k, 50, 2, ("st",))
    k.stamp()
    k.e(f"s_cmp_lt_u32 s{S_FG}, 6")
    k.e("s_cbranch_scc1 L_QB")
    st1 = k.save()
    k.wait_all()
    gate_wg(k, P)
    k.restore(st1)
    k.label("L_QB")
    B2 = PhaseB(k, P, True)
    for th in B2.setup_thunks(2):
        th()
    for st in range(B2.DW):
        for ii in range(3):
            B2.dma_w(st, ii)
    poll(k, S_FL, 8, B2.V_T)
    k.e("s_barrier")
    k.stamp()
    for st in range(B2.DB):
        B2.load_b(st, 0)
        B2.load_b(st, 1)
    B2.main(B2.DW - 1)
    B2.epilogue()
    k.label("L_QEND")
    k.wait_all()
    k.stamp_flush()
    k.label("L_END")
    k.e("s_endpgm")
    k.label("L_CODE_END")
    label = NAME + "_kernel"
    s = open("cdna_kernels/" + NAME + ".s.ref").read().split("; Override")[0]
    s += "; @launch grid=(256,1,1) block=(256,1,1) lds=163840\n"
    s += '.amdgcn_target "amdgcn-amd-amdhsa--gfx950"\n.text\n'
    s += f".globl {label}\n.p2align 8\n.type {label},@function\n{label}:\n"
    s += k.text()
    s += f"""
.section .rodata,"a"
.p2align 6
.amdhsa_kernel {label}
  .amdhsa_next_free_vgpr 512
  .amdhsa_next_free_sgpr 102
  .amdhsa_accum_offset 256
  .amdhsa_group_segment_fixed_size 0
  .amdhsa_kernarg_size 88
  .amdhsa_user_sgpr_count 2
  .amdhsa_user_sgpr_kernarg_segment_ptr 1
  .amdhsa_system_sgpr_workgroup_id_x 1
.end_amdhsa_kernel
"""
    return s


def main():
    ap = argparse.ArgumentParser()
    ap.add_argument("-o", default="cdna_kernels/" + NAME + ".s")
    ap.add_argument("--delta", type=int, default=4)
    ap.add_argument("--D", type=int, default=15)
    ap.add_argument("--R", type=int, default=32)
    ap.add_argument("--ra", type=int, default=3)
    ap.add_argument("--epg", type=int, default=3)
    ap.add_argument("--nx0", type=int, default=2)
    ap.add_argument("--xlead", type=int, default=2)
    ap.add_argument("--d0", type=int, default=9)
    ap.add_argument("--spread", type=int, default=1)
    ap.add_argument("--touch2", type=int, default=1)
    ap.add_argument("--b-ring", type=int, default=10)
    ap.add_argument("--b-dw", type=int, default=8)
    ap.add_argument("--b-db", type=int, default=8)
    ap.add_argument("--stamps", action="store_true")
    ap.add_argument("--exp", default="")
    ap.add_argument("--ctouch", type=int, default=1)
    ap.add_argument("--vidx", type=int, default=1)
    ap.add_argument("--bi", type=int, default=4)
    ap.add_argument("--bi-from", type=int, default=0)
    ap.add_argument("--bar-late", type=int, default=1)
    ap.add_argument("--b-ra", type=int, default=5)
    ap.add_argument("--b-bi", type=int, default=2)
    ap.add_argument("--ttouch", type=int, default=66)
    ap.add_argument("--tb0", type=int, default=105)
    ap.add_argument("--dfirst", type=int, default=18)
    ap.add_argument("--brate", type=float, default=9.0)
    ap.add_argument("--f2st", type=int, default=8)
    ap.add_argument("--ldscope", default="sc0 sc1")
    ap.add_argument("--rot", type=int, default=1)
    ap.add_argument("--nx1", type=int, default=0)
    ap.add_argument("--d1", type=int, default=18)
    ap.add_argument("--xper", type=int, default=4)
    ap.add_argument("--vrate", type=float, default=12.0)
    ap.add_argument("--vcap", type=float, default=40.0)
    a = ap.parse_args()
    P = vars(a)
    s = gen(P)
    open(a.o, "w").write(s)
    print("wrote", a.o, len(s), "bytes")


if __name__ == "__main__":
    main()
```

```python
import sys, argparse, struct

NAME = "gated_mix__sliding_local_dilated__glu_gated_glu__prompt"

NKB = 324
G_OFF = 0x1500000
FLAG_OFF = 0x1510000
PART_OFF = 0x1600000
WS_BYTES = 268435456
DBG_OFF = 0x4000000
LOG2E = 1.4426950408889634
SPIN_MAX = 200000


def f2u(x):
    return struct.unpack("<I", struct.pack("<f", x))[0]


class KB:
    def __init__(self):
        self.lines = []
        self.vm = []
        self.vm_done = 0
        self.lg = []
        self.lg_done = 0
        self.n = 0
        self.stamps_on = False
        self.nstamp = 0
        self.dbg_mode = None

    def e(self, s):
        self.lines.append("    " + s)
        self.n += 1

    def c(self, s):
        self.lines.append("    ; " + s)

    def label(self, s):
        self.lines.append(s + ":")

    def vmop(self, s, tag):
        self.e(s)
        self.vm.append(tag)
        assert len(self.vm) - self.vm_done <= 63, "too many vm outstanding"

    def lgop(self, s, tag):
        self.e(s)
        self.lg.append(tag)
        assert len(self.lg) - self.lg_done <= 15, "too many lgkm outstanding"

    def vm_out(self):
        return len(self.vm) - self.vm_done

    def lg_out(self):
        return len(self.lg) - self.lg_done

    def _last(self, lst, tag):
        for i in range(len(lst) - 1, -1, -1):
            if lst[i] == tag:
                return i
        raise KeyError(tag)

    def need(self, vm=None, lg=None):
        parts = []
        if vm is not None:
            tags = vm if isinstance(vm, list) else [vm]
            i = max(self._last(self.vm, t) for t in tags)
            if i >= self.vm_done:
                n = len(self.vm) - 1 - i
                parts.append(f"vmcnt({n})")
                self.vm_done = len(self.vm) - n
        if lg is not None:
            tags = lg if isinstance(lg, list) else [lg]
            i = max(self._last(self.lg, t) for t in tags)
            if i >= self.lg_done:
                n = len(self.lg) - 1 - i
                parts.append(f"lgkmcnt({n})")
                self.lg_done = len(self.lg) - n
        if parts:
            self.e("s_waitcnt " + " ".join(parts))

    def wait_all(self, vm=True, lg=True):
        p = []
        if vm:
            p.append("vmcnt(0)")
            self.vm_done = len(self.vm)
        if lg:
            p.append("lgkmcnt(0)")
            self.lg_done = len(self.lg)
        self.e("s_waitcnt " + " ".join(p))

    def save(self):
        return (list(self.vm), self.vm_done, list(self.lg), self.lg_done, self.nstamp)

    def restore(self, st):
        self.vm, self.vm_done, self.lg, self.lg_done, self.nstamp = list(st[0]), st[1], list(st[2]), st[3], st[4]

    def stamp(self):
        if not self.stamps_on:
            return
        i = self.nstamp
        self.nstamp += 1
        assert i < 15
        self.e(f"s_memrealtime s[{70+2*i}:{71+2*i}]")
        self.e(f"s_memtime s[100:101]")
        self.e("s_waitcnt lgkmcnt(0)")
        self.e(f"s_mov_b32 s{71+2*i}, s100")
        self.e("s_waitcnt lgkmcnt(0)")
        self.lg_done = len(self.lg)

    def stamp_flush(self):
        if not self.stamps_on:
            return
        if self.dbg_mode:
            lbl = f"L_DS{self.n}"
            self.e(f"s_cmp_lg_u32 s{S_WAVE}, 0")
            self.e(f"s_cbranch_scc1 {lbl}")
            srd(self, 20, 30, 31, 256)
            self.e("s_mov_b64 exec, 1")
            self.e("v_mov_b32 v1, 0")
            self.e("s_not_b32 s100, s70")
            self.e("v_mov_b32 v2, s100")
            self.e("buffer_atomic_umax v2, v1, s[20:23], 0 offen offset:4 sc1")
            if self.dbg_mode == "mlp":
                for i in range(self.nstamp):
                    self.e(f"v_mov_b32 v{3+i}, s{70+2*i}")
                    self.e(f"buffer_atomic_umax v{3+i}, v1, s[20:23], 0 offen offset:{8+4*i} sc1")
            self.e("s_waitcnt vmcnt(0)")
            self.e("s_mov_b64 exec, -1")
            self.label(lbl)
            return
        self.e("s_lshl_b32 s100, s2, 2")
        self.e(f"s_add_u32 s100, s100, s{S_WAVE}")
        self.e("s_lshl_b32 s100, s100, 7")
        self.e(f"s_add_u32 s100, s100, {DBG_OFF}")
        self.e("v_mov_b32 v1, 0")
        for i in range(self.nstamp):
            self.e(f"v_mov_b32 v2, s{70+2*i}")
            self.e(f"buffer_store_dword v2, v1, s[16:19], s100 offen offset:{4*i}")
            self.e("s_nop 1")
            self.e(f"v_mov_b32 v2, s{71+2*i}")
            self.e(f"buffer_store_dword v2, v1, s[16:19], s100 offen offset:{64+4*i}")
            self.e("s_nop 1")
        self.e(f"v_mov_b32 v2, {self.nstamp}")
        self.e(f"buffer_store_dword v2, v1, s[16:19], s100 offen offset:60")
        self.e("s_getreg_b32 s101, hwreg(HW_REG_HW_ID)")
        self.e("s_nop 1")
        self.e("v_mov_b32 v3, s101")
        self.e(f"buffer_store_dword v3, v1, s[16:19], s100 offen offset:124")
        self.e("s_getreg_b32 s101, hwreg(HW_REG_XCC_ID)")
        self.e("s_nop 1")
        self.e("v_mov_b32 v4, s101")
        self.e(f"buffer_store_dword v4, v1, s[16:19], s100 offen offset:120")
        self.e("s_waitcnt vmcnt(0)")

    def text(self):
        return "\n".join(self.lines) + "\n"


class Paced:
    def __init__(self, rate, cap, k=None):
        self.q, self.credit, self.rate, self.cap, self.k = [], 0, rate, cap, k

    def add(self, th, cost):
        self.q.append((th, cost))

    def gap(self, scale=1.0):
        self.credit = min(self.credit + self.rate * scale, self.cap)
        while self.q and self.q[0][1] <= self.credit and self.k.vm_out() < 58:
            th, c = self.q.pop(0)
            self.credit -= c
            th()

    def force_until(self, pred):
        while not pred():
            th, c = self.q.pop(0)
            th()

    def drain(self):
        while self.q:
            self.q.pop(0)[0]()


def srd(k, d, lo, hi, nbytes):
    k.e(f"s_mov_b32 s{d}, s{lo}")
    k.e(f"s_mov_b32 s{d+1}, s{hi}")
    k.e(f"s_mov_b32 s{d+2}, {nbytes}")
    k.e(f"s_mov_b32 s{d+3}, 0x00020000")


def vr(b, n=4):
    return f"v[{b}:{b+n-1}]"


def ar(b, n=4):
    return f"a[{b}:{b+n-1}]"


S_WAVE, S_RB, S_FG = 32, 33, 34
S_WBASE, S_STBASE, S_M0W, S_T0, S_T1, S_T2 = 36, 37, 39, 40, 41, 42
S_FQ, S_I3, S_I2, S_IDX = 43, 44, 45, 51
S_XS = 64
S_NONCE = 68
S_XW = 38
XB = 131072

V_XL, V_XL2 = 36, 37
V_XWE, V_XWO = 38, 31
V_XR = 32
V_L16 = 39


S_PX, S_PW = 3, 35


def advance(k, sc, targets):
    k.e(f"s_add_u32 s{sc}, s{sc}, 1")
    k.e(f"s_cmp_eq_u32 s{sc}, 9")
    k.e(f"s_cselect_b32 s{sc}, 0, s{sc}")
    steps = sorted(set(st for _, st in targets))
    for st in steps:
        k.e(f"s_mov_b32 s{S_T0}, {st}")
        k.e(f"s_cselect_b32 s{S_T0}, {(-8*st) & 0xFFFFFFFF}, s{S_T0}")
        for (r, st2) in targets:
            if st2 == st:
                k.e(f"s_lshl1_add_u32 s{r}, 0, s{r}") if False else None
        if len(steps) == 1:
            for (r, st2) in targets:
                k.e(f"s_add_u32 s{r}, s{r}, s{S_T0}")
        else:
            k.e(f"s_mov_b32 s{S_T0 + 1 + steps.index(st)}, s{S_T0}")
    if len(steps) > 1:
        for (r, st2) in targets:
            k.e(f"s_add_u32 s{r}, s{r}, s{S_T0 + 1 + steps.index(st2)}")


def x_load(k, s, p, dst):
    v = V_XL if p % 2 == 0 else V_XL2
    if p == 0 and s > 0:
        advance(k, S_PX, [(S_XS + i, 128) for i in range(4)])
    k.vmop(f"buffer_load_dwordx4 {dst}, v{v}, s[8:11], s{S_XS + p//2} offen", ("x", s))


def x_write(k, s, p, src):
    v = V_XWE if p % 2 == 0 else V_XWO
    k.lgop(f"ds_write_b128 v{v}, {src} offset:{p*1024}", ("xw", s))


def x_read(k, s, ksl, rt, dst):
    k.lgop(f"ds_read_b128 {dst}, v{V_XR+ksl} offset:{rt*4096}", ("xf", 4 * s + ksl, rt))


def prologue(k, P):
    k.e("s_cmp_ge_u32 s2, 256")
    k.e("s_cbranch_scc1 L_END")
    k.stamp()
    k.e("s_load_dwordx4 s[4:7], s[0:1], 0")
    k.e("s_load_dwordx4 s[24:27], s[0:1], 32")
    k.e("s_load_dwordx4 s[52:55], s[0:1], 48")
    k.e("s_load_dwordx4 s[28:31], s[0:1], 64")
    k.e("s_load_dwordx2 s[58:59], s[0:1], 80")
    k.e("s_load_dwordx2 s[56:57], s[0:1], 16")
    k.e("v_lshrrev_b32 v1, 6, v0")
    k.e("v_and_b32 v0, 63, v0")
    k.e("v_lshrrev_b32 v2, 3, v0")
    k.e(f"v_readfirstlane_b32 s{S_WAVE}, v1")
    k.e("v_and_b32 v3, 7, v0")
    k.e("v_mul_u32_u24 v7, 1152, v2")
    k.e(f"v_lshl_add_u32 v{V_XL}, v3, 4, v7")
    k.e(f"v_add_u32 v{V_XL2}, {8*1152}, v{V_XL}")
    k.e("s_and_b32 s50, s2, 7")
    k.e(f"s_lshr_b32 s{S_IDX}, s2, 3")
    if P["vidx"]:
        k.e(f"s_lshr_b32 s46, s{S_IDX}, 2")
        k.e(f"s_and_b32 s47, s{S_IDX}, 3")
        k.e("s_mul_i32 s48, s46, 3")
        k.e("s_add_u32 s48, s48, s47")
        k.e("s_add_u32 s46, s46, 24")
        k.e("s_cmp_eq_u32 s47, 3")
        k.e(f"s_cselect_b32 s{S_IDX}, s46, s48")
    k.e("s_and_b32 s46, s50, 1")
    k.e(f"s_lshr_b32 s{S_FQ}, s50, 1")
    k.e(f"s_lshl_b32 s{S_RB}, s46, 2")
    k.e(f"s_and_b32 s{S_I3}, s{S_IDX}, 3")
    k.e(f"s_add_u32 s{S_RB}, s{S_RB}, s{S_I3}")
    k.e(f"s_lshr_b32 s{S_I2}, s{S_IDX}, 2")
    k.e(f"s_lshl_b32 s47, s{S_RB}, 2")
    k.e(f"s_add_u32 s47, s47, s{S_WAVE}")
    k.e(f"s_mul_i32 s{S_XS}, s47, {64*1152}")
    k.e(f"s_lshl_b32 s{S_PX}, s{S_I3}, 1")
    k.e(f"s_add_u32 s{S_PX}, s{S_PX}, s{S_I2}")
    if not P["rot"]:
        k.e(f"s_mov_b32 s{S_PX}, 0")
    k.e(f"s_sub_u32 s47, s{S_PX}, 9")
    k.e(f"s_cmp_ge_u32 s{S_PX}, 9")
    k.e(f"s_cselect_b32 s{S_PX}, s47, s{S_PX}")
    k.e(f"s_mov_b32 s{S_PW}, s{S_PX}")
    k.e(f"s_lshl_b32 s47, s{S_PX}, 7")
    k.e(f"s_add_u32 s{S_XS}, s{S_XS}, s47")
    for i in range(1, 4):
        k.e(f"s_add_u32 s{S_XS+i}, s{S_XS}, {i*16*1152}")
    k.e(f"s_lshl_b32 s{S_XW}, s{S_WAVE}, 13")
    k.e(f"s_add_u32 s{S_XW}, s{S_XW}, {XB}")
    if P["ctouch"]:
        k.e("s_getpc_b64 s[60:61]")
        k.label("L_PC")
        k.e(f"s_sub_u32 s60, s60, L_PC-{NAME}_kernel")
        k.e("s_subb_u32 s61, s61, 0")
        k.e(f"s_mov_b32 s62, L_CODE_END-{NAME}_kernel")
        k.e("s_mov_b32 s63, 0x00020000")
        k.e("s_lshr_b32 s46, s2, 3")
        k.e(f"s_lshl_b32 s47, s{S_WAVE}, 5")
        k.e("s_add_u32 s46, s46, s47")
        k.e("s_lshl_b32 s46, s46, 10")
        k.e("v_and_b32 v4, 7, v0")
        k.e("v_lshlrev_b32 v4, 7, v4")
        k.vmop("buffer_load_dword v1, v4, s[60:63], s46 offen", ("ctouch",))
    k.e("s_waitcnt lgkmcnt(0)")
    srd(k, 8, 4, 5, 2048 * 1152)
    k.e(f"s_cmp_ge_u32 s{S_IDX}, 24")
    k.e("s_cbranch_scc1 L_QKV")


def common2(k):
    srd(k, 16, 58, 59, WS_BYTES)
    k.e("v_lshrrev_b32 v2, 3, v0")
    k.e("v_and_b32 v3, 7, v0")
    k.e("v_lshrrev_b32 v4, 1, v2")
    k.e("v_xor_b32 v5, v3, v4")
    k.e("v_xor_b32 v6, 4, v5")
    k.e("v_lshlrev_b32 v7, 7, v2")
    k.e(f"v_add_u32 v7, s{S_XW}, v7")
    k.e(f"v_lshl_add_u32 v{V_XWE}, v5, 4, v7")
    k.e(f"v_lshl_add_u32 v{V_XWO}, v6, 4, v7")
    k.e("v_and_b32 v2, 31, v0")
    k.e("v_lshrrev_b32 v3, 5, v0")
    k.e("v_bfe_u32 v4, v2, 1, 3")
    k.e("v_lshlrev_b32 v5, 7, v2")
    k.e(f"v_add_u32 v5, s{S_XW}, v5")
    for ksl in range(4):
        k.e(f"v_add_u32 v6, {2*ksl}, v3")
        k.e("v_xor_b32 v6, v6, v4")
        k.e(f"v_lshl_add_u32 v{V_XR+ksl}, v6, 4, v5")
    k.e(f"v_lshlrev_b32 v{V_L16}, 4, v0")


def nonce_create(k):
    srd(k, 20, 30, 31, 256)
    k.e(f"s_or_b32 s46, s2, s{S_WAVE}")
    k.e("s_cmp_lg_u32 s46, 0")
    k.e("s_cbranch_scc1 L_NONCE_SKIP")
    k.e("s_memrealtime s[46:47]")
    k.e("s_waitcnt lgkmcnt(0)")
    k.e("s_or_b32 s46, s46, 1")
    k.e("v_mov_b32 v4, s46")
    k.e("v_mov_b32 v5, 0")
    k.e("s_mov_b64 exec, 1")
    k.e("buffer_store_dword v4, v5, s[20:23], 0 offen sc0 sc1")
    k.e("s_mov_b64 exec, -1")
    k.label("L_NONCE_SKIP")


def nonce_issue(k, vbase):
    srd(k, 20, 30, 31, 256)
    k.e(f"v_mov_b32 v{vbase+1}, 0")
    k.vmop(f"buffer_load_dword v{vbase}, v{vbase+1}, s[20:23], 0 offen sc0 sc1", ("nonce",))


def nonce_get(k, vbase):
    lbl = f"L_NG{k.n}"
    k.need(vm=("nonce",))
    k.e(f"s_mov_b32 s69, {SPIN_MAX}")
    k.label(lbl)
    k.e(f"v_readfirstlane_b32 s{S_NONCE}, v{vbase}")
    k.e("s_nop 3")
    k.e(f"s_cmp_lg_u32 s{S_NONCE}, 0")
    k.e(f"s_cbranch_scc1 {lbl}_D")
    k.e("s_sub_u32 s69, s69, 1")
    k.e("s_cmp_eq_u32 s69, 0")
    k.e(f"s_cbranch_scc1 {lbl}_D")
    k.e("s_sleep 4")
    k.e(f"buffer_load_dword v{vbase}, v{vbase+1}, s[20:23], 0 offen sc0 sc1")
    k.e("s_waitcnt vmcnt(0)")
    k.e(f"s_branch {lbl}")
    k.label(lbl + "_D")


def publish(k, s_flag_off, vt, tag):
    lbl = f"L_PUB{k.n}"
    k.need(vm=tag)
    k.e("s_barrier")
    k.e(f"s_cmp_lg_u32 s{S_WAVE}, 0")
    k.e(f"s_cbranch_scc1 {lbl}")
    k.e(f"v_mov_b32 v{vt}, s{S_NONCE}")
    k.e(f"v_mov_b32 v{vt+1}, 0")
    k.e("s_mov_b64 exec, 1")
    k.e(f"buffer_store_dword v{vt}, v{vt+1}, s[16:19], s{s_flag_off} offen sc0 sc1")
    k.e("s_mov_b64 exec, -1")
    k.label(lbl)


def poll(k, s_line_off, nflags, vt):
    lbl = f"L_POLL{k.n}"
    k.e(f"v_lshlrev_b32 v{vt}, 2, v0")
    k.e(f"s_mov_b32 s69, {SPIN_MAX}")
    k.e(f"s_mov_b64 exec, {(1 << nflags) - 1}")
    k.label(lbl)
    k.e(f"buffer_load_dword v{vt+1}, v{vt}, s[16:19], s{s_line_off} offen sc0 sc1")
    k.e("s_waitcnt vmcnt(0)")
    k.e(f"v_cmp_ne_u32 vcc, s{S_NONCE}, v{vt+1}")
    k.e("s_sub_u32 s69, s69, 1")
    k.e("s_nop 4")
    k.e(f"s_cbranch_vccz {lbl}_D")
    k.e("s_cmp_eq_u32 s69, 0")
    k.e(f"s_cbranch_scc1 {lbl}_D")
    k.e("s_sleep 2")
    k.e(f"s_branch {lbl}")
    k.label(lbl + "_D")
    k.e("s_mov_b64 exec, -1")
    k.vm_done = len(k.vm)


def flag_store(k, s_off, imm, vt):
    k.e(f"v_mov_b32 v{vt}, s{S_NONCE}")
    k.e(f"v_mov_b32 v{vt+1}, 0")
    k.e("s_mov_b64 exec, 1")
    k.vmop(f"buffer_store_dword v{vt}, v{vt+1}, s[16:19], s{s_off} offen offset:{imm} sc0 sc1", ("flag",))
    k.e("s_mov_b64 exec, -1")


def flag_load(k, s_line_off, imm, vt, tag):
    k.e(f"v_and_b32 v{vt}, 15, v0")
    k.e(f"v_lshlrev_b32 v{vt}, 2, v{vt}")
    k.vmop(f"buffer_load_dword v{vt+1}, v{vt}, s[16:19], s{s_line_off} offen offset:{imm} sc0 sc1", tag)


def flag_check(k, s_line_off, imm, nflags, vt, tag):
    lbl = f"L_FC{k.n}"
    k.need(vm=tag)
    k.e(f"s_mov_b32 s69, {SPIN_MAX}")
    k.e(f"s_mov_b64 exec, {(1 << nflags) - 1}")
    k.label(lbl)
    k.e(f"v_cmp_ne_u32 vcc, s{S_NONCE}, v{vt+1}")
    k.e("s_sub_u32 s69, s69, 1")
    k.e("s_nop 4")
    k.e(f"s_cbranch_vccz {lbl}_D")
    k.e("s_cmp_eq_u32 s69, 0")
    k.e(f"s_cbranch_scc1 {lbl}_D")
    k.e("s_sleep 2")
    k.e(f"buffer_load_dword v{vt+1}, v{vt}, s[16:19], s{s_line_off} offen offset:{imm} sc0 sc1")
    k.e("s_waitcnt vmcnt(0)")
    k.e(f"s_branch {lbl}")
    k.label(lbl + "_D")
    k.e("s_mov_b64 exec, -1")
    k.e("s_nop 3")


def phaseA_mlp(k, P, B):
    DELTA, D, R, NB, RA = P["delta"], P["D"], P["R"], 4, P["ra"]
    assert R * 4096 <= XB
    BI = P["bi"]
    assert R >= D + 3 * DELTA + BI + 1
    V_AF = 8
    V_WA, V_WB2 = 24, 40
    V_WD = 28
    V_T = 44
    V_XF = 64
    V_ACC = 96

    def xf(ks, rt):
        if ks < 32:
            return ar((ks * 2 + rt) * 4)
        return vr(V_XF + ((ks - 32) * 2 + rt) * 4)

    def xq(s, p):
        return xf(4 * s + p // 2, p % 2)

    def acc(slot, rt):
        return V_ACC + (slot * 2 + rt) * 16

    k.c("---------------- phase A: MLP path ----------------")
    nonce_create(k)
    for p in range(8):
        x_load(k, 0, p, xq(0, p))
    k.e(f"s_mul_i32 s{S_FG}, s{S_FQ}, 6")
    k.e(f"s_add_u32 s{S_FG}, s{S_FG}, s{S_I2}")
    k.e(f"s_cmp_ge_u32 s{S_WAVE}, 2")
    k.e("s_cselect_b32 s12, s26, s24")
    k.e("s_cselect_b32 s13, s27, s25")
    k.e(f"s_mov_b32 s14, {576*9216}")
    k.e("s_mov_b32 s15, 0x00020000")
    k.e("v_lshrrev_b32 v2, 3, v0")
    k.e("v_and_b32 v3, 7, v0")
    k.e("v_bfe_u32 v4, v2, 1, 1")
    k.e(f"s_and_b32 s46, s{S_WAVE}, 2")
    k.e("v_or_b32 v4, s46, v4")
    k.e("v_lshlrev_b32 v4, 1, v4")
    k.e("v_xor_b32 v3, v3, v4")
    k.e("s_mov_b32 s47, 9216")
    k.e("v_mul_lo_u32 v2, v2, s47")
    k.e(f"v_lshl_add_u32 v{V_WD}, v3, 4, v2")
    k.e(f"s_and_b32 s46, s{S_WAVE}, 1")
    k.e(f"s_mul_i32 s{S_WBASE}, s46, {8*9216}")
    k.e(f"s_lshl_b32 s47, s{S_FG}, 7")
    k.e(f"s_add_u32 s{S_WBASE}, s{S_WBASE}, s47")
    k.e(f"s_mul_i32 s47, s{S_PW}, {64*9216}")
    k.e(f"s_add_u32 s{S_WBASE}, s{S_WBASE}, s47")
    k.e(f"s_lshl_b32 s{S_M0W}, s{S_WAVE}, 10")

    def dma_w(u):
        c, ks = divmod(u, 36)
        slot = u % R
        def f():
            if u > 0 and u % 4 == 0:
                advance(k, S_PW, [(S_WBASE, 64 * 9216)])
            k.e(f"s_add_u32 m0, s{S_M0W}, {slot*4096}")
            k.e(f"s_add_u32 s{S_T1}, s{S_WBASE}, {(ks%4)*16*9216 + c*24*128}")
            k.vmop(f"buffer_load_dwordx4 v{V_WD}, s[12:15], s{S_T1} offen lds", ("w", u))
        return f

    NX0 = P["nx0"]
    D0 = min(P["d0"], D)
    wi = 0
    for s in range(1, NX0 + 1):
        for u in range(wi, min(D0, wi + 4)):
            dma_w(u)()
        wi = min(D0, wi + 4)
        if s < NX0:
            for p in range(8):
                x_load(k, s, p, xq(s, p))
    for u in range(wi, D0):
        dma_w(u)()
    next_w = D0
    common2(k)
    k.e("v_lshrrev_b32 v2, 4, v0")
    k.e("v_bfe_u32 v3, v0, 2, 2")
    k.e("v_and_b32 v4, 3, v0")
    k.e("v_lshrrev_b32 v5, 1, v4")
    k.e("v_lshrrev_b32 v6, 1, v2")
    k.e("v_lshl_add_u32 v6, v6, 3, v3")
    k.e("v_lshlrev_b32 v6, 7, v6")
    k.e("v_lshl_add_u32 v6, v5, 11, v6")
    k.e("v_and_b32 v7, 1, v4")
    k.e("v_lshl_add_u32 v6, v7, 4, v6")
    k.e("v_and_b32 v7, 1, v2")
    k.e("v_lshl_add_u32 v6, v7, 3, v6")
    k.e("v_lshrrev_b32 v7, 1, v3")
    k.e("v_lshl_or_b32 v7, v5, 1, v7")
    for j in range(4):
        k.e(f"v_xor_b32 v5, {j}, v7")
        k.e(f"v_lshl_add_u32 v{V_WA+j}, v5, 5, v6")
        k.e(f"v_add_u32 v{V_WB2+j}, 0x10000, v{V_WA+j}")
    k.e(f"s_lshl_b32 s46, s{S_RB}, 3")
    k.e(f"s_lshl_b32 s47, s{S_WAVE}, 1")
    k.e("s_add_u32 s46, s46, s47")
    k.e(f"s_mul_i32 s46, s46, {NKB}")
    k.e(f"s_mul_i32 s47, s{S_FQ}, 72")
    k.e("s_add_u32 s46, s46, s47")
    k.e(f"s_lshl_b32 s47, s{S_I2}, 2")
    k.e("s_add_u32 s46, s46, s47")
    k.e("s_add_u32 s46, s46, 36")
    k.e(f"s_lshl_b32 s{S_STBASE}, s46, 10")

    def aread(i, j, u, half):
        slot = u % R
        off = slot * 4096 + half * 512
        base = V_WA + j
        if off >= 65536:
            off -= 65536
            base = V_WB2 + j
        d = V_AF + (i % NB) * 4 + half * 2
        k.lgop(f"ds_read_b64_tr_b16 {vr(d,2)}, v{base} offset:{off}", ("af", i, half))

    def epilogue(n):
        c, j = divmod(n, 4)
        slot = n % 5
        ops = []
        for rt in range(2):
            a = acc(slot, rt)
            tb = V_T
            pk = V_T + 8 + rt * 4
            gi = [a + 0, a + 1, a + 2, a + 3, a + 8, a + 9, a + 10, a + 11]
            ui = [a + 4, a + 5, a + 6, a + 7, a + 12, a + 13, a + 14, a + 15]
            for h in range(8):
                ops.append(f"v_mul_f32 v{tb+h}, 0x{f2u(-LOG2E):08x}, v{gi[h]}")
            for h in range(8):
                ops.append(f"v_exp_f32 v{tb+h}, v{tb+h}")
            for h in range(8):
                ops.append(f"v_add_f32 v{tb+h}, 1.0, v{tb+h}")
            for h in range(8):
                ops.append(f"v_rcp_f32 v{tb+h}, v{tb+h}")
            for h in range(8):
                ops.append(f"v_mul_f32 v{tb+h}, v{tb+h}, v{ui[h]}")
            for h in range(4):
                ops.append(f"v_cvt_pk_bf16_f32 v{pk+h}, v{tb+2*h}, v{tb+2*h+1}")
            off = (rt * NKB + 24 * c + j) * 1024
            ops.append(("st", f"s_add_u32 s{S_T2}, s{S_STBASE}, {off}",
                        f"buffer_store_dwordx4 {vr(pk)}, v{V_L16}, s[16:19], s{S_T2} offen sc0 sc1"))
        return ops

    NU = 108
    T_F0, T_F1 = 60, 96
    T_TOUCH = P["ttouch"]
    sched = {}
    for j in range(4):
        for u in range(NU):
            if u < 36 and P["spread"]:
                t = -(-u * (36 + j * DELTA) // 36)
            else:
                t = u + j * DELTA
            sched.setdefault(t, []).append((t, j, u))
    pairs = []
    for t in range(NU + 3 * DELTA):
        pairs.extend(sched[t])
    first_of_step, npairs_in_step = {}, {}
    for i, (t, j, u) in enumerate(pairs):
        first_of_step.setdefault(t, i)
        npairs_in_step[t] = npairs_in_step.get(t, 0) + 1

    fill = []
    vq = Paced(P["vrate"], P["vcap"], k)
    epi = []
    visible = -1
    issued_reads = 0
    last_mfma_n = {}

    def x_convert(s):
        th = []
        def wx():
            vq.force_until(lambda: k.vm.count(("x", s)) == 8)
            k.need(vm=("x", s))
        th.append(wx)
        for p in range(8):
            th.append(lambda p=p: x_write(k, s, p, xq(s, p)))
        for ksl in range(4):
            for rt in range(2):
                th.append(lambda ksl=ksl, rt=rt: x_read(k, s, ksl, rt, xf(4 * s + ksl, rt)))
        return th

    def run_fill(th):
        if k.lg_out() >= 13:
            k.need(lg=k.lg[k.lg_done + 4])
        th()

    xc0 = x_convert(0)
    run_fill(xc0[0])
    next_x = NX0
    for s_ in range(NX0, NX0 + P["nx1"]):
        for p in range(8):
            x_load(k, s_, p, xq(s_, p))
        next_x += 1
        for u in range(next_w, min(next_w + 4, D, P["d1"])):
            dma_w(u)()
        next_w = max(next_w, min(next_w + 4, D, P["d1"]))
    for th in xc0[1:]:
        run_fill(th)
    k.need(vm=("w", 0))
    k.e("s_barrier")
    visible = 0

    def emit_epi(nmax, upto_inst=None):
        cnt = 0
        while epi and (cnt < nmax if upto_inst is None else epi[0][0] <= upto_inst):
            n, o = epi.pop(0)
            gap = k.n - last_mfma_n[n]
            if gap < 13:
                k.e(f"s_nop {min(15, 13 - gap)}")
            if isinstance(o, tuple):
                k.e(o[1])
                k.vmop(o[2], ("st", n))
                cnt += 2
            else:
                k.e(o)
                cnt += 1

    def issue_reads_upto(i_target):
        nonlocal issued_reads
        while issued_reads <= i_target and issued_reads < len(pairs):
            t, j, u = pairs[issued_reads]
            if u > visible:
                break
            if k.lg_out() >= 13:
                k.need(lg=k.lg[k.lg_done + 4])
            aread(issued_reads, j, u, 0)
            aread(issued_reads, j, u, 1)
            issued_reads += 1

    def ensure(lst, tag):
        while tag not in lst:
            run_fill(fill.pop(0))

    epi_start = {}
    for i, (t, j, u) in enumerate(pairs):
        if u % 36 == 35:
            epi_start[i + 3] = (u // 36) * 4 + j

    post_bar_q = []

    def do_barrier(t, upto):
        nonlocal visible
        if upto is None:
            vq.force_until(lambda: k.vm.count(("bw", B.BI)) == 3)
            k.need(vm=("bw", B.BI))
            k.e("s_barrier")
            return
        vq.force_until(lambda: ("w", upto) in k.vm)
        k.need(vm=("w", upto))
        if t in (T_F0, T_F1):
            n_last = 3 if t == T_F0 else 7
            assert k.vm.count(("st", n_last)) == 2
            k.need(vm=("st", n_last))
        k.e("s_barrier")
        visible = upto
        if t in (T_F0, T_F1):
            flag_store(k, 50, 64 if t == T_F0 else 32, 60)

    for i, (t, j, u) in enumerate(pairs):
        if first_of_step[t] == i:
            if t in (0, 12, 36):
                k.stamp()
            pending_bar = None
            bi = BI if t >= P["bi_from"] else 1
            if t % bi == 0 and t + 1 < NU + bi:
                pending_bar = (t, min(t + bi, NU - 1))
            if t == 116:
                pending_bar = (t, None)
            if pending_bar and (visible < t or not P["bar_late"]):
                do_barrier(*pending_bar)
                pending_bar = None
            lead = D if t >= 36 else min(D, P["dfirst"])
            for _ in range(2):
                if next_w <= t + lead and next_w < NU:
                    vq.add(dma_w(next_w), 19)
                    next_w += 1
            if (t + P["xlead"]) % 4 == 0 and 1 <= (t + P["xlead"]) // 4 <= 8:
                s = (t + P["xlead"]) // 4
                assert next_x > s, (t, s, next_x)
                fill.extend(x_convert(s))
            if next_x <= 8:
                XP = P["xper"]
                nst = 8 // XP
                for p in range(XP * (t % nst), XP * (t % nst) + XP):
                    vq.add(lambda s=next_x, p=p: x_load(k, s, p, xq(s, p)), 19)
                if t % nst == nst - 1:
                    next_x += 1
            if t == 38:
                vq.add(lambda: nonce_issue(k, 60), 10)
            if t == T_TOUCH - 4:
                fill.extend(B.setup_thunks(2))
            if t == T_F0 - 3:
                fill.append(lambda: nonce_get(k, 60))
                def fl():
                    k.e(f"s_lshl_b32 s48, s{S_RB}, 2")
                    k.e(f"s_add_u32 s48, s48, s{S_FQ}")
                    k.e("s_lshl_b32 s48, s48, 7")
                    k.e(f"s_add_u32 s48, s48, {FLAG_OFF}")
                    k.e(f"s_lshl_b32 s46, s{S_I2}, 2")
                    k.e("s_add_u32 s50, s46, s48")
                fill.append(fl)
            def up(x):
                return -(-x // BI) * BI + 1
            bw_sched = {}
            for st_, tt in ((0, 88), (1, 88), (2, 92), (3, 95), (4, 98), (5, 101), (6, 104)):
                bw_sched.setdefault(up(tt), []).append(st_)
            for st in bw_sched.get(t, []):
                if st >= B.DW:
                    continue
                for ii in range(3):
                    vq.add(lambda st=st, ii=ii: B.dma_w(st, ii), 19)
            if t == 90:
                vq.add(lambda: flag_load(k, 48, 64, 62, ("fl0",)), 10)
            if t == P["tb0"]:
                vq.force_until(lambda: ("fl0",) in k.vm)
                flag_check(k, 48, 64, 6, 62, ("fl0",))
                for st in range(B.DB):
                    vq.add(lambda st=st: B.load_b(st, 0), 19)
                    vq.add(lambda st=st: B.load_b(st, 1), 19)
            if t == T_TOUCH:
                def touch2():
                    k.e("v_mul_u32_u24 v2, 7282, v0")
                    k.e("v_lshrrev_b32 v2, 16, v2")
                    k.e("v_mul_u32_u24 v3, 9, v2")
                    k.e("v_sub_u32 v3, v0, v3")
                    k.e("v_min_u32 v2, 3, v2")
                    k.e("v_mul_u32_u24 v2, 1152, v2")
                    k.e("v_lshl_add_u32 v2, v3, 7, v2")
                    k.e(f"s_lshl_b32 s46, s{S_IDX}, 2")
                    k.e(f"s_add_u32 s46, s46, s{S_WAVE}")
                    k.e(f"s_mul_i32 s47, s{S_FQ}, 96")
                    k.e("s_add_u32 s46, s46, s47")
                    k.e(f"s_mul_i32 s46, s46, {4*1152}")
                    for c in range(3):
                        k.vmop(f"buffer_load_dword v{4+c}, v2, s[60:63], s46 offen", ("touch",))
                        if c < 2:
                            k.e(f"s_add_u32 s46, s46, {1536*1152}")
                assert not fill
                if P["touch2"]:
                    vq.add(touch2, 40)
            gaps_left = 2 * npairs_in_step[t]
        if i in epi_start:
            n_ = epi_start[i]
            epi.extend((n_, o) for o in epilogue(n_))
        c, ks = divmod(u, 36)
        n = c * 4 + j
        slot = n % 5
        if ks == 0 and n >= 5:
            assert all(v != n - 5 or key <= i for key, v in epi_start.items())
            emit_epi(0, upto_inst=n - 5)
        af = vr(V_AF + (i % NB) * 4)
        issue_reads_upto(i)
        assert issued_reads > i
        needs_lg = [("af", i, 1)]
        if c == 0 and j == 0:
            ensure(k.lg, ("xf", ks, 1))
            needs_lg += [("xf", ks, 0), ("xf", ks, 1)]
        k.need(lg=needs_lg)
        for rt in range(2):
            a = acc(slot, rt)
            cin = "0" if ks == 0 else vr(a, 16)
            k.e(f"v_mfma_f32_32x32x16_bf16 {vr(a,16)}, {af}, {xf(ks,rt)}, {cin}")
            last_mfma_n[n] = k.n
            if rt == 0 and pending_bar:
                do_barrier(*pending_bar)
                pending_bar = None
            if rt == 0:
                issue_reads_upto(i + RA)
            nf = -(-len(fill) // gaps_left)
            gaps_left -= 1
            cnt = 0
            while fill and cnt < nf:
                if k.lg_out() >= 10:
                    break
                fill.pop(0)()
                cnt += 1
            vq.gap()
            emit_epi(P["epg"])
    while fill:
        run_fill(fill.pop(0))
    k.stamp()
    for i in sorted(epi_start):
        if i >= len(pairs):
            n_ = epi_start[i]
            epi.extend((n_, o) for o in epilogue(n_))
    emit_epi(0, upto_inst=9)
    F2_ST = P["f2st"]

    def pre_bar(st):
        if st == F2_ST:
            emit_epi(100000)
            k.need(vm=("st", 11))

    def post_bar(st):
        if st == F2_ST:
            flag_store(k, 50, 0, 60)
            k.stamp()
        if st == 12 - B.DB - 2:
            vq.add(lambda: flag_load(k, 48, 32, 2, ("fl1",)), 10)
        if st == 12 - B.DB:
            vq.force_until(lambda: ("fl1",) in k.vm)
            flag_check(k, 48, 32, 6, 2, ("fl1",))
        if st == 24 - B.DB - 2:
            vq.add(lambda: flag_load(k, 48, 0, 2, ("fl2",)), 10)
        if st == 24 - B.DB:
            vq.force_until(lambda: ("fl2",) in k.vm)
            flag_check(k, 48, 0, 6, 2, ("fl2",))
            k.stamp()

    B.main(B.BI, vq=vq, gap_cb=lambda: emit_epi(P["epg"]), pre_bar=pre_bar, post_bar=post_bar)


def phaseA_qkv(k, P):
    k.label("L_QKV")
    k.c("---------------- phase A: QKV + attention path ----------------")
    NST = 4
    WST = 28672
    HB = NST * WST
    GB = HB + NST * 2048
    assert GB + 2048 <= XB
    PITCH = 448
    V_WD = 40
    V_TA = 47
    V_HA = 54
    V_HB = 57
    V_GW = 59
    V_HW = 60
    V_HV = 63
    V_GA = 64
    V_AF = 68
    V_TA2 = 84
    V_HA2 = 91
    V_XF = 96
    V_GF = 224
    V_HAF = 232
    V_HBF = 244
    NXS = 4

    def xfr(s, ksl, rt):
        return V_XF + ((s % NXS) * 8 + ksl * 2 + rt) * 4

    def xq(s, p):
        return vr(V_XF + ((s % NXS) * 8 + p) * 4)

    for p in range(8):
        x_load(k, 0, p, xq(0, p))
    k.e(f"s_lshl_b32 s{S_FG}, s{S_FQ}, 1")
    k.e(f"s_add_u32 s{S_FG}, s{S_FG}, s{S_I2}")
    k.e(f"s_sub_u32 s{S_FG}, s{S_FG}, 6")
    srd(k, 12, 6, 7, 576 * 3456)
    k.e(f"s_mul_i32 s46, s{S_WAVE}, {7*64}")
    k.e(f"s_mul_i32 s47, s{S_FG}, 144")
    k.e("s_mov_b32 s48, 3456")
    k.e(f"s_mul_i32 s{S_M0W}, s{S_WAVE}, {7*1024}")
    k.e(f"s_mul_i32 s{S_WBASE}, s{S_PW}, {64*3456}")
    k.e(f"s_lshl_b32 s{S_STBASE}, s{S_PW}, 7")

    def dma_w(s, ii):
        st = s % NST
        def f():
            if ii == 0 and s > 0:
                advance(k, S_PW, [(S_WBASE, 64 * 3456), (S_STBASE, 128)])
            k.e(f"s_add_u32 m0, s{S_M0W}, {st*WST + ii*1024}")
            k.e("s_nop 0")
            k.vmop(f"buffer_load_dwordx4 v{V_WD+ii}, s[12:15], s{S_WBASE} offen lds", ("w", s))
        return f

    for ii in range(7):
        k.e(f"v_add_u32 v2, s46, v0")
        k.e(f"v_add_u32 v2, {64*ii}, v2")
        k.e("v_mul_u32_u24 v3, 2341, v2")
        k.e("v_lshrrev_b32 v3, 16, v3")
        k.e("v_mul_u32_u24 v4, 28, v3")
        k.e("v_sub_u32 v4, v2, v4")
        k.e("v_mul_u32_u24 v5, 57, v4")
        k.e("v_lshrrev_b32 v5, 9, v5")
        k.e("v_mul_u32_u24 v6, 9, v5")
        k.e("v_sub_u32 v6, v4, v6")
        k.e("v_mul_lo_u32 v7, v3, s48")
        k.e("v_mul_u32_u24 v5, 1152, v5")
        k.e("v_add3_u32 v7, v7, v5, s47")
        k.e(f"v_lshl_add_u32 v{V_WD+ii}, v6, 4, v7")
        k.e("v_cmp_eq_u32 vcc, 27, v4")
        k.e("v_mov_b32 v4, 0x7ff00000")
        k.e("s_nop 0")
        k.e(f"v_cndmask_b32 v{V_WD+ii}, v{V_WD+ii}, v4, vcc")
        dma_w(0, ii)()
    k.e(f"s_and_b32 s46, s{S_WAVE}, 1")
    k.e("v_lshrrev_b32 v2, 3, v0")
    k.e("v_and_b32 v3, 7, v0")
    k.e("v_lshrrev_b32 v4, 1, v2")
    k.e("s_lshl_b32 s47, s46, 2")
    k.e("v_or_b32 v4, s47, v4")
    k.e("v_xor_b32 v3, v3, v4")
    k.e("v_mul_u32_u24 v7, 1152, v2")
    k.e("v_lshl_add_u32 v7, v3, 4, v7")
    k.e(f"s_lshl_b32 s47, s{S_RB}, 8")
    k.e("s_lshl_b32 s48, s46, 3")
    k.e("s_add_u32 s47, s47, s48")
    k.e("s_sub_u32 s47, s47, 16")
    k.e("s_mul_i32 s47, s47, 1152")
    k.e(f"v_add_u32 v{V_HV}, s47, v7")
    k.e("s_lshl_b32 s49, s46, 10")
    k.e(f"s_add_u32 s49, s49, {HB}")

    def dma_h(s):
        st = s % NST
        def f():
            k.e(f"s_add_u32 m0, s49, {st*2048}")
            k.e("s_nop 0")
            k.vmop(f"buffer_load_dwordx4 v{V_HV}, s[8:11], s{S_STBASE} offen lds", ("w", s))
        return f

    k.e(f"v_lshlrev_b32 v{V_L16}, 4, v0")
    dma_h(0)()
    for s in range(1, 3):
        for p in range(8):
            x_load(k, s, p, xq(s, p))
        for ii in range(7):
            dma_w(s, ii)()
        dma_h(s)()
    for p in range(8):
        x_load(k, 3, p, xq(3, p))
    common2(k)
    k.e("v_lshrrev_b32 v2, 4, v0")
    k.e("v_bfe_u32 v3, v0, 2, 2")
    k.e("v_and_b32 v4, 3, v0")
    k.e("v_lshrrev_b32 v5, 1, v2")
    k.e("v_lshl_add_u32 v5, v5, 3, v3")
    k.e(f"v_mul_u32_u24 v5, {PITCH}, v5")
    k.e("v_and_b32 v6, 1, v2")
    k.e("v_lshl_add_u32 v5, v6, 5, v5")
    k.e(f"v_lshl_add_u32 v{V_TA}, v4, 3, v5")
    k.e(f"v_add_u32 v{V_TA2}, {2*WST}, v{V_TA}")
    k.e("v_lshl_add_u32 v5, v2, 3, v3")
    k.e(f"v_mul_u32_u24 v5, {PITCH}, v5")
    k.e("v_lshl_add_u32 v5, v4, 3, v5")
    k.e("v_and_b32 v10, 15, v0")
    k.e("v_mul_u32_u24 v10, 592, v10")
    k.e("v_lshl_add_u32 v10, v2, 4, v10")
    for i in range(3):
        k.e(f"s_mul_i32 s46, s{S_WAVE}, 3")
        k.e(f"s_add_u32 s46, s46, {i}")
        k.e("s_min_u32 s46, s46, 8")
        k.e("s_lshl_b32 s47, s46, 5")
        k.e("s_add_u32 s47, s47, 144")
        k.e(f"v_add_u32 v{V_HA+i}, s47, v5")
        k.e(f"v_add_u32 v{V_HA2+i}, {2*WST}, v{V_HA+i}")
        k.e("s_lshl_b32 s47, s46, 6")
        k.e(f"v_add_u32 v{V_HW+i}, s47, v10")
    k.e("v_and_b32 v5, 15, v0")
    k.e("v_bfe_u32 v6, v5, 1, 3")
    for k32 in range(2):
        k.e(f"v_add_u32 v7, {4*k32}, v2")
        k.e("v_xor_b32 v7, v7, v6")
        k.e("v_lshlrev_b32 v7, 4, v7")
        k.e("v_lshl_add_u32 v7, v5, 7, v7")
        k.e(f"v_add_u32 v{V_HB+k32}, {HB}, v7")

    def aread(i, s, ksl, T, half):
        st = s % NST
        off = (ksl * 16 + half * 4) * PITCH + (st % 2) * WST + 64 * T
        base = (V_TA2 if st >= 2 else V_TA)
        d = V_AF + (i % 4) * 4 + half * 2
        k.lgop(f"ds_read_b64_tr_b16 {vr(d,2)}, v{base} offset:{off}", ("af", i, half))

    def haread(s, k32, i, half):
        st = s % NST
        off = (k32 * 32 + half * 4) * PITCH + (st % 2) * WST
        base = (V_HA2 if st >= 2 else V_HA) + i
        d = V_HAF + i * 4 + half * 2
        k.lgop(f"ds_read_b64_tr_b16 {vr(d,2)}, v{base} offset:{off}", ("haf", s, k32, i, half))

    def accq(T, rt):
        return (T * 2 + rt) * 16
    A_H = 224

    def x_convert(s):
        def wx():
            vq.force_until(lambda: k.vm.count(("x", s)) == 8)
            k.need(vm=("x", s))
        th = [wx]
        for p in range(8):
            th.append(lambda p=p: x_write(k, s, p, xq(s, p)))
        for ksl in range(4):
            for rt in range(2):
                th.append(lambda ksl=ksl, rt=rt: x_read(k, s, ksl, rt, vr(xfr(s, ksl, rt))))
        return th

    vq = Paced(P["vrate"], P["vcap"], k)

    def guard():
        if k.lg_out() >= 13:
            k.need(lg=k.lg[k.lg_done + 4])

    for th in x_convert(0):
        guard()
        th()
    k.need(vm=("w", 0))
    k.e("s_barrier")

    pairs = [(s, ksl, T) for s in range(9) for ksl in range(4) for T in range(7)]
    fill = []
    issued = 0
    visible = 0

    def issue_upto(it):
        nonlocal issued
        while issued <= it and issued < len(pairs):
            s, ksl, T = pairs[issued]
            if s > visible:
                break
            guard()
            aread(issued, s, ksl, T, 0)
            aread(issued, s, ksl, T, 1)
            issued += 1

    for i, (s, ksl, T) in enumerate(pairs):
        ks = 4 * s + ksl
        if ksl == 0 and T == 0:
            if s in (0, 2):
                k.stamp()
            while fill:
                guard()
                fill.pop(0)()
            if s + 1 <= 8:
                vq.force_until(lambda: k.vm.count(("w", s + 1)) == 8)
                k.need(vm=("w", s + 1))
                k.e("s_barrier")
                visible = s + 1
            if s + 3 <= 8:
                for ii in range(7):
                    vq.add(dma_w(s + 3, ii), 33)
                    if s >= 1:
                        vq.add(lambda s=s, p=ii: x_load(k, s + 3, p, xq(s + 3, p)), 19)
                vq.add(dma_h(s + 3), 19)
                if s >= 1:
                    vq.add(lambda s=s: x_load(k, s + 3, 7, xq(s + 3, 7)), 19)
        if ksl == 2 and T == 0 and s + 1 <= 8:
            xc = x_convert(s + 1)
            if "noxw" in P["exp"]:
                xc = xc[:1] + xc[9:]
            fill.extend(xc)
        if s == 7 and ksl == 0 and T == 1:
            def touch3():
                srd(k, 60, 56, 57, 576 * 1152)
                k.e("v_mul_u32_u24 v2, 7282, v0")
                k.e("v_lshrrev_b32 v2, 16, v2")
                k.e("v_mul_u32_u24 v3, 9, v2")
                k.e("v_sub_u32 v3, v0, v3")
                k.e("v_min_u32 v2, 5, v2")
                k.e("v_mul_u32_u24 v2, 1152, v2")
                k.e("v_lshl_add_u32 v2, v3, 7, v2")
                k.e(f"s_sub_u32 s46, s{S_IDX}, 24")
                k.e("s_lshl_b32 s46, s46, 2")
                k.e(f"s_add_u32 s46, s46, s{S_WAVE}")
                k.e(f"s_mul_i32 s46, s46, {18*1152}")
                for z in range(3):
                    k.vmop(f"buffer_load_dword v{4+z}, v2, s[60:63], s46 offen", ("touch",))
                    k.e(f"s_add_u32 s46, s46, {6*1152}")
            if P["touch2"]:
                vq.add(touch3, 40)
        if s == 8 and ksl == 0 and T == 1:
            vq.add(lambda: nonce_issue(k, 252), 10)
        if T == 0:
            guard()
            if ksl % 2 == 0:
                k32 = ksl // 2
                k.lgop(f"ds_read_b128 {vr(V_HBF + k32*4)}, v{V_HB+k32} offset:{(s%NST)*2048}", ("hbf", s, k32))
        issue_upto(i)
        assert issued > i
        need = [("af", i, 1)]
        if T == 0:
            need += [("xf", ks, 0), ("xf", ks, 1)]
        k.need(lg=need)
        af = vr(V_AF + (i % 4) * 4)
        for rt in range(2):
            a = accq(T, rt)
            cin = "0" if ks == 0 else ar(a, 16)
            k.e(f"v_mfma_f32_32x32x16_bf16 {ar(a,16)}, {af}, {vr(xfr(s,ksl,rt))}, {cin}")
            if rt == 0:
                issue_upto(i + 2)
            if fill and k.lg_out() < 9:
                fill.pop(0)()
            vq.gap()
        if ksl % 2 == 0 and T in (1, 2, 3) and "nohalo" not in P["exp"]:
            guard()
            haread(s, ksl // 2, T - 1, 0)
            haread(s, ksl // 2, T - 1, 1)
        if ksl % 2 == 0 and T in (4, 5, 6) and "nohalo" not in P["exp"]:
            k32 = ksl // 2
            hi = T - 4
            k.need(lg=[("haf", s, k32, hi, 1), ("hbf", s, k32)])
            a = A_H + hi * 4
            cin = "0" if ks == 0 else ar(a, 4)
            k.e(f"v_mfma_f32_16x16x32_bf16 {ar(a,4)}, {vr(V_HAF+hi*4)}, {vr(V_HBF+k32*4)}, {cin}")
    while fill:
        guard()
        fill.pop(0)()
    vq.drain()
    k.wait_all(vm=False)
    k.e("s_nop 7")
    k.e("s_nop 7")
    k.e("s_barrier")
    k.stamp()
    k.e("v_and_b32 v2, 31, v0")
    k.e("v_lshrrev_b32 v3, 5, v0")
    k.e(f"s_lshl_b32 s46, s{S_WAVE}, 6")
    k.e("s_add_u32 s46, s46, 16")
    k.need(vm=("touch",)) if P["touch2"] else None
    k.e("v_add_u32 v4, s46, v2")
    k.e("v_mul_u32_u24 v4, 592, v4")
    k.e("v_lshl_add_u32 v8, v3, 4, v4")
    k.e("v_mul_u32_u24 v5, 144, v3")
    k.e("v_add_u32 v4, v4, v5")
    V_Q = 84
    combos = [(T, qq) for T in range(7) for qq in range(4)]
    for rt in range(2):
        for (T, qq) in combos:
            g2 = 8 * T + 2 * qq
            if g2 < 18:
                guard()
                k.lgop(f"ds_write_b128 v8, {ar(accq(T, rt) + qq*4)} offset:{rt*18944 + g2*16}", ("qw",))
    for rt in range(2):
        for g9 in range(9):
            guard()
            k.lgop(f"ds_read_b128 {vr(V_Q + rt*36 + g9*4)}, v4 offset:{rt*18944 + g9*16}", ("qr",))
    for rt in range(2):
        for (T, qq) in combos:
            g2 = 8 * T + 2 * qq
            if 18 <= g2 < 54:
                guard()
                k.lgop(f"ds_write_b128 v8, {ar(accq(T, rt) + qq*4)} offset:{rt*18944 + (g2-18)*16}", ("kvw",))
    for hi in range(3):
        guard()
        k.lgop(f"ds_write_b128 v{V_HW+hi}, {ar(A_H+hi*4)}", ("kvw",))
    sc = (18 ** -0.5) * LOG2E
    k.e(f"s_mov_b32 s46, 0x{f2u(sc):08x}")
    k.need(lg=("qr",))
    for i in range(72):
        k.e(f"v_mul_f32 v{V_Q+i}, s46, v{V_Q+i}")
    k.wait_all()
    nonce_get(k, 252)
    k.e("s_barrier")
    k.stamp()
    k.e(f"s_lshl_b32 s46, s{S_RB}, 2")
    k.e(f"s_add_u32 s46, s46, s{S_WAVE}")
    k.e("s_lshl_b32 s46, s46, 6")
    k.e("v_add_u32 v5, s46, v2")
    k.e(f"v_subrev_u32 v9, {14*592}, v4")
    V_K = 160
    V_L = 232
    V_P = 10
    V_O = 40
    V_SA = 240
    k.e(f"s_mul_i32 s47, s{S_FG}, {9*512}")
    k.e(f"v_mul_u32_u24 v6, {5*512}, v3")
    k.e("v_lshl_add_u32 v7, v2, 4, s47")
    k.e(f"v_add_u32 v{V_SA}, v6, v7")
    k.e(f"v_mul_u32_u24 v6, {NKB*1024}, v3")
    k.e(f"v_add3_u32 v{V_SA+1}, v6, v7, 0")
    k.e(f"v_add_u32 v{V_SA+1}, {4*512}, v{V_SA+1}")
    k.e(f"s_lshl_b32 s46, s{S_RB}, 3")
    k.e(f"s_lshl_b32 s47, s{S_WAVE}, 1")
    k.e("s_add_u32 s46, s46, s47")
    k.e(f"s_mul_i32 s{S_STBASE}, s46, {NKB*1024}")

    def kvread(rt, w, isv, buf):
        off = rt * 18944 + (14 - 2 * w) * 592 + isv * 288
        for g in range(9):
            k.lgop(f"ds_read_b128 {vr(V_K + buf*36 + g*4)}, v9 offset:{off + g*16}", ("kv", rt, w, isv))

    for rt in range(2):
        q = V_Q + rt * 36
        kvread(rt, 0, 0, 0)
        for w in range(8):
            buf = w & 1
            k.need(lg=("kv", rt, w, 0))
            if w + 1 < 8:
                kvread(rt, w + 1, 0, buf ^ 1)
            else:
                kvread(rt, 0, 1, buf ^ 1)
            kb = V_K + buf * 36
            for d in range(9):
                for e in range(2):
                    a = q + e * 18 + 2 * d
                    b = kb + e * 18 + 2 * d
                    l = V_L + e * 4 + (d & 1) * 2
                    if d < 2:
                        k.e(f"v_pk_mul_f32 {vr(l,2)}, {vr(a,2)}, {vr(b,2)}")
                    else:
                        k.e(f"v_pk_fma_f32 {vr(l,2)}, {vr(a,2)}, {vr(b,2)}, {vr(l,2)}")
            for e in range(2):
                k.e(f"v_pk_add_f32 {vr(V_L+e*4,2)}, {vr(V_L+e*4,2)}, {vr(V_L+e*4+2,2)}")
            for e in range(2):
                k.e(f"v_add_f32 v{V_P + e*8 + w}, v{V_L+e*4}, v{V_L+e*4+1}")
        k.e(f"v_add_u32 v26, {32*rt}, v5")
        k.e("v_mov_b32 v27, 0xff7fffff")
        for w in range(1, 8):
            k.e(f"v_cmp_le_u32 vcc, {2*w}, v26")
            k.e("s_nop 1")
            for e in range(2):
                k.e(f"v_cndmask_b32 v{V_P+e*8+w}, v27, v{V_P+e*8+w}, vcc")
        for e in range(2):
            p = V_P + e * 8
            m = 28 + e
            k.e(f"v_max3_f32 v{m}, v{p}, v{p+1}, v{p+2}")
            k.e(f"v_max3_f32 v{m}, v{m}, v{p+3}, v{p+4}")
            k.e(f"v_max3_f32 v{m}, v{m}, v{p+5}, v{p+6}")
            k.e(f"v_max_f32 v{m}, v{m}, v{p+7}")
        for e in range(2):
            p = V_P + e * 8
            for w in range(8):
                k.e(f"v_sub_f32 v{p+w}, v{p+w}, v{28+e}")
        for e in range(2):
            p = V_P + e * 8
            for w in range(8):
                k.e(f"v_exp_f32 v{p+w}, v{p+w}")
        k.e("s_nop 0")
        for e in range(2):
            p = V_P + e * 8
            k.e(f"v_add_f32 v{28+e}, v{p}, v{p+1}")
        for w in range(2, 8):
            for e in range(2):
                p = V_P + e * 8
                k.e(f"v_add_f32 v{28+e}, v{28+e}, v{p+w}")
        for e in range(2):
            k.e(f"v_rcp_f32 v{28+e}, v{28+e}")
        k.e("s_nop 0")
        for e in range(2):
            p = V_P + e * 8
            for w in range(8):
                k.e(f"v_mul_f32 v{p+w}, v{p+w}, v{28+e}")
        for w in range(8):
            buf = (w & 1)
            k.need(lg=("kv", rt, w, 1))
            if w + 1 < 8:
                kvread(rt, w + 1, 1, buf ^ 1)
            vb = V_K + buf * 36
            for e in range(2):
                p = V_P + e * 8 + w
                pe = p & ~1
                sel = p & 1
                for d in range(9):
                    o = V_O + e * 18 + 2 * d
                    b = vb + e * 18 + 2 * d
                    if w == 0:
                        k.e(f"v_pk_mul_f32 {vr(o,2)}, {vr(pe,2)}, {vr(b,2)} op_sel:[{sel},0] op_sel_hi:[{sel},1]")
                    else:
                        k.e(f"v_pk_fma_f32 {vr(o,2)}, {vr(pe,2)}, {vr(b,2)}, {vr(o,2)} op_sel:[{sel},0,0] op_sel_hi:[{sel},1,1]")
        for a in range(9):
            d = q + a * 2
            k.e(f"v_cvt_pk_bf16_f32 v{d}, v{V_O+4*a}, v{V_O+4*a+1}")
            k.e(f"v_cvt_pk_bf16_f32 v{d+1}, v{V_O+4*a+2}, v{V_O+4*a+3}")
        k.e("v_cmp_ne_u32 vcc, 0, v3")
        k.e(f"s_add_u32 s{S_T2}, s{S_STBASE}, {rt*NKB*1024}")
        k.e("s_nop 0")
        for i in range(16):
            k.e(f"v_cndmask_b32 v{q+20+i}, v{q+i}, v{q+i+2}, vcc")
        for i in range(2):
            k.e(f"v_cndmask_b32 v{V_SA+4+2*rt+i}, v{q+16+i}, v{q+i}, vcc")
        for m in range(4):
            k.vmop(f"buffer_store_dwordx4 {vr(q+20+4*m)}, v{V_SA}, s[16:19], s{S_T2} offen offset:{m*512} sc0 sc1", ("st",))
    k.e("s_nop 1")
    k.e(f"v_permlane32_swap_b32 v{V_SA+4}, v{V_SA+6}")
    k.e(f"v_permlane32_swap_b32 v{V_SA+5}, v{V_SA+7}")
    k.e("s_nop 1")
    k.vmop(f"buffer_store_dwordx4 {vr(V_SA+4)}, v{V_SA+1}, s[16:19], s{S_STBASE} offen sc0 sc1", ("st",))
    k.stamp()


S_RT, S_NT, S_SPLIT = 65, 66, 49
S_SEG = 64
S_M0B = 38
S_BB = 67
S_FL = 35


class PhaseB:
    LB = 49152

    def __init__(self, k, P, is_o):
        self.k, self.P, self.is_o = k, P, is_o
        self.NS = 18 if is_o else 36
        self.RS = 9
        self.DW = 8 - P["b_bi"]
        self.DB = P["b_db"]
        self.SL = 12288
        self.V_WD = [32, 33, 34]
        self.V_AE = [35, 36, 37, 38, 31, 30]
        self.V_SC = 8
        self.V_T = 10
        self.V_AF = 64
        self.NAF = 8
        self.RA = P["b_ra"]
        self.BI = P["b_bi"]
        self.V_ACC = 160
        self.NBB = self.DB + 1

    def pos(self, st):
        return (st + 7) % 9

    def setup_thunks(self, t):
        k, P = self.k, self.P
        th = []

        def f0():
            if self.is_o:
                k.e(f"s_and_b32 s46, s{S_FG}, 1")
                k.e(f"s_lshr_b32 s{S_NT}, s{S_FG}, 1")
                k.e(f"s_mov_b32 s{S_SPLIT}, 4")
                srd(k, 60, 56, 57, 576 * 1152)
            else:
                k.e(f"s_and_b32 s46, s{S_I2}, 1")
                k.e(f"s_lshr_b32 s{S_NT}, s{S_I2}, 1")
                k.e(f"s_mov_b32 s{S_SPLIT}, s{S_FQ}")
                srd(k, 60, 52, 53, 4608 * 1152)
            k.e(f"s_lshl_b32 s{S_RT}, s{S_RB}, 1")
            k.e(f"s_add_u32 s{S_RT}, s{S_RT}, s46")
        th.append(f0)

        def f1():
            k.e(f"s_mul_i32 s{S_SEG}, s{S_WAVE}, {8*1152}")
            k.e(f"s_mul_i32 s46, s{S_NT}, 384")
            k.e(f"s_add_u32 s{S_SEG}, s{S_SEG}, s46")
            if not self.is_o:
                k.e(f"s_mul_i32 s46, s{S_SPLIT}, {384*1152}")
                k.e(f"s_add_u32 s{S_SEG}, s{S_SEG}, s46")
            k.e(f"s_mul_i32 s{S_M0B}, s{S_WAVE}, 3072")
        th.append(f1)

        def f2():
            k.e(f"s_lshl_b32 s46, s{S_RT}, 2")
            k.e(f"s_add_u32 s46, s46, s{S_WAVE}")
            k.e(f"s_mul_i32 s46, s46, {NKB}")
            if not self.is_o:
                k.e(f"s_mul_i32 s{S_BB}, s{S_SPLIT}, 72")
                k.e(f"s_add_u32 s46, s46, s{S_BB}")
                k.e("s_add_u32 s46, s46, 36")
            k.e(f"s_lshl_b32 s{S_BB}, s46, 10")
        th.append(f2)
        for i in range(3):
            def g0(i=i):
                k.e(f"v_add_u32 v{t}, {64*i}, v0")
                k.e(f"v_mul_u32_u24 v{t+1}, 2731, v{t}")
                k.e(f"v_lshrrev_b32 v{t+1}, 16, v{t+1}")
                k.e(f"v_mul_u32_u24 v{t+2}, 24, v{t+1}")
                k.e(f"v_sub_u32 v{t+2}, v{t}, v{t+2}")
            def g1(i=i):
                k.e(f"v_bfe_u32 v{t+3}, v{t+1}, 1, 1")
                k.e(f"v_lshlrev_b32 v{t+3}, 2, v{t+3}")
                k.e(f"v_xor_b32 v{t+2}, v{t+2}, v{t+3}")
                k.e(f"v_mul_u32_u24 v{t+1}, 1152, v{t+1}")
                k.e(f"v_lshl_add_u32 v{self.V_WD[i]}, v{t+2}, 4, v{t+1}")
            th += [g0, g1]

        def h0():
            k.e(f"v_lshrrev_b32 v{t}, 4, v0")
            k.e(f"v_bfe_u32 v{t+1}, v0, 2, 2")
            k.e(f"v_and_b32 v{t+2}, 3, v0")
            k.e(f"v_lshrrev_b32 v{t+3}, 1, v{t}")
            k.e(f"v_lshl_add_u32 v{t+3}, v{t+3}, 3, v{t+1}")
        def h1():
            k.e(f"v_mul_u32_u24 v{t+3}, 384, v{t+3}")
            k.e(f"v_and_b32 v{t+4}, 1, v{t}")
            k.e(f"v_lshl_add_u32 v{t+3}, v{t+4}, 5, v{t+3}")
            k.e(f"v_lshl_add_u32 v{t+3}, v{t+2}, 3, v{t+3}")
            k.e(f"v_lshrrev_b32 v{t+4}, 1, v{t+1}")
        def h2():
            ae = self.V_AE
            k.e(f"v_lshlrev_b32 v{t+4}, 6, v{t+4}")
            k.e(f"v_add_u32 v{t+3}, {self.LB}, v{t+3}")
            k.e(f"v_add_u32 v{ae[0]}, v{t+3}, v{t+4}")
            k.e(f"v_sub_u32 v{ae[1]}, v{t+3}, v{t+4}")
            k.e(f"v_add_u32 v{ae[1]}, 64, v{ae[1]}")
        def h3():
            ae = self.V_AE
            for z in (1, 2):
                k.e(f"v_add_u32 v{ae[2*z]}, {z*4*self.SL}, v{ae[0]}")
                k.e(f"v_add_u32 v{ae[2*z+1]}, {z*4*self.SL}, v{ae[1]}")
        th += [h0, h1, h2, h3]
        return th

    def dma_w(self, st, i):
        k = self.k
        seg, r = divmod(st, 12)
        segstride = 384 if self.is_o else 1536
        k.e(f"s_add_u32 m0, s{S_M0B}, {self.LB + self.pos(st)*self.SL + i*1024}")
        k.e(f"s_add_u32 s{S_T1}, s{S_SEG}, {(seg*segstride + r*32)*1152}")
        k.vmop(f"buffer_load_dwordx4 v{self.V_WD[i]}, s[60:63], s{S_T1} offen lds", ("bw", st))

    def bfr(self, st, kh):
        return ((st % self.NBB) * 2 + kh) * 4

    def load_b(self, st, kh):
        k = self.k
        k.e(f"s_add_u32 s{S_T0}, s{S_BB}, {st*2048}")
        k.vmop(f"buffer_load_dwordx4 {ar(self.bfr(st,kh))}, v{V_L16}, s[16:19], s{S_T0} offen offset:{kh*1024} {self.P['ldscope']}", ("b", st, kh))

    def aread(self, i, st, kh, a, half):
        k = self.k
        z, sl = divmod(self.pos(st), 4)
        off = sl * self.SL + (16 * kh + 4 * half) * 384
        be, bo = self.V_AE[2 * z], self.V_AE[2 * z + 1]
        if a % 2 == 0:
            base, off = be, off + a * 64
        else:
            base, off = bo, off + (a - 1) * 64
        assert 0 <= off < 65536
        d = self.V_AF + (i % self.NAF) * 4 + half * 2
        k.lgop(f"ds_read_b64_tr_b16 {vr(d,2)}, v{base} offset:{off}", ("baf", i, half))

    def main(self, visible, vq=None, gap_cb=None, pre_bar=None, post_bar=None):
        k, P = self.k, self.P
        NS, DW, DB = self.NS, self.DW, self.DB
        if vq is None:
            vq = Paced(P["brate"], P["vcap"], k)
        vq.rate = P["brate"]
        ops = [(st, kh, a) for st in range(NS) for kh in range(2) for a in range(6)]
        issued = 0

        def issue_upto(it):
            nonlocal issued
            while issued <= it and issued < len(ops):
                st, kh, a = ops[issued]
                if st > visible:
                    break
                self.aread(issued, st, kh, a, 0)
                self.aread(issued, st, kh, a, 1)
                issued += 1

        BI = self.BI

        def boundary(st):
            nonlocal visible
            if st >= 1 and st % BI == 0:
                upto = min(st + BI, NS - 1)
                if upto > visible:
                    vq.force_until(lambda: k.vm.count(("bw", upto)) == 3)
                    k.need(vm=("bw", upto))
                    visible = upto
                if pre_bar:
                    pre_bar(st)
                k.e("s_barrier")
            if post_bar and st >= 1:
                post_bar(st)
            if st + DB < NS:
                vq.add(lambda st=st: self.load_b(st + DB, 0), 19)
                vq.add(lambda st=st: self.load_b(st + DB, 1), 19)
            if st + DW < NS:
                for ii in range(3):
                    vq.add(lambda st=st, ii=ii: self.dma_w(st + DW, ii), 19)

        for i, (st, kh, a) in enumerate(ops):
            issue_upto(i)
            assert issued > i
            if a == 0:
                vq.force_until(lambda: ("b", st, kh) in k.vm)
                k.need(vm=("b", st, kh), lg=("baf", i, 1))
            else:
                k.need(lg=("baf", i, 1))
            ac = self.V_ACC + a * 16
            cin = "0" if (st == 0 and kh == 0) else vr(ac, 16)
            k.e(f"v_mfma_f32_32x32x16_bf16 {vr(ac,16)}, {vr(self.V_AF+(i%self.NAF)*4)}, {ar(self.bfr(st,kh))}, {cin}")
            if kh == 0 and a == 0:
                boundary(st)
            issue_upto(i + self.RA)
            vq.gap()
            if gap_cb:
                gap_cb()
        vq.drain()
        k.stamp()

    def epilogue(self):
        k, P = self.k, self.P
        t = self.V_T
        sc = self.V_SC
        k.e(f"s_mul_i32 s46, s{S_RT}, 3")
        k.e(f"s_add_u32 s46, s46, s{S_NT}")
        k.e(f"s_add_u32 s{S_FL}, s46, 40")
        k.e(f"s_lshl_b32 s{S_FL}, s{S_FL}, 7")
        k.e(f"s_add_u32 s{S_FL}, s{S_FL}, {FLAG_OFF}")
        k.e("s_mul_i32 s46, s46, 20")
        k.e(f"s_add_u32 s46, s46, s{S_WAVE}")
        k.e(f"s_mul_i32 s{S_BB}, s46, 12288")
        k.e(f"s_add_u32 s{S_BB}, s{S_BB}, {PART_OFF}")
        k.e(f"s_mul_i32 s46, s{S_SPLIT}, {4*12288}")
        k.e(f"s_add_u32 s{S_STBASE}, s{S_BB}, s46")
        k.e("s_nop 3")
        PK = 96
        for pr in range(12):
            a0 = self.V_ACC + pr * 8
            for r in range(4):
                k.e(f"v_cvt_pk_bf16_f32 v{PK+pr*4+r}, v{a0+2*r}, v{a0+2*r+1}")
            if pr % 4 == 0:
                k.e(f"s_add_u32 s{S_T2}, s{S_STBASE}, {pr*1024}")
            k.vmop(f"buffer_store_dwordx4 {vr(PK+pr*4)}, v{V_L16}, s[16:19], s{S_T2} offen offset:{(pr%4)*1024} sc0 sc1", ("pst",))
        k.e(f"s_lshl_b32 s46, s{S_SPLIT}, 2")
        k.e(f"s_add_u32 s46, s46, s{S_FL}")
        k.stamp()
        publish(k, 46, t, ("pst",))
        k.stamp()

    def phaseC(self):
        k, P = self.k, self.P
        t = self.V_T
        srd(k, 8, 28, 29, 2048 * 576 * 2)
        poll(k, S_FL, 6, t)
        k.stamp()
        k.e(f"s_mul_i32 s46, s{S_SPLIT}, 3072")
        k.e(f"s_add_u32 s{S_BB}, s{S_BB}, s46")
        L = 96
        sc = self.V_SC
        k.e(f"s_lshl_b32 s46, s{S_RT}, 2")
        k.e(f"s_add_u32 s46, s46, s{S_WAVE}")
        k.e("s_lshl_b32 s46, s46, 7")
        k.e(f"s_add_u32 s46, s46, {G_OFF}")
        k.e(f"v_and_b32 v{t}, 31, v0")
        k.e(f"v_lshlrev_b32 v{t}, 2, v{t}")
        k.vmop(f"buffer_load_dword v{sc}, v{t}, s[16:19], s46 offen sc0 sc1", ("g",))
        for s in range(5):
            k.e(f"s_add_u32 s{S_T0}, s{S_BB}, {s*4*12288}")
            for pr in range(3):
                k.vmop(f"buffer_load_dwordx4 {vr(L + (s*3+pr)*4)}, v{V_L16}, s[16:19], s{S_T0} offen offset:{pr*1024} sc0 sc1", ("pl", s))
        k.e(f"s_lshl_b32 s46, s{S_RT}, 2")
        k.e(f"s_add_u32 s46, s46, s{S_WAVE}")
        k.e(f"s_mul_i32 s46, s46, {32*1152}")
        k.e(f"s_mul_i32 s{S_T1}, s{S_NT}, 384")
        k.e(f"s_add_u32 s46, s46, s{S_T1}")
        k.e(f"s_mul_i32 s{S_T1}, s{S_SPLIT}, 96")
        k.e(f"s_add_u32 s46, s46, s{S_T1}")
        k.e(f"v_and_b32 v{t}, 31, v0")
        k.e(f"v_mul_u32_u24 v{t}, 1152, v{t}")
        k.e(f"v_lshrrev_b32 v{t+1}, 5, v0")
        k.e(f"v_lshl_add_u32 v{t}, v{t+1}, 4, v{t}")
        A = 160
        TT = 192
        for s in range(5):
            k.need(vm=("pl", s))
            for d in range(12):
                src = L + s * 12 + d
                if s == 0:
                    k.e(f"v_lshlrev_b32 v{A+2*d}, 16, v{src}")
                    k.e(f"v_and_b32 v{A+2*d+1}, 0xffff0000, v{src}")
                else:
                    k.e(f"v_lshlrev_b32 v{TT+2*d}, 16, v{src}")
                    k.e(f"v_and_b32 v{TT+2*d+1}, 0xffff0000, v{src}")
            if 0 < s < 4:
                for d in range(24):
                    k.e(f"v_add_f32 v{A+d}, v{A+d}, v{TT+d}")
            if s == 3:
                k.e(f"v_sub_f32 v{t+1}, 1.0, v{sc}")
                for d in range(24):
                    k.e(f"v_mul_f32 v{A+d}, v{t+1}, v{A+d}")
            if s == 4:
                for d in range(24):
                    k.e(f"v_fmac_f32 v{A+d}, v{sc}, v{TT+d}")
        for d in range(12):
            k.e(f"v_cvt_pk_bf16_f32 v{TT+d}, v{A+2*d}, v{A+2*d+1}")
        k.e("s_nop 1")
        for pr in range(3):
            b = TT + pr * 4
            k.e(f"v_permlane32_swap_b32 v{b}, v{b+2}")
            k.e(f"v_permlane32_swap_b32 v{b+1}, v{b+3}")
        k.e("s_nop 1")
        for pr in range(3):
            k.vmop(f"buffer_store_dwordx4 {vr(TT+pr*4)}, v{t}, s[8:11], s46 offen offset:{pr*32}", ("ost",))
        k.wait_all()
        k.stamp()


def gate_wg(k, P):
    k.c("---------------- gate rows ----------------")
    srd(k, 20, 54, 55, 1152)
    k.e("v_and_b32 v3, 7, v0")
    k.e("v_lshlrev_b32 v3, 4, v3")
    GW = 64
    for s in range(9):
        k.vmop(f"buffer_load_dwordx4 {vr(GW+4*s)}, v3, s[20:23], 0 offen offset:{s*128}", ("gw",))
    k.e(f"s_lshl_b32 s46, s{S_RB}, 1")
    k.e(f"s_add_u32 s46, s46, s{S_FG}")
    k.e(f"s_sub_u32 s49, s46, 6")
    k.e(f"s_lshl_b32 s46, s49, 2")
    k.e(f"s_add_u32 s46, s46, s{S_WAVE}")
    k.e(f"s_mul_i32 s{S_XS}, s46, {32*1152}")
    k.e(f"s_add_u32 s{S_XS+1}, s{S_XS}, {16*1152}")
    k.e("s_lshl_b32 s48, s46, 7")
    k.e(f"s_add_u32 s48, s48, {G_OFF}")
    X = 100
    for p in range(4):
        for s in range(9):
            v = V_XL if p % 2 == 0 else V_XL2
            k.vmop(f"buffer_load_dwordx4 {vr(X+(p*9+s)*4)}, v{v}, s[8:11], s{S_XS+p//2} offen offset:{s*128}", ("gx", p))
    for p in range(4):
        k.e(f"v_mov_b32 v{4+p}, 0")
    for p in range(4):
        k.need(vm=("gx", p))
        for s in range(9):
            for d in range(4):
                k.e(f"v_dot2_f32_bf16 v{4+p}, v{X+(p*9+s)*4+d}, v{GW+4*s+d}, v{4+p}")
    k.e("s_nop 3")
    for m in (1, 2, 4):
        for p in range(4):
            k.lgop(f"ds_swizzle_b32 v{8+p}, v{4+p} offset:{(m << 10) | 0x1f}", ("sw",))
        k.wait_all(vm=False)
        for p in range(4):
            k.e(f"v_add_f32 v{4+p}, v{4+p}, v{8+p}")
    for p in range(4):
        k.e(f"v_mul_f32 v{4+p}, 0x{f2u(-LOG2E):08x}, v{4+p}")
    for p in range(4):
        k.e(f"v_exp_f32 v{4+p}, v{4+p}")
    k.e("s_nop 0")
    for p in range(4):
        k.e(f"v_add_f32 v{4+p}, 1.0, v{4+p}")
    for p in range(4):
        k.e(f"v_rcp_f32 v{4+p}, v{4+p}")
    k.e("v_lshrrev_b32 v2, 3, v0")
    k.e("v_lshlrev_b32 v2, 2, v2")
    for p in range(4):
        k.vmop(f"buffer_store_dword v{4+p}, v2, s[16:19], s48 offen offset:{p*32} sc0 sc1", ("gst",))
    k.wait_all()
    k.e("s_barrier")
    k.e(f"s_cmp_lg_u32 s{S_WAVE}, 0")
    k.e("s_cbranch_scc1 L_QEND")
    k.e(f"s_mul_i32 s46, s49, 3")
    k.e("s_add_u32 s46, s46, 40")
    k.e("s_lshl_b32 s46, s46, 7")
    k.e(f"s_add_u32 s46, s46, {FLAG_OFF + 20}")
    k.e(f"v_mov_b32 v4, s{S_NONCE}")
    k.e("v_lshlrev_b32 v5, 7, v0")
    k.e("s_mov_b64 exec, 7")
    k.e("buffer_store_dword v4, v5, s[16:19], s46 offen sc0 sc1")
    k.e("s_mov_b64 exec, -1")
    k.e("s_branch L_QEND")


def gen(P):
    k = KB()
    k.stamps_on = P["stamps"]
    prologue(k, P)
    st0 = k.save()
    B = PhaseB(k, P, False)
    phaseA_mlp(k, P, B)
    B.epilogue()
    B.phaseC()
    k.dbg_mode = "mlp" if P["dbgstamps"] else None
    k.stamp_flush()
    k.e("s_branch L_END")
    k.restore(st0)
    phaseA_qkv(k, P)
    k.e(f"s_add_u32 s{S_FL}, s{S_RB}, 32")
    k.e(f"s_lshl_b32 s{S_FL}, s{S_FL}, 7")
    k.e(f"s_add_u32 s{S_FL}, s{S_FL}, {FLAG_OFF}")
    k.e(f"s_lshl_b32 s46, s{S_FG}, 2")
    k.e(f"s_add_u32 s50, s46, s{S_FL}")
    k.wait_all(vm=False)
    publish(k, 50, 2, ("st",))
    k.stamp()
    k.e(f"s_cmp_lt_u32 s{S_FG}, 6")
    k.e("s_cbranch_scc1 L_QB")
    st1 = k.save()
    k.wait_all()
    gate_wg(k, P)
    k.restore(st1)
    k.label("L_QB")
    B2 = PhaseB(k, P, True)
    for th in B2.setup_thunks(2):
        th()
    for st in range(B2.DW):
        for ii in range(3):
            B2.dma_w(st, ii)
    poll(k, S_FL, 8, B2.V_T)
    k.e("s_barrier")
    k.stamp()
    for st in range(B2.DB):
        B2.load_b(st, 0)
        B2.load_b(st, 1)
    B2.main(B2.DW - 1)
    B2.epilogue()
    k.label("L_QEND")
    k.wait_all()
    k.dbg_mode = "qkv" if P["dbgstamps"] else None
    k.stamp_flush()
    k.label("L_END")
    k.e("s_endpgm")
    k.label("L_CODE_END")
    label = NAME + "_kernel"
    s = open("cdna_kernels/" + NAME + ".s.ref").read().split("; Override")[0]
    s += "; @launch grid=(256,1,1) block=(256,1,1) lds=163840\n"
    s += '.amdgcn_target "amdgcn-amd-amdhsa--gfx950"\n.text\n'
    s += f".globl {label}\n.p2align 8\n.type {label},@function\n{label}:\n"
    s += k.text()
    s += f"""
.section .rodata,"a"
.p2align 6
.amdhsa_kernel {label}
  .amdhsa_next_free_vgpr 512
  .amdhsa_next_free_sgpr 102
  .amdhsa_accum_offset 256
  .amdhsa_group_segment_fixed_size 0
  .amdhsa_kernarg_size 88
  .amdhsa_user_sgpr_count 2
  .amdhsa_user_sgpr_kernarg_segment_ptr 1
  .amdhsa_system_sgpr_workgroup_id_x 1
.end_amdhsa_kernel
"""
    return s


def main():
    ap = argparse.ArgumentParser()
    ap.add_argument("-o", default="cdna_kernels/" + NAME + ".s")
    ap.add_argument("--delta", type=int, default=4)
    ap.add_argument("--D", type=int, default=15)
    ap.add_argument("--R", type=int, default=32)
    ap.add_argument("--ra", type=int, default=3)
    ap.add_argument("--epg", type=int, default=3)
    ap.add_argument("--nx0", type=int, default=2)
    ap.add_argument("--xlead", type=int, default=2)
    ap.add_argument("--d0", type=int, default=9)
    ap.add_argument("--spread", type=int, default=1)
    ap.add_argument("--touch2", type=int, default=1)
    ap.add_argument("--b-ring", type=int, default=10)
    ap.add_argument("--b-dw", type=int, default=8)
    ap.add_argument("--b-db", type=int, default=8)
    ap.add_argument("--stamps", action="store_true")
    ap.add_argument("--exp", default="")
    ap.add_argument("--dbgstamps", action="store_true")
    ap.add_argument("--ctouch", type=int, default=1)
    ap.add_argument("--vidx", type=int, default=1)
    ap.add_argument("--bi", type=int, default=4)
    ap.add_argument("--bi-from", type=int, default=0)
    ap.add_argument("--bar-late", type=int, default=1)
    ap.add_argument("--b-ra", type=int, default=5)
    ap.add_argument("--b-bi", type=int, default=2)
    ap.add_argument("--ttouch", type=int, default=66)
    ap.add_argument("--tb0", type=int, default=105)
    ap.add_argument("--dfirst", type=int, default=18)
    ap.add_argument("--brate", type=float, default=9.0)
    ap.add_argument("--f2st", type=int, default=8)
    ap.add_argument("--ldscope", default="sc0 sc1")
    ap.add_argument("--rot", type=int, default=1)
    ap.add_argument("--nx1", type=int, default=0)
    ap.add_argument("--d1", type=int, default=18)
    ap.add_argument("--xper", type=int, default=4)
    ap.add_argument("--vrate", type=float, default=12.0)
    ap.add_argument("--vcap", type=float, default=40.0)
    a = ap.parse_args()
    P = vars(a)
    s = gen(P)
    open(a.o, "w").write(s)
    print("wrote", a.o, len(s), "bytes")


if __name__ == "__main__":
    main()
```

```python
import sys, argparse, struct

NAME = "gated_mix__sliding_local_dilated__glu_gated_glu__prompt"

NKB = 324
G_OFF = 0x1500000
FLAG_OFF = 0x1510000
PART_OFF = 0x1600000
WS_BYTES = 268435456
DBG_OFF = 0x4000000
LOG2E = 1.4426950408889634
SPIN_MAX = 200000


def f2u(x):
    return struct.unpack("<I", struct.pack("<f", x))[0]


class KB:
    def __init__(self):
        self.lines = []
        self.vm = []
        self.vm_done = 0
        self.lg = []
        self.lg_done = 0
        self.n = 0
        self.stamps_on = False
        self.nstamp = 0
        self.dbg_mode = None

    def e(self, s):
        self.lines.append("    " + s)
        self.n += 1

    def c(self, s):
        self.lines.append("    ; " + s)

    def label(self, s):
        self.lines.append(s + ":")

    def vmop(self, s, tag):
        self.e(s)
        self.vm.append(tag)
        assert len(self.vm) - self.vm_done <= 63, "too many vm outstanding"

    def lgop(self, s, tag):
        self.e(s)
        self.lg.append(tag)
        assert len(self.lg) - self.lg_done <= 15, "too many lgkm outstanding"

    def vm_out(self):
        return len(self.vm) - self.vm_done

    def lg_out(self):
        return len(self.lg) - self.lg_done

    def _last(self, lst, tag):
        for i in range(len(lst) - 1, -1, -1):
            if lst[i] == tag:
                return i
        raise KeyError(tag)

    def need(self, vm=None, lg=None):
        parts = []
        if vm is not None:
            tags = vm if isinstance(vm, list) else [vm]
            i = max(self._last(self.vm, t) for t in tags)
            if i >= self.vm_done:
                n = len(self.vm) - 1 - i
                parts.append(f"vmcnt({n})")
                self.vm_done = len(self.vm) - n
        if lg is not None:
            tags = lg if isinstance(lg, list) else [lg]
            i = max(self._last(self.lg, t) for t in tags)
            if i >= self.lg_done:
                n = len(self.lg) - 1 - i
                parts.append(f"lgkmcnt({n})")
                self.lg_done = len(self.lg) - n
        if parts:
            self.e("s_waitcnt " + " ".join(parts))

    def wait_all(self, vm=True, lg=True):
        p = []
        if vm:
            p.append("vmcnt(0)")
            self.vm_done = len(self.vm)
        if lg:
            p.append("lgkmcnt(0)")
            self.lg_done = len(self.lg)
        self.e("s_waitcnt " + " ".join(p))

    def save(self):
        return (list(self.vm), self.vm_done, list(self.lg), self.lg_done, self.nstamp)

    def restore(self, st):
        self.vm, self.vm_done, self.lg, self.lg_done, self.nstamp = list(st[0]), st[1], list(st[2]), st[3], st[4]

    def stamp(self):
        if not self.stamps_on:
            return
        i = self.nstamp
        self.nstamp += 1
        assert i < 15
        self.e(f"s_memrealtime s[{70+2*i}:{71+2*i}]")
        self.e(f"s_memtime s[100:101]")
        self.e("s_waitcnt lgkmcnt(0)")
        self.e(f"s_mov_b32 s{71+2*i}, s100")
        self.e("s_waitcnt lgkmcnt(0)")
        self.lg_done = len(self.lg)

    def stamp_flush(self):
        if not self.stamps_on:
            return
        if self.dbg_mode:
            lbl = f"L_DS{self.n}"
            self.e(f"s_cmp_lg_u32 s{S_WAVE}, 0")
            self.e(f"s_cbranch_scc1 {lbl}")
            srd(self, 20, 30, 31, 256)
            self.e("s_mov_b64 exec, 1")
            self.e("v_mov_b32 v1, 0")
            self.e("s_not_b32 s100, s70")
            self.e("v_mov_b32 v2, s100")
            self.e("buffer_atomic_umax v2, v1, s[20:23], 0 offen offset:4 sc1")
            if self.dbg_mode == "mlp":
                for i in range(self.nstamp):
                    self.e(f"v_mov_b32 v{3+i}, s{70+2*i}")
                    self.e(f"buffer_atomic_umax v{3+i}, v1, s[20:23], 0 offen offset:{8+4*i} sc1")
            self.e("s_waitcnt vmcnt(0)")
            self.e("s_mov_b64 exec, -1")
            self.label(lbl)
            return
        self.e("s_lshl_b32 s100, s2, 2")
        self.e(f"s_add_u32 s100, s100, s{S_WAVE}")
        self.e("s_lshl_b32 s100, s100, 7")
        self.e(f"s_add_u32 s100, s100, {DBG_OFF}")
        self.e("v_mov_b32 v1, 0")
        for i in range(self.nstamp):
            self.e(f"v_mov_b32 v2, s{70+2*i}")
            self.e(f"buffer_store_dword v2, v1, s[16:19], s100 offen offset:{4*i}")
            self.e("s_nop 1")
            self.e(f"v_mov_b32 v2, s{71+2*i}")
            self.e(f"buffer_store_dword v2, v1, s[16:19], s100 offen offset:{64+4*i}")
            self.e("s_nop 1")
        self.e(f"v_mov_b32 v2, {self.nstamp}")
        self.e(f"buffer_store_dword v2, v1, s[16:19], s100 offen offset:60")
        self.e("s_getreg_b32 s101, hwreg(HW_REG_HW_ID)")
        self.e("s_nop 1")
        self.e("v_mov_b32 v3, s101")
        self.e(f"buffer_store_dword v3, v1, s[16:19], s100 offen offset:124")
        self.e("s_getreg_b32 s101, hwreg(HW_REG_XCC_ID)")
        self.e("s_nop 1")
        self.e("v_mov_b32 v4, s101")
        self.e(f"buffer_store_dword v4, v1, s[16:19], s100 offen offset:120")
        self.e("s_waitcnt vmcnt(0)")

    def text(self):
        return "\n".join(self.lines) + "\n"


class Paced:
    def __init__(self, rate, cap, k=None):
        self.q, self.credit, self.rate, self.cap, self.k = [], 0, rate, cap, k

    def add(self, th, cost):
        self.q.append((th, cost))

    def gap(self, scale=1.0):
        self.credit = min(self.credit + self.rate * scale, self.cap)
        while self.q and self.q[0][1] <= self.credit and self.k.vm_out() < 58:
            th, c = self.q.pop(0)
            self.credit -= c
            th()

    def force_until(self, pred):
        while not pred():
            th, c = self.q.pop(0)
            th()

    def drain(self):
        while self.q:
            self.q.pop(0)[0]()


def icost(text):
    op = text.split()[0]
    if op.startswith("buffer_") or op.startswith("global_"):
        return COST["vm"]
    if op.startswith("ds_write"):
        return COST["dsw"]
    if op.startswith("ds_read_b128"):
        return COST["dsr128"]
    if op.startswith("ds_"):
        return 1
    if op in ("v_exp_f32", "v_rcp_f32"):
        return 2
    return 1


COST = {"vm": 5, "dsw": 4, "dsr128": 2}


class Sched:
    def __init__(self, k, rate, cap):
        self.k = k
        self.vq = []
        self.fill = []
        self.epi = []
        self.open = []
        self.credit, self.rate, self.cap = 0, rate, cap
        self.ready = lambda n: True

    def record(self, th):
        k = self.k
        prims = []
        save = (k.e, k.vmop, k.lgop, k.need)
        k.e = lambda t: prims.append(("e", t, None))
        k.vmop = lambda t, tag: prims.append(("vm", t, tag))
        k.lgop = lambda t, tag: prims.append(("lg", t, tag))
        k.need = lambda vm=None, lg=None: prims.append(("need", vm, lg))
        try:
            th()
        finally:
            del k.e, k.vmop, k.lgop, k.need
        return prims

    def add_v(self, th, cost):
        self.vq.append((self.record(th), cost))

    def add_f(self, th, atomic=False):
        self.fill.append([("call", th, None)] if atomic else self.record(th))

    def _cost(self, p):
        if p[0] in ("need", "call"):
            return 1
        return icost(p[1])

    def _emit(self, p):
        k = self.k
        if p[0] == "e":
            k.e(p[1])
        elif p[0] == "vm":
            k.vmop(p[1], p[2])
        elif p[0] == "lg":
            if k.lg_out() >= 13:
                k.need(lg=k.lg[k.lg_done + 4])
            k.lgop(p[1], p[2])
        elif p[0] == "need":
            if p[1] is not None:
                tags = p[1] if isinstance(p[1], list) else [p[1]]
                assert all(t in k.vm for t in tags), p
            k.need(vm=p[1], lg=p[2])
        else:
            p[1]()

    def flush_open(self):
        while self.open:
            self._emit(self.open.pop(0))

    def force_v(self, pred):
        self.flush_open()
        while not pred():
            prims, c = self.vq.pop(0)
            for p in prims:
                self._emit(p)

    def force_f(self, pred):
        self.flush_open()
        while not pred():
            for p in self.fill.pop(0):
                self._emit(p)

    def force_epi(self, upto):
        self.flush_open()
        while self.epi and self.epi[0][0] <= upto:
            n, prims = self.epi.pop(0)
            self.ready(n, True)
            for p in prims:
                self._emit(p)

    def drain(self):
        self.flush_open()
        self.force_f(lambda: not self.fill)
        self.force_v(lambda: not self.vq)

    def gap(self, budget, full):
        k = self.k
        self.credit = min(self.credit + self.rate, self.cap)
        progress = True
        while budget > 0 and progress:
            progress = False
            if not self.open:
                if self.vq and self.vq[0][1] <= self.credit and k.vm_out() < 58:
                    prims, c = self.vq.pop(0)
                    self.credit -= c
                    self.open = list(prims)
                elif self.fill and k.lg_out() < 10:
                    self.open = list(self.fill.pop(0))
                elif self.epi and len(self.epi[0][1]) > 1 and self.ready(self.epi[0][0], False):
                    self.open = list(self.epi.pop(0)[1])
            if self.open:
                c = self._cost(self.open[0])
                if c <= budget and not (self.open[0][0] == "lg" and k.lg_out() >= 11):
                    self._emit(self.open.pop(0))
                    budget -= c
                    progress = True
                    continue
            if self.epi and len(self.epi[0][1]) == 1 and self.ready(self.epi[0][0], False):
                c = self._cost(self.epi[0][1][0])
                if c <= budget:
                    self._emit(self.epi.pop(0)[1][0])
                    budget -= c
                    progress = True


def srd(k, d, lo, hi, nbytes):
    k.e(f"s_mov_b32 s{d}, s{lo}")
    k.e(f"s_mov_b32 s{d+1}, s{hi}")
    k.e(f"s_mov_b32 s{d+2}, {nbytes}")
    k.e(f"s_mov_b32 s{d+3}, 0x00020000")


def vr(b, n=4):
    return f"v[{b}:{b+n-1}]"


def ar(b, n=4):
    return f"a[{b}:{b+n-1}]"


S_WAVE, S_RB, S_FG = 32, 33, 34
S_WBASE, S_STBASE, S_M0W, S_T0, S_T1, S_T2 = 36, 37, 39, 40, 41, 42
S_FQ, S_I3, S_I2, S_IDX = 43, 44, 45, 51
S_XS = 64
S_NONCE = 68
S_XW = 38
XB = 131072

V_XL, V_XL2 = 36, 37
V_XWE, V_XWO = 38, 31
V_XR = 32
V_L16 = 39


S_PX, S_PW = 3, 35


def advance(k, sc, targets):
    k.e(f"s_add_u32 s{sc}, s{sc}, 1")
    k.e(f"s_cmp_eq_u32 s{sc}, 9")
    k.e(f"s_cselect_b32 s{sc}, 0, s{sc}")
    steps = sorted(set(st for _, st in targets))
    for st in steps:
        k.e(f"s_mov_b32 s{S_T0}, {st}")
        k.e(f"s_cselect_b32 s{S_T0}, {(-8*st) & 0xFFFFFFFF}, s{S_T0}")
        for (r, st2) in targets:
            if st2 == st:
                k.e(f"s_lshl1_add_u32 s{r}, 0, s{r}") if False else None
        if len(steps) == 1:
            for (r, st2) in targets:
                k.e(f"s_add_u32 s{r}, s{r}, s{S_T0}")
        else:
            k.e(f"s_mov_b32 s{S_T0 + 1 + steps.index(st)}, s{S_T0}")
    if len(steps) > 1:
        for (r, st2) in targets:
            k.e(f"s_add_u32 s{r}, s{r}, s{S_T0 + 1 + steps.index(st2)}")


def x_load(k, s, p, dst):
    v = V_XL if p % 2 == 0 else V_XL2
    if p == 0 and s > 0:
        advance(k, S_PX, [(S_XS + i, 128) for i in range(4)])
    k.vmop(f"buffer_load_dwordx4 {dst}, v{v}, s[8:11], s{S_XS + p//2} offen", ("x", s))


def x_write(k, s, p, src):
    v = V_XWE if p % 2 == 0 else V_XWO
    k.lgop(f"ds_write_b128 v{v}, {src} offset:{p*1024}", ("xw", s))


def x_read(k, s, ksl, rt, dst):
    k.lgop(f"ds_read_b128 {dst}, v{V_XR+ksl} offset:{rt*4096}", ("xf", 4 * s + ksl, rt))


def prologue(k, P):
    k.e("s_cmp_ge_u32 s2, 256")
    k.e("s_cbranch_scc1 L_END")
    k.stamp()
    k.e("s_load_dwordx4 s[4:7], s[0:1], 0")
    k.e("s_load_dwordx4 s[24:27], s[0:1], 32")
    k.e("s_load_dwordx4 s[52:55], s[0:1], 48")
    k.e("s_load_dwordx4 s[28:31], s[0:1], 64")
    k.e("s_load_dwordx2 s[58:59], s[0:1], 80")
    k.e("s_load_dwordx2 s[56:57], s[0:1], 16")
    k.e("v_lshrrev_b32 v1, 6, v0")
    k.e("v_and_b32 v0, 63, v0")
    k.e("v_lshrrev_b32 v2, 3, v0")
    k.e(f"v_readfirstlane_b32 s{S_WAVE}, v1")
    k.e("v_and_b32 v3, 7, v0")
    k.e("v_mul_u32_u24 v7, 1152, v2")
    k.e(f"v_lshl_add_u32 v{V_XL}, v3, 4, v7")
    k.e(f"v_add_u32 v{V_XL2}, {8*1152}, v{V_XL}")
    k.e("s_and_b32 s50, s2, 7")
    k.e(f"s_lshr_b32 s{S_IDX}, s2, 3")
    if P["vidx"]:
        k.e(f"s_lshr_b32 s46, s{S_IDX}, 2")
        k.e(f"s_and_b32 s47, s{S_IDX}, 3")
        k.e("s_mul_i32 s48, s46, 3")
        k.e("s_add_u32 s48, s48, s47")
        k.e("s_add_u32 s46, s46, 24")
        k.e("s_cmp_eq_u32 s47, 3")
        k.e(f"s_cselect_b32 s{S_IDX}, s46, s48")
    k.e("s_and_b32 s46, s50, 1")
    k.e(f"s_lshr_b32 s{S_FQ}, s50, 1")
    k.e(f"s_lshl_b32 s{S_RB}, s46, 2")
    k.e(f"s_and_b32 s{S_I3}, s{S_IDX}, 3")
    k.e(f"s_add_u32 s{S_RB}, s{S_RB}, s{S_I3}")
    k.e(f"s_lshr_b32 s{S_I2}, s{S_IDX}, 2")
    k.e(f"s_lshl_b32 s47, s{S_RB}, 2")
    k.e(f"s_add_u32 s47, s47, s{S_WAVE}")
    k.e(f"s_mul_i32 s{S_XS}, s47, {64*1152}")
    k.e(f"s_lshl_b32 s{S_PX}, s{S_I3}, 1")
    k.e(f"s_add_u32 s{S_PX}, s{S_PX}, s{S_I2}")
    if not P["rot"]:
        k.e(f"s_mov_b32 s{S_PX}, 0")
    k.e(f"s_sub_u32 s47, s{S_PX}, 9")
    k.e(f"s_cmp_ge_u32 s{S_PX}, 9")
    k.e(f"s_cselect_b32 s{S_PX}, s47, s{S_PX}")
    k.e(f"s_mov_b32 s{S_PW}, s{S_PX}")
    k.e(f"s_lshl_b32 s47, s{S_PX}, 7")
    k.e(f"s_add_u32 s{S_XS}, s{S_XS}, s47")
    for i in range(1, 4):
        k.e(f"s_add_u32 s{S_XS+i}, s{S_XS}, {i*16*1152}")
    k.e(f"s_lshl_b32 s{S_XW}, s{S_WAVE}, 13")
    k.e(f"s_add_u32 s{S_XW}, s{S_XW}, {XB}")
    if P["ctouch"]:
        k.e("s_getpc_b64 s[60:61]")
        k.label("L_PC")
        k.e(f"s_sub_u32 s60, s60, L_PC-{NAME}_kernel")
        k.e("s_subb_u32 s61, s61, 0")
        k.e(f"s_mov_b32 s62, L_CODE_END-{NAME}_kernel")
        k.e("s_mov_b32 s63, 0x00020000")
        k.e("s_lshr_b32 s46, s2, 3")
        k.e(f"s_lshl_b32 s47, s{S_WAVE}, 5")
        k.e("s_add_u32 s46, s46, s47")
        k.e("s_lshl_b32 s46, s46, 10")
        k.e("v_and_b32 v4, 7, v0")
        k.e("v_lshlrev_b32 v4, 7, v4")
        k.vmop("buffer_load_dword v1, v4, s[60:63], s46 offen", ("ctouch",))
    k.e("s_waitcnt lgkmcnt(0)")
    srd(k, 8, 4, 5, 2048 * 1152)
    k.e(f"s_cmp_ge_u32 s{S_IDX}, 24")
    k.e("s_cbranch_scc1 L_QKV")


def common2(k):
    srd(k, 16, 58, 59, WS_BYTES)
    k.e("v_lshrrev_b32 v2, 3, v0")
    k.e("v_and_b32 v3, 7, v0")
    k.e("v_lshrrev_b32 v4, 1, v2")
    k.e("v_xor_b32 v5, v3, v4")
    k.e("v_xor_b32 v6, 4, v5")
    k.e("v_lshlrev_b32 v7, 7, v2")
    k.e(f"v_add_u32 v7, s{S_XW}, v7")
    k.e(f"v_lshl_add_u32 v{V_XWE}, v5, 4, v7")
    k.e(f"v_lshl_add_u32 v{V_XWO}, v6, 4, v7")
    k.e("v_and_b32 v2, 31, v0")
    k.e("v_lshrrev_b32 v3, 5, v0")
    k.e("v_bfe_u32 v4, v2, 1, 3")
    k.e("v_lshlrev_b32 v5, 7, v2")
    k.e(f"v_add_u32 v5, s{S_XW}, v5")
    for ksl in range(4):
        k.e(f"v_add_u32 v6, {2*ksl}, v3")
        k.e("v_xor_b32 v6, v6, v4")
        k.e(f"v_lshl_add_u32 v{V_XR+ksl}, v6, 4, v5")
    k.e(f"v_lshlrev_b32 v{V_L16}, 4, v0")


def nonce_create(k):
    srd(k, 20, 30, 31, 256)
    k.e(f"s_or_b32 s46, s2, s{S_WAVE}")
    k.e("s_cmp_lg_u32 s46, 0")
    k.e("s_cbranch_scc1 L_NONCE_SKIP")
    k.e("s_memrealtime s[46:47]")
    k.e("s_waitcnt lgkmcnt(0)")
    k.e("s_or_b32 s46, s46, 1")
    k.e("v_mov_b32 v4, s46")
    k.e("v_mov_b32 v5, 0")
    k.e("s_mov_b64 exec, 1")
    k.e("buffer_store_dword v4, v5, s[20:23], 0 offen sc0 sc1")
    k.e("s_mov_b64 exec, -1")
    k.label("L_NONCE_SKIP")


def nonce_issue(k, vbase):
    srd(k, 20, 30, 31, 256)
    k.e(f"v_mov_b32 v{vbase+1}, 0")
    k.vmop(f"buffer_load_dword v{vbase}, v{vbase+1}, s[20:23], 0 offen sc0 sc1", ("nonce",))


def nonce_get(k, vbase):
    lbl = f"L_NG{k.n}"
    k.need(vm=("nonce",))
    k.e(f"s_mov_b32 s69, {SPIN_MAX}")
    k.label(lbl)
    k.e(f"v_readfirstlane_b32 s{S_NONCE}, v{vbase}")
    k.e("s_nop 3")
    k.e(f"s_cmp_lg_u32 s{S_NONCE}, 0")
    k.e(f"s_cbranch_scc1 {lbl}_D")
    k.e("s_sub_u32 s69, s69, 1")
    k.e("s_cmp_eq_u32 s69, 0")
    k.e(f"s_cbranch_scc1 {lbl}_D")
    k.e("s_sleep 4")
    k.e(f"buffer_load_dword v{vbase}, v{vbase+1}, s[20:23], 0 offen sc0 sc1")
    k.e("s_waitcnt vmcnt(0)")
    k.e(f"s_branch {lbl}")
    k.label(lbl + "_D")


def publish(k, s_flag_off, vt, tag):
    lbl = f"L_PUB{k.n}"
    k.need(vm=tag)
    k.e("s_barrier")
    k.e(f"s_cmp_lg_u32 s{S_WAVE}, 0")
    k.e(f"s_cbranch_scc1 {lbl}")
    k.e(f"v_mov_b32 v{vt}, s{S_NONCE}")
    k.e(f"v_mov_b32 v{vt+1}, 0")
    k.e("s_mov_b64 exec, 1")
    k.e(f"buffer_store_dword v{vt}, v{vt+1}, s[16:19], s{s_flag_off} offen sc0 sc1")
    k.e("s_mov_b64 exec, -1")
    k.label(lbl)


def poll(k, s_line_off, nflags, vt):
    lbl = f"L_POLL{k.n}"
    k.e(f"v_lshlrev_b32 v{vt}, 2, v0")
    k.e(f"s_mov_b32 s69, {SPIN_MAX}")
    k.e(f"s_mov_b64 exec, {(1 << nflags) - 1}")
    k.label(lbl)
    k.e(f"buffer_load_dword v{vt+1}, v{vt}, s[16:19], s{s_line_off} offen sc0 sc1")
    k.e("s_waitcnt vmcnt(0)")
    k.e(f"v_cmp_ne_u32 vcc, s{S_NONCE}, v{vt+1}")
    k.e("s_sub_u32 s69, s69, 1")
    k.e("s_nop 4")
    k.e(f"s_cbranch_vccz {lbl}_D")
    k.e("s_cmp_eq_u32 s69, 0")
    k.e(f"s_cbranch_scc1 {lbl}_D")
    k.e("s_sleep 2")
    k.e(f"s_branch {lbl}")
    k.label(lbl + "_D")
    k.e("s_mov_b64 exec, -1")
    k.vm_done = len(k.vm)


def flag_store(k, s_off, imm, vt):
    k.e(f"v_mov_b32 v{vt}, s{S_NONCE}")
    k.e(f"v_mov_b32 v{vt+1}, 0")
    k.e("s_mov_b64 exec, 1")
    k.vmop(f"buffer_store_dword v{vt}, v{vt+1}, s[16:19], s{s_off} offen offset:{imm} sc0 sc1", ("flag",))
    k.e("s_mov_b64 exec, -1")


def flag_load(k, s_line_off, imm, vt, tag):
    k.e(f"v_and_b32 v{vt}, 15, v0")
    k.e(f"v_lshlrev_b32 v{vt}, 2, v{vt}")
    k.vmop(f"buffer_load_dword v{vt+1}, v{vt}, s[16:19], s{s_line_off} offen offset:{imm} sc0 sc1", tag)


def flag_check(k, s_line_off, imm, nflags, vt, tag):
    lbl = f"L_FC{k.n}"
    k.need(vm=tag)
    k.e(f"s_mov_b32 s69, {SPIN_MAX}")
    k.e(f"s_mov_b64 exec, {(1 << nflags) - 1}")
    k.label(lbl)
    k.e(f"v_cmp_ne_u32 vcc, s{S_NONCE}, v{vt+1}")
    k.e("s_sub_u32 s69, s69, 1")
    k.e("s_nop 4")
    k.e(f"s_cbranch_vccz {lbl}_D")
    k.e("s_cmp_eq_u32 s69, 0")
    k.e(f"s_cbranch_scc1 {lbl}_D")
    k.e("s_sleep 2")
    k.e(f"buffer_load_dword v{vt+1}, v{vt}, s[16:19], s{s_line_off} offen offset:{imm} sc0 sc1")
    k.e("s_waitcnt vmcnt(0)")
    k.e(f"s_branch {lbl}")
    k.label(lbl + "_D")
    k.e("s_mov_b64 exec, -1")
    k.e("s_nop 3")


def phaseA_mlp(k, P, B):
    DELTA, D, R, NB, RA = P["delta"], P["D"], P["R"], 4, P["ra"]
    assert R * 4096 <= XB
    BI = P["bi"]
    assert R >= D + 3 * DELTA + BI + 1
    V_AF = 8
    V_WA, V_WB2 = 24, 40
    V_WD = 28
    V_T = 44
    V_XF = 64
    V_ACC = 96

    def xf(ks, rt):
        if ks < 32:
            return ar((ks * 2 + rt) * 4)
        return vr(V_XF + ((ks - 32) * 2 + rt) * 4)

    def xq(s, p):
        return xf(4 * s + p // 2, p % 2)

    def acc(slot, rt):
        return V_ACC + (slot * 2 + rt) * 16

    k.c("---------------- phase A: MLP path ----------------")
    nonce_create(k)
    for p in range(8):
        x_load(k, 0, p, xq(0, p))
    k.e(f"s_mul_i32 s{S_FG}, s{S_FQ}, 6")
    k.e(f"s_add_u32 s{S_FG}, s{S_FG}, s{S_I2}")
    k.e(f"s_cmp_ge_u32 s{S_WAVE}, 2")
    k.e("s_cselect_b32 s12, s26, s24")
    k.e("s_cselect_b32 s13, s27, s25")
    k.e(f"s_mov_b32 s14, {576*9216}")
    k.e("s_mov_b32 s15, 0x00020000")
    k.e("v_lshrrev_b32 v2, 3, v0")
    k.e("v_and_b32 v3, 7, v0")
    k.e("v_bfe_u32 v4, v2, 1, 1")
    k.e(f"s_and_b32 s46, s{S_WAVE}, 2")
    k.e("v_or_b32 v4, s46, v4")
    k.e("v_lshlrev_b32 v4, 1, v4")
    k.e("v_xor_b32 v3, v3, v4")
    k.e("s_mov_b32 s47, 9216")
    k.e("v_mul_lo_u32 v2, v2, s47")
    k.e(f"v_lshl_add_u32 v{V_WD}, v3, 4, v2")
    k.e(f"s_and_b32 s46, s{S_WAVE}, 1")
    k.e(f"s_mul_i32 s{S_WBASE}, s46, {8*9216}")
    k.e(f"s_lshl_b32 s47, s{S_FG}, 7")
    k.e(f"s_add_u32 s{S_WBASE}, s{S_WBASE}, s47")
    k.e(f"s_mul_i32 s47, s{S_PW}, {64*9216}")
    k.e(f"s_add_u32 s{S_WBASE}, s{S_WBASE}, s47")
    k.e(f"s_lshl_b32 s{S_M0W}, s{S_WAVE}, 10")

    def dma_w(u):
        c, ks = divmod(u, 36)
        slot = u % R
        def f():
            if u > 0 and u % 4 == 0:
                advance(k, S_PW, [(S_WBASE, 64 * 9216)])
            k.e(f"s_add_u32 m0, s{S_M0W}, {slot*4096}")
            k.e(f"s_add_u32 s{S_T1}, s{S_WBASE}, {(ks%4)*16*9216 + c*24*128}")
            k.vmop(f"buffer_load_dwordx4 v{V_WD}, s[12:15], s{S_T1} offen lds", ("w", u))
        return f

    NX0 = P["nx0"]
    D0 = min(P["d0"], D)
    wi = 0
    for s in range(1, NX0 + 1):
        for u in range(wi, min(D0, wi + 4)):
            dma_w(u)()
        wi = min(D0, wi + 4)
        if s < NX0:
            for p in range(8):
                x_load(k, s, p, xq(s, p))
    for u in range(wi, D0):
        dma_w(u)()
    next_w = D0
    common2(k)
    k.e("v_lshrrev_b32 v2, 4, v0")
    k.e("v_bfe_u32 v3, v0, 2, 2")
    k.e("v_and_b32 v4, 3, v0")
    k.e("v_lshrrev_b32 v5, 1, v4")
    k.e("v_lshrrev_b32 v6, 1, v2")
    k.e("v_lshl_add_u32 v6, v6, 3, v3")
    k.e("v_lshlrev_b32 v6, 7, v6")
    k.e("v_lshl_add_u32 v6, v5, 11, v6")
    k.e("v_and_b32 v7, 1, v4")
    k.e("v_lshl_add_u32 v6, v7, 4, v6")
    k.e("v_and_b32 v7, 1, v2")
    k.e("v_lshl_add_u32 v6, v7, 3, v6")
    k.e("v_lshrrev_b32 v7, 1, v3")
    k.e("v_lshl_or_b32 v7, v5, 1, v7")
    for j in range(4):
        k.e(f"v_xor_b32 v5, {j}, v7")
        k.e(f"v_lshl_add_u32 v{V_WA+j}, v5, 5, v6")
        k.e(f"v_add_u32 v{V_WB2+j}, 0x10000, v{V_WA+j}")
    k.e(f"s_lshl_b32 s46, s{S_RB}, 3")
    k.e(f"s_lshl_b32 s47, s{S_WAVE}, 1")
    k.e("s_add_u32 s46, s46, s47")
    k.e(f"s_mul_i32 s46, s46, {NKB}")
    k.e(f"s_mul_i32 s47, s{S_FQ}, 72")
    k.e("s_add_u32 s46, s46, s47")
    k.e(f"s_lshl_b32 s47, s{S_I2}, 2")
    k.e("s_add_u32 s46, s46, s47")
    k.e("s_add_u32 s46, s46, 36")
    k.e(f"s_lshl_b32 s{S_STBASE}, s46, 10")

    def aread(i, j, u, half):
        slot = u % R
        off = slot * 4096 + half * 512
        base = V_WA + j
        if off >= 65536:
            off -= 65536
            base = V_WB2 + j
        d = V_AF + (i % NB) * 4 + half * 2
        k.lgop(f"ds_read_b64_tr_b16 {vr(d,2)}, v{base} offset:{off}", ("af", i, half))

    def epilogue(n):
        c, j = divmod(n, 4)
        slot = n % 5
        ops = []
        for rt in range(2):
            a = acc(slot, rt)
            tb = V_T
            pk = V_T + 8 + rt * 4
            gi = [a + 0, a + 1, a + 2, a + 3, a + 8, a + 9, a + 10, a + 11]
            ui = [a + 4, a + 5, a + 6, a + 7, a + 12, a + 13, a + 14, a + 15]
            for h in range(8):
                ops.append(f"v_mul_f32 v{tb+h}, 0x{f2u(-LOG2E):08x}, v{gi[h]}")
            for h in range(8):
                ops.append(f"v_exp_f32 v{tb+h}, v{tb+h}")
            for h in range(8):
                ops.append(f"v_add_f32 v{tb+h}, 1.0, v{tb+h}")
            for h in range(8):
                ops.append(f"v_rcp_f32 v{tb+h}, v{tb+h}")
            for h in range(8):
                ops.append(f"v_mul_f32 v{tb+h}, v{tb+h}, v{ui[h]}")
            for h in range(4):
                ops.append(f"v_cvt_pk_bf16_f32 v{pk+h}, v{tb+2*h}, v{tb+2*h+1}")
            off = (rt * NKB + 24 * c + j) * 1024
            ops.append(("st", f"s_add_u32 s{S_T2}, s{S_STBASE}, {off}",
                        f"buffer_store_dwordx4 {vr(pk)}, v{V_L16}, s[16:19], s{S_T2} offen sc0 sc1"))
        return ops

    NU = 108
    T_F0, T_F1 = 60, 96
    T_TOUCH = P["ttouch"]
    sched = {}
    for j in range(4):
        for u in range(NU):
            if u < 36 and P["spread"]:
                t = -(-u * (36 + j * DELTA) // 36)
            else:
                t = u + j * DELTA
            sched.setdefault(t, []).append((t, j, u))
    pairs = []
    for t in range(NU + 3 * DELTA):
        pairs.extend(sched[t])
    first_of_step, npairs_in_step = {}, {}
    for i, (t, j, u) in enumerate(pairs):
        first_of_step.setdefault(t, i)
        npairs_in_step[t] = npairs_in_step.get(t, 0) + 1

    S = Sched(k, P["vrate"], P["vcap"])
    visible = -1
    issued_reads = 0
    last_mfma_n = {}
    GB = P["gb"]

    def ready(n, force):
        gap = k.n - last_mfma_n[n]
        if gap >= 13:
            return True
        if force:
            k.e(f"s_nop {min(15, 13 - gap)}")
            return True
        return False
    S.ready = ready

    def add_epi(n_):
        for o in epilogue(n_):
            if isinstance(o, tuple):
                S.epi.append((n_, [("e", o[1], None), ("vm", o[2], ("st", n_))]))
            else:
                S.epi.append((n_, [("e", o, None)]))

    def x_convert(s):
        def wx():
            S.force_v(lambda: k.vm.count(("x", s)) == 8)
            k.need(vm=("x", s))
        S.add_f(wx, atomic=True)
        for p in range(8):
            S.add_f(lambda p=p: x_write(k, s, p, xq(s, p)))
        for ksl in range(4):
            for rt in range(2):
                S.add_f(lambda ksl=ksl, rt=rt: x_read(k, s, ksl, rt, xf(4 * s + ksl, rt)))

    x_convert(0)
    S.drain()
    next_x = NX0
    k.need(vm=("w", 0))
    k.e("s_barrier")
    visible = 0

    def issue_reads_upto(i_target):
        nonlocal issued_reads
        cnt = 0
        while issued_reads <= i_target and issued_reads < len(pairs):
            t, j, u = pairs[issued_reads]
            if u > visible:
                break
            if k.lg_out() >= 13:
                k.need(lg=k.lg[k.lg_done + 4])
            aread(issued_reads, j, u, 0)
            aread(issued_reads, j, u, 1)
            issued_reads += 1
            cnt += 2
        return cnt

    epi_start = {}
    for i, (t, j, u) in enumerate(pairs):
        if u % 36 == 35:
            epi_start[i + 2] = (u // 36) * 4 + j

    def do_barrier(t, upto):
        nonlocal visible
        if upto is None:
            S.force_v(lambda: k.vm.count(("bw", B.BI)) == 3)
            k.need(vm=("bw", B.BI))
            k.e("s_barrier")
            return
        if ("w", upto) not in k.vm:
            S.force_v(lambda: ("w", upto) in k.vm)
        k.need(vm=("w", upto))
        if t in (T_F0, T_F1):
            n_last = 3 if t == T_F0 else 7
            assert k.vm.count(("st", n_last)) == 2
            k.need(vm=("st", n_last))
        k.e("s_barrier")
        visible = upto
        if t in (T_F0, T_F1):
            S.flush_open()
            assert not S.fill
            flag_store(k, 50, 64 if t == T_F0 else 32, 60)

    for i, (t, j, u) in enumerate(pairs):
        if first_of_step[t] == i:
            if t in (0, 36, 52, 72):
                k.stamp()
            pending_bar = None
            bi = BI
            if t % bi == 0 and t + 1 < NU + bi:
                pending_bar = (t, min(t + bi, NU - 1))
            if t == 116:
                pending_bar = (t, None)
            if pending_bar and visible < t and t < NU:
                do_barrier(*pending_bar)
                pending_bar = None
            lead = D if t >= 36 else min(D, P["dfirst"])
            for _ in range(2):
                if next_w <= t + lead and next_w < NU:
                    S.add_v(dma_w(next_w), 19)
                    next_w += 1
            if (t + P["xlead"]) % 4 == 0 and 1 <= (t + P["xlead"]) // 4 <= 8:
                s = (t + P["xlead"]) // 4
                assert next_x > s, (t, s, next_x)
                x_convert(s)
            if next_x <= 8:
                XP = P["xper"]
                nst = 8 // XP
                for p in range(XP * (t % nst), XP * (t % nst) + XP):
                    S.add_v(lambda s=next_x, p=p: x_load(k, s, p, xq(s, p)), 19)
                if t % nst == nst - 1:
                    next_x += 1
            if t == 38:
                S.add_v(lambda: nonce_issue(k, 60), 10)
            if t == 62:
                for th in B.setup_thunks(2):
                    S.add_f(th)
            if t == T_F0 - 3:
                S.add_f(lambda: nonce_get(k, 60), atomic=True)
                def fl():
                    k.e(f"s_lshl_b32 s48, s{S_RB}, 2")
                    k.e(f"s_add_u32 s48, s48, s{S_FQ}")
                    k.e("s_lshl_b32 s48, s48, 7")
                    k.e(f"s_add_u32 s48, s48, {FLAG_OFF}")
                    k.e(f"s_lshl_b32 s46, s{S_I2}, 2")
                    k.e("s_add_u32 s50, s46, s48")
                S.add_f(fl)
            def up(x):
                return -(-x // BI) * BI + 1
            bw_sched = {}
            for st_, tt in ((0, 88), (1, 88), (2, 92), (3, 95), (4, 98), (5, 101), (6, 104)):
                bw_sched.setdefault(up(tt), []).append(st_)
            for st in bw_sched.get(t, []):
                if st >= B.DW:
                    continue
                for ii in range(3):
                    S.add_v(lambda st=st, ii=ii: B.dma_w(st, ii), 19)
            if t == 90:
                S.add_v(lambda: flag_load(k, 48, 64, 62, ("fl0",)), 10)
            if t == P["tb0"]:
                S.force_v(lambda: ("fl0",) in k.vm)
                flag_check(k, 48, 64, 6, 62, ("fl0",))
                for st in range(B.DB):
                    S.add_v(lambda st=st: B.load_b(st, 0), 19)
                    S.add_v(lambda st=st: B.load_b(st, 1), 19)
        if i in epi_start:
            add_epi(epi_start[i])
        c, ks = divmod(u, 36)
        n = c * 4 + j
        slot = n % 5
        if ks == 0 and n >= 5:
            assert all(v != n - 5 or key <= i for key, v in epi_start.items())
            if S.epi and S.epi[0][0] <= n - 5:
                S.force_epi(n - 5)
        af = vr(V_AF + (i % NB) * 4)
        issue_reads_upto(i)
        assert issued_reads > i
        needs_lg = [("af", i, 1)]
        if c == 0 and j == 0:
            if ("xf", ks, 1) not in k.lg:
                S.force_f(lambda: ("xf", ks, 1) in k.lg)
            needs_lg += [("xf", ks, 0), ("xf", ks, 1)]
        k.need(lg=needs_lg)
        for rt in range(2):
            a = acc(slot, rt)
            cin = "0" if ks == 0 else vr(a, 16)
            k.e(f"v_mfma_f32_32x32x16_bf16 {vr(a,16)}, {af}, {xf(ks,rt)}, {cin}")
            last_mfma_n[n] = k.n
            budget = GB
            if rt == 0 and pending_bar:
                do_barrier(*pending_bar)
                pending_bar = None
                budget -= 3
            if rt == 0:
                budget -= issue_reads_upto(i + RA)
            else:
                budget -= 1
            S.gap(budget, GB)
    S.flush_open()
    S.force_f(lambda: not S.fill)
    k.stamp()
    for i in sorted(epi_start):
        if i >= len(pairs):
            add_epi(epi_start[i])
    S.force_epi(9)
    F2_ST = P["f2st"]

    def pre_bar(st):
        if st == F2_ST:
            S.force_epi(11)
            k.need(vm=("st", 11))

    def post_bar(st):
        if st == F2_ST:
            S.flush_open()
            flag_store(k, 50, 0, 60)
        if st == 12 - B.DB - 2:
            S.add_v(lambda: flag_load(k, 48, 32, 2, ("fl1",)), 10)
        if st == 12 - B.DB:
            S.force_v(lambda: ("fl1",) in k.vm)
            flag_check(k, 48, 32, 6, 2, ("fl1",))
        if st == 24 - B.DB - 2:
            S.add_v(lambda: flag_load(k, 48, 0, 2, ("fl2",)), 10)
        if st == 24 - B.DB:
            S.force_v(lambda: ("fl2",) in k.vm)
            flag_check(k, 48, 0, 6, 2, ("fl2",))
            k.stamp()

    B.main(B.BI, S=S, pre_bar=pre_bar, post_bar=post_bar)


def phaseA_qkv(k, P):
    k.label("L_QKV")
    k.c("---------------- phase A: QKV + attention path ----------------")
    NST = 4
    WST = 28672
    HB = NST * WST
    GB = HB + NST * 2048
    assert GB + 2048 <= XB
    PITCH = 448
    V_WD = 40
    V_TA = 47
    V_HA = 54
    V_HB = 57
    V_GW = 59
    V_HW = 60
    V_HV = 63
    V_GA = 64
    V_AF = 68
    V_TA2 = 84
    V_HA2 = 91
    V_XF = 96
    V_GF = 224
    V_HAF = 232
    V_HBF = 244
    NXS = 4

    def xfr(s, ksl, rt):
        return V_XF + ((s % NXS) * 8 + ksl * 2 + rt) * 4

    def xq(s, p):
        return vr(V_XF + ((s % NXS) * 8 + p) * 4)

    for p in range(8):
        x_load(k, 0, p, xq(0, p))
    k.e(f"s_lshl_b32 s{S_FG}, s{S_FQ}, 1")
    k.e(f"s_add_u32 s{S_FG}, s{S_FG}, s{S_I2}")
    k.e(f"s_sub_u32 s{S_FG}, s{S_FG}, 6")
    srd(k, 12, 6, 7, 576 * 3456)
    k.e(f"s_mul_i32 s46, s{S_WAVE}, {7*64}")
    k.e(f"s_mul_i32 s47, s{S_FG}, 144")
    k.e("s_mov_b32 s48, 3456")
    k.e(f"s_mul_i32 s{S_M0W}, s{S_WAVE}, {7*1024}")
    k.e(f"s_mul_i32 s{S_WBASE}, s{S_PW}, {64*3456}")
    k.e(f"s_lshl_b32 s{S_STBASE}, s{S_PW}, 7")

    def dma_w(s, ii):
        st = s % NST
        def f():
            if ii == 0 and s > 0:
                advance(k, S_PW, [(S_WBASE, 64 * 3456), (S_STBASE, 128)])
            k.e(f"s_add_u32 m0, s{S_M0W}, {st*WST + ii*1024}")
            k.e("s_nop 0")
            k.vmop(f"buffer_load_dwordx4 v{V_WD+ii}, s[12:15], s{S_WBASE} offen lds", ("w", s))
        return f

    for ii in range(7):
        k.e(f"v_add_u32 v2, s46, v0")
        k.e(f"v_add_u32 v2, {64*ii}, v2")
        k.e("v_mul_u32_u24 v3, 2341, v2")
        k.e("v_lshrrev_b32 v3, 16, v3")
        k.e("v_mul_u32_u24 v4, 28, v3")
        k.e("v_sub_u32 v4, v2, v4")
        k.e("v_mul_u32_u24 v5, 57, v4")
        k.e("v_lshrrev_b32 v5, 9, v5")
        k.e("v_mul_u32_u24 v6, 9, v5")
        k.e("v_sub_u32 v6, v4, v6")
        k.e("v_mul_lo_u32 v7, v3, s48")
        k.e("v_mul_u32_u24 v5, 1152, v5")
        k.e("v_add3_u32 v7, v7, v5, s47")
        k.e(f"v_lshl_add_u32 v{V_WD+ii}, v6, 4, v7")
        k.e("v_cmp_eq_u32 vcc, 27, v4")
        k.e("v_mov_b32 v4, 0x7ff00000")
        k.e("s_nop 0")
        k.e(f"v_cndmask_b32 v{V_WD+ii}, v{V_WD+ii}, v4, vcc")
        dma_w(0, ii)()
    k.e(f"s_and_b32 s46, s{S_WAVE}, 1")
    k.e("v_lshrrev_b32 v2, 3, v0")
    k.e("v_and_b32 v3, 7, v0")
    k.e("v_lshrrev_b32 v4, 1, v2")
    k.e("s_lshl_b32 s47, s46, 2")
    k.e("v_or_b32 v4, s47, v4")
    k.e("v_xor_b32 v3, v3, v4")
    k.e("v_mul_u32_u24 v7, 1152, v2")
    k.e("v_lshl_add_u32 v7, v3, 4, v7")
    k.e(f"s_lshl_b32 s47, s{S_RB}, 8")
    k.e("s_lshl_b32 s48, s46, 3")
    k.e("s_add_u32 s47, s47, s48")
    k.e("s_sub_u32 s47, s47, 16")
    k.e("s_mul_i32 s47, s47, 1152")
    k.e(f"v_add_u32 v{V_HV}, s47, v7")
    k.e("s_lshl_b32 s49, s46, 10")
    k.e(f"s_add_u32 s49, s49, {HB}")

    def dma_h(s):
        st = s % NST
        def f():
            k.e(f"s_add_u32 m0, s49, {st*2048}")
            k.e("s_nop 0")
            k.vmop(f"buffer_load_dwordx4 v{V_HV}, s[8:11], s{S_STBASE} offen lds", ("w", s))
        return f

    k.e(f"v_lshlrev_b32 v{V_L16}, 4, v0")
    dma_h(0)()
    for s in range(1, 3):
        for p in range(8):
            x_load(k, s, p, xq(s, p))
        for ii in range(7):
            dma_w(s, ii)()
        dma_h(s)()
    for p in range(8):
        x_load(k, 3, p, xq(3, p))
    common2(k)
    k.e("v_lshrrev_b32 v2, 4, v0")
    k.e("v_bfe_u32 v3, v0, 2, 2")
    k.e("v_and_b32 v4, 3, v0")
    k.e("v_lshrrev_b32 v5, 1, v2")
    k.e("v_lshl_add_u32 v5, v5, 3, v3")
    k.e(f"v_mul_u32_u24 v5, {PITCH}, v5")
    k.e("v_and_b32 v6, 1, v2")
    k.e("v_lshl_add_u32 v5, v6, 5, v5")
    k.e(f"v_lshl_add_u32 v{V_TA}, v4, 3, v5")
    k.e(f"v_add_u32 v{V_TA2}, {2*WST}, v{V_TA}")
    k.e("v_lshl_add_u32 v5, v2, 3, v3")
    k.e(f"v_mul_u32_u24 v5, {PITCH}, v5")
    k.e("v_lshl_add_u32 v5, v4, 3, v5")
    k.e("v_and_b32 v10, 15, v0")
    k.e("v_mul_u32_u24 v10, 592, v10")
    k.e("v_lshl_add_u32 v10, v2, 4, v10")
    for i in range(3):
        k.e(f"s_mul_i32 s46, s{S_WAVE}, 3")
        k.e(f"s_add_u32 s46, s46, {i}")
        k.e("s_min_u32 s46, s46, 8")
        k.e("s_lshl_b32 s47, s46, 5")
        k.e("s_add_u32 s47, s47, 144")
        k.e(f"v_add_u32 v{V_HA+i}, s47, v5")
        k.e(f"v_add_u32 v{V_HA2+i}, {2*WST}, v{V_HA+i}")
        k.e("s_lshl_b32 s47, s46, 6")
        k.e(f"v_add_u32 v{V_HW+i}, s47, v10")
    k.e("v_and_b32 v5, 15, v0")
    k.e("v_bfe_u32 v6, v5, 1, 3")
    for k32 in range(2):
        k.e(f"v_add_u32 v7, {4*k32}, v2")
        k.e("v_xor_b32 v7, v7, v6")
        k.e("v_lshlrev_b32 v7, 4, v7")
        k.e("v_lshl_add_u32 v7, v5, 7, v7")
        k.e(f"v_add_u32 v{V_HB+k32}, {HB}, v7")

    def aread(i, s, ksl, T, half):
        st = s % NST
        off = (ksl * 16 + half * 4) * PITCH + (st % 2) * WST + 64 * T
        base = (V_TA2 if st >= 2 else V_TA)
        d = V_AF + (i % 4) * 4 + half * 2
        k.lgop(f"ds_read_b64_tr_b16 {vr(d,2)}, v{base} offset:{off}", ("af", i, half))

    def haread(s, k32, i, half):
        st = s % NST
        off = (k32 * 32 + half * 4) * PITCH + (st % 2) * WST
        base = (V_HA2 if st >= 2 else V_HA) + i
        d = V_HAF + i * 4 + half * 2
        k.lgop(f"ds_read_b64_tr_b16 {vr(d,2)}, v{base} offset:{off}", ("haf", s, k32, i, half))

    def accq(T, rt):
        return (T * 2 + rt) * 16
    A_H = 224

    def x_convert(s):
        def wx():
            vq.force_until(lambda: k.vm.count(("x", s)) == 8)
            k.need(vm=("x", s))
        th = [wx]
        for p in range(8):
            th.append(lambda p=p: x_write(k, s, p, xq(s, p)))
        for ksl in range(4):
            for rt in range(2):
                th.append(lambda ksl=ksl, rt=rt: x_read(k, s, ksl, rt, vr(xfr(s, ksl, rt))))
        return th

    vq = Paced(P["vrate"], P["vcap"], k)

    def guard():
        if k.lg_out() >= 13:
            k.need(lg=k.lg[k.lg_done + 4])

    for th in x_convert(0):
        guard()
        th()
    k.need(vm=("w", 0))
    k.e("s_barrier")

    pairs = [(s, ksl, T) for s in range(9) for ksl in range(4) for T in range(7)]
    fill = []
    issued = 0
    visible = 0

    def issue_upto(it):
        nonlocal issued
        while issued <= it and issued < len(pairs):
            s, ksl, T = pairs[issued]
            if s > visible:
                break
            guard()
            aread(issued, s, ksl, T, 0)
            aread(issued, s, ksl, T, 1)
            issued += 1

    for i, (s, ksl, T) in enumerate(pairs):
        ks = 4 * s + ksl
        if ksl == 0 and T == 0:
            if s in (0, 2):
                k.stamp()
            while fill:
                guard()
                fill.pop(0)()
            if s + 1 <= 8:
                vq.force_until(lambda: k.vm.count(("w", s + 1)) == 8)
                k.need(vm=("w", s + 1))
                k.e("s_barrier")
                visible = s + 1
            if s + 3 <= 8:
                for ii in range(7):
                    vq.add(dma_w(s + 3, ii), 33)
                    if s >= 1:
                        vq.add(lambda s=s, p=ii: x_load(k, s + 3, p, xq(s + 3, p)), 19)
                vq.add(dma_h(s + 3), 19)
                if s >= 1:
                    vq.add(lambda s=s: x_load(k, s + 3, 7, xq(s + 3, 7)), 19)
        if ksl == 2 and T == 0 and s + 1 <= 8:
            xc = x_convert(s + 1)
            if "noxw" in P["exp"]:
                xc = xc[:1] + xc[9:]
            fill.extend(xc)
        if s == 8 and ksl == 3 and T == 1:
            def touch3():
                srd(k, 60, 56, 57, 576 * 1152)
                k.e("v_mul_u32_u24 v2, 7282, v0")
                k.e("v_lshrrev_b32 v2, 16, v2")
                k.e("v_mul_u32_u24 v3, 9, v2")
                k.e("v_sub_u32 v3, v0, v3")
                k.e("v_min_u32 v2, 5, v2")
                k.e("v_mul_u32_u24 v2, 1152, v2")
                k.e("v_lshl_add_u32 v2, v3, 7, v2")
                k.e(f"s_sub_u32 s46, s{S_IDX}, 24")
                k.e("s_lshl_b32 s46, s46, 2")
                k.e(f"s_add_u32 s46, s46, s{S_WAVE}")
                k.e(f"s_mul_i32 s46, s46, {18*1152}")
                for z in range(3):
                    k.vmop(f"buffer_load_dword v1, v2, s[60:63], s46 offen", ("touch",))
                    k.e(f"s_add_u32 s46, s46, {6*1152}")
                srd(k, 60, 52, 53, 4608 * 1152)
                k.e(f"s_sub_u32 s46, s{S_IDX}, 24")
                k.e("s_lshl_b32 s46, s46, 2")
                k.e(f"s_add_u32 s46, s46, s{S_WAVE}")
                k.e(f"s_lshl_b32 s47, s{S_FQ}, 5")
                k.e("s_add_u32 s46, s46, s47")
                k.e(f"s_mul_i32 s46, s46, {12*1152}")
                for c in range(3):
                    for z in range(2):
                        k.e(f"s_add_u32 s47, s46, {(c*1536 + z*6)*1152}")
                        k.vmop(f"buffer_load_dword v1, v2, s[60:63], s47 offen", ("touch",))
            if P["touch2"]:
                vq.add(touch3, 40)
        if s == 8 and ksl == 0 and T == 1:
            vq.add(lambda: nonce_issue(k, 252), 10)
        if T == 0:
            guard()
            if ksl % 2 == 0:
                k32 = ksl // 2
                k.lgop(f"ds_read_b128 {vr(V_HBF + k32*4)}, v{V_HB+k32} offset:{(s%NST)*2048}", ("hbf", s, k32))
        issue_upto(i)
        assert issued > i
        need = [("af", i, 1)]
        if T == 0:
            need += [("xf", ks, 0), ("xf", ks, 1)]
        k.need(lg=need)
        af = vr(V_AF + (i % 4) * 4)
        for rt in range(2):
            a = accq(T, rt)
            cin = "0" if ks == 0 else ar(a, 16)
            k.e(f"v_mfma_f32_32x32x16_bf16 {ar(a,16)}, {af}, {vr(xfr(s,ksl,rt))}, {cin}")
            if rt == 0:
                issue_upto(i + 2)
            if fill and k.lg_out() < 9:
                fill.pop(0)()
            vq.gap()
        if ksl % 2 == 0 and T in (1, 2, 3) and "nohalo" not in P["exp"]:
            guard()
            haread(s, ksl // 2, T - 1, 0)
            haread(s, ksl // 2, T - 1, 1)
        if ksl % 2 == 0 and T in (4, 5, 6) and "nohalo" not in P["exp"]:
            k32 = ksl // 2
            hi = T - 4
            k.need(lg=[("haf", s, k32, hi, 1), ("hbf", s, k32)])
            a = A_H + hi * 4
            cin = "0" if ks == 0 else ar(a, 4)
            k.e(f"v_mfma_f32_16x16x32_bf16 {ar(a,4)}, {vr(V_HAF+hi*4)}, {vr(V_HBF+k32*4)}, {cin}")
    while fill:
        guard()
        fill.pop(0)()
    vq.drain()
    k.wait_all(vm=False)
    k.e("s_nop 7")
    k.e("s_nop 7")
    k.e("s_barrier")
    k.stamp()
    k.e("v_and_b32 v2, 31, v0")
    k.e("v_lshrrev_b32 v3, 5, v0")
    k.e(f"s_lshl_b32 s46, s{S_WAVE}, 6")
    k.e("s_add_u32 s46, s46, 16")
    k.e("v_add_u32 v4, s46, v2")
    k.e("v_mul_u32_u24 v4, 592, v4")
    k.e("v_lshl_add_u32 v8, v3, 4, v4")
    k.e("v_mul_u32_u24 v5, 144, v3")
    k.e("v_add_u32 v4, v4, v5")
    V_Q = 84
    combos = [(T, qq) for T in range(7) for qq in range(4)]
    for rt in range(2):
        for (T, qq) in combos:
            g2 = 8 * T + 2 * qq
            if g2 < 18:
                guard()
                k.lgop(f"ds_write_b128 v8, {ar(accq(T, rt) + qq*4)} offset:{rt*18944 + g2*16}", ("qw",))
    for rt in range(2):
        for g9 in range(9):
            guard()
            k.lgop(f"ds_read_b128 {vr(V_Q + rt*36 + g9*4)}, v4 offset:{rt*18944 + g9*16}", ("qr",))
    for rt in range(2):
        for (T, qq) in combos:
            g2 = 8 * T + 2 * qq
            if 18 <= g2 < 54:
                guard()
                k.lgop(f"ds_write_b128 v8, {ar(accq(T, rt) + qq*4)} offset:{rt*18944 + (g2-18)*16}", ("kvw",))
    for hi in range(3):
        guard()
        k.lgop(f"ds_write_b128 v{V_HW+hi}, {ar(A_H+hi*4)}", ("kvw",))
    sc = (18 ** -0.5) * LOG2E
    k.e(f"s_mov_b32 s46, 0x{f2u(sc):08x}")
    k.need(lg=("qr",))
    for i in range(72):
        k.e(f"v_mul_f32 v{V_Q+i}, s46, v{V_Q+i}")
    k.wait_all(vm=False)
    nonce_get(k, 252)
    k.e("s_barrier")
    k.stamp()
    k.e(f"s_lshl_b32 s46, s{S_RB}, 2")
    k.e(f"s_add_u32 s46, s46, s{S_WAVE}")
    k.e("s_lshl_b32 s46, s46, 6")
    k.e("v_add_u32 v5, s46, v2")
    k.e(f"v_subrev_u32 v9, {14*592}, v4")
    V_K = 160
    V_L = 232
    V_P = 10
    V_O = 40
    V_SA = 240
    k.e(f"s_mul_i32 s47, s{S_FG}, {9*512}")
    k.e(f"v_mul_u32_u24 v6, {5*512}, v3")
    k.e("v_lshl_add_u32 v7, v2, 4, s47")
    k.e(f"v_add_u32 v{V_SA}, v6, v7")
    k.e(f"v_mul_u32_u24 v6, {NKB*1024}, v3")
    k.e(f"v_add3_u32 v{V_SA+1}, v6, v7, 0")
    k.e(f"v_add_u32 v{V_SA+1}, {4*512}, v{V_SA+1}")
    k.e(f"s_lshl_b32 s46, s{S_RB}, 3")
    k.e(f"s_lshl_b32 s47, s{S_WAVE}, 1")
    k.e("s_add_u32 s46, s46, s47")
    k.e(f"s_mul_i32 s{S_STBASE}, s46, {NKB*1024}")

    def kvread(rt, w, isv, buf):
        off = rt * 18944 + (14 - 2 * w) * 592 + isv * 288
        for g in range(9):
            k.lgop(f"ds_read_b128 {vr(V_K + buf*36 + g*4)}, v9 offset:{off + g*16}", ("kv", rt, w, isv))

    for rt in range(2):
        q = V_Q + rt * 36
        kvread(rt, 0, 0, 0)
        for w in range(8):
            buf = w & 1
            k.need(lg=("kv", rt, w, 0))
            if w + 1 < 8:
                kvread(rt, w + 1, 0, buf ^ 1)
            else:
                kvread(rt, 0, 1, buf ^ 1)
            kb = V_K + buf * 36
            for d in range(9):
                for e in range(2):
                    a = q + e * 18 + 2 * d
                    b = kb + e * 18 + 2 * d
                    l = V_L + e * 4 + (d & 1) * 2
                    if d < 2:
                        k.e(f"v_pk_mul_f32 {vr(l,2)}, {vr(a,2)}, {vr(b,2)}")
                    else:
                        k.e(f"v_pk_fma_f32 {vr(l,2)}, {vr(a,2)}, {vr(b,2)}, {vr(l,2)}")
            for e in range(2):
                k.e(f"v_pk_add_f32 {vr(V_L+e*4,2)}, {vr(V_L+e*4,2)}, {vr(V_L+e*4+2,2)}")
            for e in range(2):
                k.e(f"v_add_f32 v{V_P + e*8 + w}, v{V_L+e*4}, v{V_L+e*4+1}")
        k.e(f"v_add_u32 v26, {32*rt}, v5")
        k.e("v_mov_b32 v27, 0xff7fffff")
        for w in range(1, 8):
            k.e(f"v_cmp_le_u32 vcc, {2*w}, v26")
            k.e("s_nop 1")
            for e in range(2):
                k.e(f"v_cndmask_b32 v{V_P+e*8+w}, v27, v{V_P+e*8+w}, vcc")
        for e in range(2):
            p = V_P + e * 8
            m = 28 + e
            k.e(f"v_max3_f32 v{m}, v{p}, v{p+1}, v{p+2}")
            k.e(f"v_max3_f32 v{m}, v{m}, v{p+3}, v{p+4}")
            k.e(f"v_max3_f32 v{m}, v{m}, v{p+5}, v{p+6}")
            k.e(f"v_max_f32 v{m}, v{m}, v{p+7}")
        for e in range(2):
            p = V_P + e * 8
            for w in range(8):
                k.e(f"v_sub_f32 v{p+w}, v{p+w}, v{28+e}")
        for e in range(2):
            p = V_P + e * 8
            for w in range(8):
                k.e(f"v_exp_f32 v{p+w}, v{p+w}")
        k.e("s_nop 0")
        for e in range(2):
            p = V_P + e * 8
            k.e(f"v_add_f32 v{28+e}, v{p}, v{p+1}")
        for w in range(2, 8):
            for e in range(2):
                p = V_P + e * 8
                k.e(f"v_add_f32 v{28+e}, v{28+e}, v{p+w}")
        for e in range(2):
            k.e(f"v_rcp_f32 v{28+e}, v{28+e}")
        k.e("s_nop 0")
        for e in range(2):
            p = V_P + e * 8
            for w in range(8):
                k.e(f"v_mul_f32 v{p+w}, v{p+w}, v{28+e}")
        for w in range(8):
            buf = (w & 1)
            k.need(lg=("kv", rt, w, 1))
            if w + 1 < 8:
                kvread(rt, w + 1, 1, buf ^ 1)
            vb = V_K + buf * 36
            for e in range(2):
                p = V_P + e * 8 + w
                pe = p & ~1
                sel = p & 1
                for d in range(9):
                    o = V_O + e * 18 + 2 * d
                    b = vb + e * 18 + 2 * d
                    if w == 0:
                        k.e(f"v_pk_mul_f32 {vr(o,2)}, {vr(pe,2)}, {vr(b,2)} op_sel:[{sel},0] op_sel_hi:[{sel},1]")
                    else:
                        k.e(f"v_pk_fma_f32 {vr(o,2)}, {vr(pe,2)}, {vr(b,2)}, {vr(o,2)} op_sel:[{sel},0,0] op_sel_hi:[{sel},1,1]")
        for a in range(9):
            d = q + a * 2
            k.e(f"v_cvt_pk_bf16_f32 v{d}, v{V_O+4*a}, v{V_O+4*a+1}")
            k.e(f"v_cvt_pk_bf16_f32 v{d+1}, v{V_O+4*a+2}, v{V_O+4*a+3}")
        k.e("v_cmp_ne_u32 vcc, 0, v3")
        k.e(f"s_add_u32 s{S_T2}, s{S_STBASE}, {rt*NKB*1024}")
        k.e("s_nop 0")
        for i in range(16):
            k.e(f"v_cndmask_b32 v{q+20+i}, v{q+i}, v{q+i+2}, vcc")
        for i in range(2):
            k.e(f"v_cndmask_b32 v{V_SA+4+2*rt+i}, v{q+16+i}, v{q+i}, vcc")
        for m in range(4):
            k.vmop(f"buffer_store_dwordx4 {vr(q+20+4*m)}, v{V_SA}, s[16:19], s{S_T2} offen offset:{m*512} sc0 sc1", ("st",))
    k.e("s_nop 1")
    k.e(f"v_permlane32_swap_b32 v{V_SA+4}, v{V_SA+6}")
    k.e(f"v_permlane32_swap_b32 v{V_SA+5}, v{V_SA+7}")
    k.e("s_nop 1")
    k.vmop(f"buffer_store_dwordx4 {vr(V_SA+4)}, v{V_SA+1}, s[16:19], s{S_STBASE} offen sc0 sc1", ("st",))
    k.stamp()


S_RT, S_NT, S_SPLIT = 65, 66, 49
S_SEG = 64
S_M0B = 38
S_PB, S_GA, S_OA, S_LATE = 36, 39, 3, 37
S_SG = 24
S_BB = 67
S_FL = 35


class PhaseB:
    LB = 49152

    def __init__(self, k, P, is_o):
        self.k, self.P, self.is_o = k, P, is_o
        self.NS = 18 if is_o else 36
        self.RS = 9
        self.DW = 8 - P["b_bi"]
        self.DB = P["b_db"]
        self.SL = 12288
        self.V_WD = [32, 33, 34]
        self.V_AE = [35, 36, 37, 38, 31, 30]
        self.V_SC = 8
        self.V_T = 10
        self.V_AF = 64
        self.NAF = 8
        self.RA = P["b_ra"]
        self.BI = P["b_bi"]
        self.V_ACC = 160
        self.NBB = self.DB + 1

    def pos(self, st):
        return (st + 7) % 9

    def setup_thunks(self, t):
        k, P = self.k, self.P
        th = []

        def f0():
            if self.is_o:
                k.e(f"s_and_b32 s46, s{S_FG}, 1")
                k.e(f"s_lshr_b32 s{S_NT}, s{S_FG}, 1")
                k.e(f"s_mov_b32 s{S_SPLIT}, 4")
                srd(k, 60, 56, 57, 576 * 1152)
            else:
                k.e(f"s_and_b32 s46, s{S_I2}, 1")
                k.e(f"s_lshr_b32 s{S_NT}, s{S_I2}, 1")
                k.e(f"s_mov_b32 s{S_SPLIT}, s{S_FQ}")
                srd(k, 60, 52, 53, 4608 * 1152)
            k.e(f"s_lshl_b32 s{S_RT}, s{S_RB}, 1")
            k.e(f"s_add_u32 s{S_RT}, s{S_RT}, s46")
        th.append(f0)

        def f1():
            k.e(f"s_mul_i32 s{S_SEG}, s{S_WAVE}, {8*1152}")
            k.e(f"s_mul_i32 s46, s{S_NT}, 384")
            k.e(f"s_add_u32 s{S_SEG}, s{S_SEG}, s46")
            if not self.is_o:
                k.e(f"s_mul_i32 s46, s{S_SPLIT}, {384*1152}")
                k.e(f"s_add_u32 s{S_SEG}, s{S_SEG}, s46")
            k.e(f"s_mul_i32 s{S_M0B}, s{S_WAVE}, 3072")
        th.append(f1)

        def f2():
            k.e(f"s_lshl_b32 s46, s{S_RT}, 2")
            k.e(f"s_add_u32 s46, s46, s{S_WAVE}")
            k.e(f"s_mul_i32 s46, s46, {NKB}")
            if not self.is_o:
                k.e(f"s_mul_i32 s{S_BB}, s{S_SPLIT}, 72")
                k.e(f"s_add_u32 s46, s46, s{S_BB}")
                k.e("s_add_u32 s46, s46, 36")
            k.e(f"s_lshl_b32 s{S_BB}, s46, 10")
        th.append(f2)
        for i in range(3):
            def g0(i=i):
                k.e(f"v_add_u32 v{t}, {64*i}, v0")
                k.e(f"v_mul_u32_u24 v{t+1}, 2731, v{t}")
                k.e(f"v_lshrrev_b32 v{t+1}, 16, v{t+1}")
                k.e(f"v_mul_u32_u24 v{t+2}, 24, v{t+1}")
                k.e(f"v_sub_u32 v{t+2}, v{t}, v{t+2}")
            def g1(i=i):
                k.e(f"v_bfe_u32 v{t+3}, v{t+1}, 1, 1")
                k.e(f"v_lshlrev_b32 v{t+3}, 2, v{t+3}")
                k.e(f"v_xor_b32 v{t+2}, v{t+2}, v{t+3}")
                if not self.is_o:
                    k.e(f"s_mul_i32 s46, s{S_SPLIT}, 6")
                    k.e(f"v_add_u32 v{t+2}, s46, v{t+2}")
                    k.e(f"v_subrev_u32 v{t+3}, 24, v{t+2}")
                    k.e(f"v_min_u32 v{t+2}, v{t+2}, v{t+3}")
                k.e(f"v_mul_u32_u24 v{t+1}, 1152, v{t+1}")
                k.e(f"v_lshl_add_u32 v{self.V_WD[i]}, v{t+2}, 4, v{t+1}")
            th += [g0, g1]

        def h0():
            k.e(f"v_lshrrev_b32 v{t}, 4, v0")
            k.e(f"v_bfe_u32 v{t+1}, v0, 2, 2")
            k.e(f"v_and_b32 v{t+2}, 3, v0")
            k.e(f"v_lshrrev_b32 v{t+3}, 1, v{t}")
            k.e(f"v_lshl_add_u32 v{t+3}, v{t+3}, 3, v{t+1}")
        def h1():
            k.e(f"v_mul_u32_u24 v{t+3}, 384, v{t+3}")
            k.e(f"v_and_b32 v{t+4}, 1, v{t}")
            k.e(f"v_lshl_add_u32 v{t+3}, v{t+4}, 5, v{t+3}")
            k.e(f"v_lshl_add_u32 v{t+3}, v{t+2}, 3, v{t+3}")
            k.e(f"v_lshrrev_b32 v{t+4}, 1, v{t+1}")
        def h2():
            ae = self.V_AE
            k.e(f"v_lshlrev_b32 v{t+4}, 6, v{t+4}")
            k.e(f"v_add_u32 v{t+3}, {self.LB}, v{t+3}")
            k.e(f"v_add_u32 v{ae[0]}, v{t+3}, v{t+4}")
            k.e(f"v_sub_u32 v{ae[1]}, v{t+3}, v{t+4}")
            k.e(f"v_add_u32 v{ae[1]}, 64, v{ae[1]}")
        def h3():
            ae = self.V_AE
            for z in (1, 2):
                k.e(f"v_add_u32 v{ae[2*z]}, {z*4*self.SL}, v{ae[0]}")
                k.e(f"v_add_u32 v{ae[2*z+1]}, {z*4*self.SL}, v{ae[1]}")
        th += [h0, h1, h2, h3]
        return th

    def dma_w(self, st, i):
        k = self.k
        seg, r = divmod(st, 12)
        segstride = 384 if self.is_o else 1536
        k.e(f"s_add_u32 m0, s{S_M0B}, {self.LB + self.pos(st)*self.SL + i*1024}")
        k.e(f"s_add_u32 s{S_T1}, s{S_SEG}, {(seg*segstride + r*32)*1152}")
        k.vmop(f"buffer_load_dwordx4 v{self.V_WD[i]}, s[60:63], s{S_T1} offen lds", ("bw", st))

    def bfr(self, st, kh):
        return ((st % self.NBB) * 2 + kh) * 4

    def load_b(self, st, kh):
        k = self.k
        k.e(f"s_add_u32 s{S_T0}, s{S_BB}, {st*2048}")
        k.vmop(f"buffer_load_dwordx4 {ar(self.bfr(st,kh))}, v{V_L16}, s[16:19], s{S_T0} offen offset:{kh*1024} {self.P['ldscope']}", ("b", st, kh))

    def aread(self, i, st, kh, a, half):
        k = self.k
        z, sl = divmod(self.pos(st), 4)
        off = sl * self.SL + (16 * kh + 4 * half) * 384
        be, bo = self.V_AE[2 * z], self.V_AE[2 * z + 1]
        if a % 2 == 0:
            base, off = be, off + a * 64
        else:
            base, off = bo, off + (a - 1) * 64
        assert 0 <= off < 65536
        d = self.V_AF + (i % self.NAF) * 4 + half * 2
        k.lgop(f"ds_read_b64_tr_b16 {vr(d,2)}, v{base} offset:{off}", ("baf", i, half))

    def main(self, visible, S=None, pre_bar=None, post_bar=None):
        k, P = self.k, self.P
        NS, DW, DB = self.NS, self.DW, self.DB
        if S is None:
            S = Sched(k, P["brate"], P["vcap"])
        S.rate = P["brate"]
        GB = P["gb"]
        ops = [(st, kh, a) for st in range(NS - 1) for kh in range(2) for a in range(6)]
        ops += [(NS - 1, kh, a) for a in (2, 3, 4, 5, 1, 0) for kh in range(2)]
        issued = 0
        lastn = {}
        prev_ready = S.ready

        def ready(n, force):
            if n < 100:
                return prev_ready(n, force)
            gap = k.n - lastn[n]
            if gap >= 13:
                return True
            if force:
                k.e(f"s_nop {min(15, 13 - gap)}")
                return True
            return False
        S.ready = ready

        def issue_upto(it):
            nonlocal issued
            cnt = 0
            while issued <= it and issued < len(ops):
                st, kh, a = ops[issued]
                if st > visible:
                    break
                self.aread(issued, st, kh, a, 0)
                self.aread(issued, st, kh, a, 1)
                issued += 1
                cnt += 2
            return cnt

        BI = self.BI

        def boundary(st):
            nonlocal visible
            if st >= 1 and st % BI == 0:
                upto = min(st + BI, NS - 1)
                if upto > visible:
                    if k.vm.count(("bw", upto)) != 3:
                        S.force_v(lambda: k.vm.count(("bw", upto)) == 3)
                    k.need(vm=("bw", upto))
                    visible = upto
                if pre_bar:
                    pre_bar(st)
                k.e("s_barrier")
            if post_bar and st >= 1:
                post_bar(st)
            if st + DB < NS:
                S.add_v(lambda st=st: self.load_b(st + DB, 0), 19)
                S.add_v(lambda st=st: self.load_b(st + DB, 1), 19)
            if st + DW < NS:
                for ii in range(3):
                    S.add_v(lambda st=st, ii=ii: self.dma_w(st + DW, ii), 19)
            if st == NS - 7:
                for th in self.epi_setup():
                    S.add_f(th)
            if not self.is_o:
                if st == NS - P["ochk"] - 2:
                    S.add_v(lambda: flag_load(k, S_FL, 16, 2, ("flo",)), 10)
                if st == NS - P["ochk"]:
                    S.force_v(lambda: ("flo",) in k.vm)
                    flag_check(k, S_FL, 16, 2, 2, ("flo",))
                    S.add_v(lambda: k.vmop(f"buffer_load_dword v{self.V_SC}, v{self.V_T+2}, s[16:19], s{S_GA} offen sc0 sc1", ("g",)), 10)
                    for pr in range(3):
                        def ld4(pr=pr):
                            k.e(f"s_add_u32 s{S_T0}, s{S_PB}, {4*4*12288}")
                            k.vmop(f"buffer_load_dwordx4 {vr(144+pr*4)}, v{V_L16}, s[16:19], s{S_T0} offen offset:{pr*1024} sc0 sc1", ("pl4",))
                        S.add_v(ld4, 19)

        first_in_step = {}
        for i, (st, kh, a) in enumerate(ops):
            first_in_step.setdefault(st, i)
        for i, (st, kh, a) in enumerate(ops):
            issue_upto(i)
            assert issued > i
            if ("b", st, kh) not in k.vm:
                S.force_v(lambda: ("b", st, kh) in k.vm)
            k.need(vm=("b", st, kh))
            if i % 2 == 0 or not P["b_pair"]:
                nxt = min(i + 1, issued - 1) if P["b_pair"] else i
                k.need(lg=("baf", max(i, nxt), 1))
            else:
                k.need(lg=("baf", i, 1))
            ac = self.V_ACC + a * 16
            cin = "0" if (st == 0 and kh == 0) else vr(ac, 16)
            k.e(f"v_mfma_f32_32x32x16_bf16 {vr(ac,16)}, {vr(self.V_AF+(i%self.NAF)*4)}, {ar(self.bfr(st,kh))}, {cin}")
            budget = GB
            if st == NS - 1 and kh == 1:
                lastn[100 + a] = k.n
                for pr in (2 * a, 2 * a + 1):
                    if pr < 3 and not self.is_o:
                        continue
                    a0 = self.V_ACC + pr * 8
                    pk = 96 + pr * 4
                    for r in range(4):
                        S.epi.append((100 + a, [("e", f"v_cvt_pk_bf16_f32 v{pk+r}, v{a0+2*r}, v{a0+2*r+1}", None)]))
                    g_, r_ = divmod(pr, 3)
                    S.epi.append((100 + a, [("e", "s_nop 0", None),
                                            ("vm", f"buffer_store_dwordx4 {vr(pk)}, v{V_L16}, s[16:19], s{S_SG+g_} offen offset:{r_*1024} sc0 sc1", ("pst",))]))
            if first_in_step[st] == i:
                n0 = k.n
                boundary(st)
                budget -= (k.n - n0)
            if P["b_pair"]:
                if i % 2 == 0:
                    budget -= issue_upto(i + self.RA)
                else:
                    budget -= 1
            else:
                budget -= issue_upto(i + self.RA) + 1
            S.gap(budget, GB)
        S.drain()
        k.stamp()
        S.force_epi(1000)

    def epi_setup(self):
        k = self.k
        t = self.V_T
        th = []

        def f0():
            k.e(f"s_mul_i32 s46, s{S_RT}, 3")
            k.e(f"s_add_u32 s46, s46, s{S_NT}")
            k.e(f"s_add_u32 s{S_FL}, s46, 40")
            k.e(f"s_lshl_b32 s{S_FL}, s{S_FL}, 7")
            k.e(f"s_add_u32 s{S_FL}, s{S_FL}, {FLAG_OFF}")
            k.e("s_mul_i32 s46, s46, 20")
            k.e(f"s_add_u32 s46, s46, s{S_WAVE}")
            k.e(f"s_mul_i32 s{S_PB}, s46, 12288")
            k.e(f"s_add_u32 s{S_PB}, s{S_PB}, {PART_OFF}")
            k.e(f"s_mul_i32 s46, s{S_SPLIT}, {4*12288}")
            k.e(f"s_add_u32 s47, s{S_PB}, s46")
            for g in range(4):
                if self.is_o:
                    k.e(f"s_add_u32 s{S_SG+g}, s47, {g*3072}")
                else:
                    k.e(f"s_add_u32 s46, s{S_SPLIT}, {g}")
                    k.e("s_and_b32 s46, s46, 3")
                    k.e("s_mul_i32 s46, s46, 3072")
                    k.e(f"s_add_u32 s{S_SG+g}, s47, s46")
            k.e(f"s_lshl_b32 s46, s{S_SPLIT}, 2")
            k.e(f"s_add_u32 s50, s46, s{S_FL}")
        th.append(f0)
        if not self.is_o:
            def f1():
                k.e(f"s_mul_i32 s46, s{S_SPLIT}, 3072")
                k.e(f"s_add_u32 s{S_PB}, s{S_PB}, s46")
                k.e(f"s_lshl_b32 s46, s{S_RT}, 2")
                k.e(f"s_add_u32 s46, s46, s{S_WAVE}")
                k.e(f"s_lshl_b32 s{S_GA}, s46, 7")
                k.e(f"s_add_u32 s{S_GA}, s{S_GA}, {G_OFF}")
                k.e(f"s_mul_i32 s{S_OA}, s46, {32*1152}")
                k.e(f"s_mul_i32 s46, s{S_NT}, 384")
                k.e(f"s_add_u32 s{S_OA}, s{S_OA}, s46")
                k.e(f"s_mul_i32 s46, s{S_SPLIT}, 96")
                k.e(f"s_add_u32 s{S_OA}, s{S_OA}, s46")
                srd(k, 8, 28, 29, 2048 * 576 * 2)
            def f2():
                k.e(f"v_and_b32 v{t+2}, 31, v0")
                k.e(f"v_mul_u32_u24 v{t+3}, 1152, v{t+2}")
                k.e(f"v_lshlrev_b32 v{t+2}, 2, v{t+2}")
                k.e(f"v_lshrrev_b32 v{t+4}, 5, v0")
                k.e(f"v_lshl_add_u32 v{t+3}, v{t+4}, 4, v{t+3}")
            th += [f1, f2]
        return th

    def t4(self):
        k, sc = self.k, self.V_SC
        for d in range(12):
            k.e(f"v_lshlrev_b32 v{64+2*d}, 16, v{144+d}")
            k.e(f"v_and_b32 v{64+2*d+1}, 0xffff0000, v{144+d}")
        for d in range(24):
            k.e(f"v_mul_f32 v{64+d}, v{sc}, v{64+d}")
        k.e(f"v_sub_f32 v{sc}, 1.0, v{sc}")

    def epilogue(self):
        k = self.k
        k.stamp()
        if not self.is_o:
            k.need(vm=("pl4",))
            self.t4()
        publish(k, 50, self.V_T, ("pst",))
        k.stamp()

    def phaseC(self):
        k, P = self.k, self.P
        t, sc = self.V_T, self.V_SC
        poll(k, S_FL, 4, t)
        k.stamp()
        L, A, TT = 96, self.V_ACC, 192
        for o in range(1, 4):
            k.e(f"s_add_u32 s46, s{S_SPLIT}, {o}")
            k.e("s_and_b32 s46, s46, 3")
            k.e(f"s_mul_i32 s46, s46, {4*12288}")
            k.e(f"s_add_u32 s{S_T0}, s{S_PB}, s46")
            for pr in range(3):
                k.vmop(f"buffer_load_dwordx4 {vr(L + ((o-1)*3+pr)*4)}, v{V_L16}, s[16:19], s{S_T0} offen offset:{pr*1024} sc0 sc1", ("pl", o))
        for o in range(1, 4):
            k.need(vm=("pl", o))
            for d in range(12):
                src = L + (o - 1) * 12 + d
                k.e(f"v_lshlrev_b32 v{TT+2*d}, 16, v{src}")
                k.e(f"v_and_b32 v{TT+2*d+1}, 0xffff0000, v{src}")
            for d in range(12):
                k.e(f"v_pk_add_f32 {vr(A+2*d,2)}, {vr(A+2*d,2)}, {vr(TT+2*d,2)}")
        for d in range(24):
            k.e(f"v_fma_f32 v{A+d}, v{sc}, v{A+d}, v{64+d}")
        for d in range(12):
            k.e(f"v_cvt_pk_bf16_f32 v{TT+d}, v{A+2*d}, v{A+2*d+1}")
        k.e("s_nop 1")
        for pr in range(3):
            b = TT + pr * 4
            k.e(f"v_permlane32_swap_b32 v{b}, v{b+2}")
            k.e(f"v_permlane32_swap_b32 v{b+1}, v{b+3}")
        k.e("s_nop 1")
        for pr in range(3):
            k.vmop(f"buffer_store_dwordx4 {vr(TT+pr*4)}, v{t+3}, s[8:11], s{S_OA} offen offset:{pr*32}{P['oscope']}", ("ost",))
        if k.stamps_on:
            k.wait_all()
        k.stamp()


def gate_wg(k, P):
    k.c("---------------- gate rows ----------------")
    srd(k, 20, 54, 55, 1152)
    k.e("v_and_b32 v3, 7, v0")
    k.e("v_lshlrev_b32 v3, 4, v3")
    GW = 64
    for s in range(9):
        k.vmop(f"buffer_load_dwordx4 {vr(GW+4*s)}, v3, s[20:23], 0 offen offset:{s*128}", ("gw",))
    k.e(f"s_lshl_b32 s46, s{S_RB}, 1")
    k.e(f"s_add_u32 s46, s46, s{S_FG}")
    k.e(f"s_sub_u32 s49, s46, 6")
    k.e(f"s_lshl_b32 s46, s49, 2")
    k.e(f"s_add_u32 s46, s46, s{S_WAVE}")
    k.e(f"s_mul_i32 s{S_XS}, s46, {32*1152}")
    k.e(f"s_add_u32 s{S_XS+1}, s{S_XS}, {16*1152}")
    k.e("s_lshl_b32 s48, s46, 7")
    k.e(f"s_add_u32 s48, s48, {G_OFF}")
    X = 100
    for p in range(4):
        for s in range(9):
            v = V_XL if p % 2 == 0 else V_XL2
            k.vmop(f"buffer_load_dwordx4 {vr(X+(p*9+s)*4)}, v{v}, s[8:11], s{S_XS+p//2} offen offset:{s*128}", ("gx", p))
    for p in range(4):
        k.e(f"v_mov_b32 v{4+p}, 0")
    for p in range(4):
        k.need(vm=("gx", p))
        for s in range(9):
            for d in range(4):
                k.e(f"v_dot2_f32_bf16 v{4+p}, v{X+(p*9+s)*4+d}, v{GW+4*s+d}, v{4+p}")
    k.e("s_nop 3")
    for m in (1, 2, 4):
        for p in range(4):
            k.lgop(f"ds_swizzle_b32 v{8+p}, v{4+p} offset:{(m << 10) | 0x1f}", ("sw",))
        k.wait_all(vm=False)
        for p in range(4):
            k.e(f"v_add_f32 v{4+p}, v{4+p}, v{8+p}")
    for p in range(4):
        k.e(f"v_mul_f32 v{4+p}, 0x{f2u(-LOG2E):08x}, v{4+p}")
    for p in range(4):
        k.e(f"v_exp_f32 v{4+p}, v{4+p}")
    k.e("s_nop 0")
    for p in range(4):
        k.e(f"v_add_f32 v{4+p}, 1.0, v{4+p}")
    for p in range(4):
        k.e(f"v_rcp_f32 v{4+p}, v{4+p}")
    k.e("v_lshrrev_b32 v2, 3, v0")
    k.e("v_lshlrev_b32 v2, 2, v2")
    for p in range(4):
        k.vmop(f"buffer_store_dword v{4+p}, v2, s[16:19], s48 offen offset:{p*32} sc0 sc1", ("gst",))
    k.wait_all()
    k.e("s_barrier")
    k.e(f"s_cmp_lg_u32 s{S_WAVE}, 0")
    k.e("s_cbranch_scc1 L_QEND")
    k.e(f"s_mul_i32 s46, s49, 3")
    k.e("s_add_u32 s46, s46, 40")
    k.e("s_lshl_b32 s46, s46, 7")
    k.e(f"s_add_u32 s46, s46, {FLAG_OFF + 20}")
    k.e(f"v_mov_b32 v4, s{S_NONCE}")
    k.e("v_lshlrev_b32 v5, 7, v0")
    k.e("s_mov_b64 exec, 7")
    k.e("buffer_store_dword v4, v5, s[16:19], s46 offen sc0 sc1")
    k.e("s_mov_b64 exec, -1")
    k.e("s_branch L_QEND")


def gen(P):
    k = KB()
    k.stamps_on = P["stamps"]
    prologue(k, P)
    st0 = k.save()
    B = PhaseB(k, P, False)
    phaseA_mlp(k, P, B)
    B.epilogue()
    B.phaseC()
    k.dbg_mode = "mlp" if P["dbgstamps"] else None
    k.stamp_flush()
    k.e("s_branch L_END")
    k.restore(st0)
    phaseA_qkv(k, P)
    k.e(f"s_add_u32 s{S_FL}, s{S_RB}, 32")
    k.e(f"s_lshl_b32 s{S_FL}, s{S_FL}, 7")
    k.e(f"s_add_u32 s{S_FL}, s{S_FL}, {FLAG_OFF}")
    k.e(f"s_lshl_b32 s46, s{S_FG}, 2")
    k.e(f"s_add_u32 s50, s46, s{S_FL}")
    k.wait_all(vm=False)
    publish(k, 50, 2, ("st",))
    k.stamp()
    k.e(f"s_cmp_lt_u32 s{S_FG}, 6")
    k.e("s_cbranch_scc1 L_QB")
    st1 = k.save()
    k.wait_all()
    gate_wg(k, P)
    k.restore(st1)
    k.label("L_QB")
    B2 = PhaseB(k, P, True)
    for th in B2.setup_thunks(2):
        th()
    for st in range(B2.DW):
        for ii in range(3):
            B2.dma_w(st, ii)
    poll(k, S_FL, 8, B2.V_T)
    k.e("s_barrier")
    k.stamp()
    for st in range(B2.DB):
        B2.load_b(st, 0)
        B2.load_b(st, 1)
    B2.main(B2.DW - 1)
    B2.epilogue()
    k.label("L_QEND")
    k.wait_all()
    k.dbg_mode = "qkv" if P["dbgstamps"] else None
    k.stamp_flush()
    k.label("L_END")
    k.e("s_endpgm")
    k.label("L_CODE_END")
    label = NAME + "_kernel"
    s = open("cdna_kernels/" + NAME + ".s.ref").read().split("; Override")[0]
    s += "; @launch grid=(256,1,1) block=(256,1,1) lds=163840\n"
    s += '.amdgcn_target "amdgcn-amd-amdhsa--gfx950"\n.text\n'
    s += f".globl {label}\n.p2align 8\n.type {label},@function\n{label}:\n"
    s += k.text()
    s += f"""
.section .rodata,"a"
.p2align 6
.amdhsa_kernel {label}
  .amdhsa_next_free_vgpr 512
  .amdhsa_next_free_sgpr 102
  .amdhsa_accum_offset 256
  .amdhsa_group_segment_fixed_size 0
  .amdhsa_kernarg_size 88
  .amdhsa_user_sgpr_count 2
  .amdhsa_user_sgpr_kernarg_segment_ptr 1
  .amdhsa_system_sgpr_workgroup_id_x 1
.end_amdhsa_kernel
"""
    return s


def main():
    ap = argparse.ArgumentParser()
    ap.add_argument("-o", default="cdna_kernels/" + NAME + ".s")
    ap.add_argument("--delta", type=int, default=4)
    ap.add_argument("--D", type=int, default=15)
    ap.add_argument("--R", type=int, default=32)
    ap.add_argument("--ra", type=int, default=3)
    ap.add_argument("--epg", type=int, default=3)
    ap.add_argument("--nx0", type=int, default=2)
    ap.add_argument("--xlead", type=int, default=2)
    ap.add_argument("--d0", type=int, default=9)
    ap.add_argument("--spread", type=int, default=1)
    ap.add_argument("--touch2", type=int, default=1)
    ap.add_argument("--b-ring", type=int, default=10)
    ap.add_argument("--b-dw", type=int, default=8)
    ap.add_argument("--b-db", type=int, default=8)
    ap.add_argument("--stamps", action="store_true")
    ap.add_argument("--exp", default="")
    ap.add_argument("--ochk", type=int, default=2)
    ap.add_argument("--oscope", default="nt")
    ap.add_argument("--gb", type=int, default=7)
    ap.add_argument("--b-pair", type=int, default=1)
    ap.add_argument("--cvm", type=int, default=5)
    ap.add_argument("--cdsw", type=int, default=4)
    ap.add_argument("--dbgstamps", action="store_true")
    ap.add_argument("--ctouch", type=int, default=1)
    ap.add_argument("--vidx", type=int, default=1)
    ap.add_argument("--bi", type=int, default=4)
    ap.add_argument("--bi-from", type=int, default=0)
    ap.add_argument("--bar-late", type=int, default=1)
    ap.add_argument("--b-ra", type=int, default=5)
    ap.add_argument("--b-bi", type=int, default=2)
    ap.add_argument("--ttouch", type=int, default=66)
    ap.add_argument("--tb0", type=int, default=105)
    ap.add_argument("--dfirst", type=int, default=18)
    ap.add_argument("--brate", type=float, default=9.0)
    ap.add_argument("--f2st", type=int, default=8)
    ap.add_argument("--ldscope", default="sc0 sc1")
    ap.add_argument("--rot", type=int, default=1)
    ap.add_argument("--nx1", type=int, default=0)
    ap.add_argument("--d1", type=int, default=18)
    ap.add_argument("--xper", type=int, default=4)
    ap.add_argument("--vrate", type=float, default=12.0)
    ap.add_argument("--vcap", type=float, default=40.0)
    a = ap.parse_args()
    P = vars(a)
    if P["oscope"]:
        P["oscope"] = " " + P["oscope"].replace("+", " ")
    COST["vm"] = a.cvm
    COST["dsw"] = a.cdsw
    s = gen(P)
    open(a.o, "w").write(s)
    print("wrote", a.o, len(s), "bytes")


if __name__ == "__main__":
    main()
```

```python
import sys, argparse, struct

NAME = "gated_mix__sliding_local_dilated__glu_gated_glu__prompt"

NKB = 324
G_OFF = 0x1500000
FLAG_OFF = 0x1510000
PART_OFF = 0x1600000
WS_BYTES = 268435456
DBG_OFF = 0x4000000
LOG2E = 1.4426950408889634
SPIN_MAX = 200000


def f2u(x):
    return struct.unpack("<I", struct.pack("<f", x))[0]


class KB:
    def __init__(self):
        self.lines = []
        self.vm = []
        self.vm_done = 0
        self.lg = []
        self.lg_done = 0
        self.n = 0
        self.stamps_on = False
        self.nstamp = 0
        self.dbg_mode = None

    def e(self, s):
        self.lines.append("    " + s)
        self.n += 1

    def c(self, s):
        self.lines.append("    ; " + s)

    def label(self, s):
        self.lines.append(s + ":")

    def vmop(self, s, tag):
        self.e(s)
        self.vm.append(tag)
        assert len(self.vm) - self.vm_done <= 63, "too many vm outstanding"

    def lgop(self, s, tag):
        self.e(s)
        self.lg.append(tag)
        assert len(self.lg) - self.lg_done <= 15, "too many lgkm outstanding"

    def vm_out(self):
        return len(self.vm) - self.vm_done

    def lg_out(self):
        return len(self.lg) - self.lg_done

    def _last(self, lst, tag):
        for i in range(len(lst) - 1, -1, -1):
            if lst[i] == tag:
                return i
        raise KeyError(tag)

    def need(self, vm=None, lg=None):
        parts = []
        if vm is not None:
            tags = vm if isinstance(vm, list) else [vm]
            i = max(self._last(self.vm, t) for t in tags)
            if i >= self.vm_done:
                n = len(self.vm) - 1 - i
                parts.append(f"vmcnt({n})")
                self.vm_done = len(self.vm) - n
        if lg is not None:
            tags = lg if isinstance(lg, list) else [lg]
            i = max(self._last(self.lg, t) for t in tags)
            if i >= self.lg_done:
                n = len(self.lg) - 1 - i
                parts.append(f"lgkmcnt({n})")
                self.lg_done = len(self.lg) - n
        if parts:
            self.e("s_waitcnt " + " ".join(parts))

    def wait_all(self, vm=True, lg=True):
        p = []
        if vm:
            p.append("vmcnt(0)")
            self.vm_done = len(self.vm)
        if lg:
            p.append("lgkmcnt(0)")
            self.lg_done = len(self.lg)
        self.e("s_waitcnt " + " ".join(p))

    def save(self):
        return (list(self.vm), self.vm_done, list(self.lg), self.lg_done, self.nstamp)

    def restore(self, st):
        self.vm, self.vm_done, self.lg, self.lg_done, self.nstamp = list(st[0]), st[1], list(st[2]), st[3], st[4]

    def stamp(self):
        if not self.stamps_on:
            return
        i = self.nstamp
        self.nstamp += 1
        assert i < 15
        self.e(f"s_memrealtime s[{70+2*i}:{71+2*i}]")
        self.e(f"s_memtime s[100:101]")
        self.e("s_waitcnt lgkmcnt(0)")
        self.e(f"s_mov_b32 s{71+2*i}, s100")
        self.e("s_waitcnt lgkmcnt(0)")
        self.lg_done = len(self.lg)

    def stamp_flush(self):
        if not self.stamps_on:
            return
        if self.dbg_mode:
            lbl = f"L_DS{self.n}"
            self.e(f"s_cmp_lg_u32 s{S_WAVE}, 0")
            self.e(f"s_cbranch_scc1 {lbl}")
            srd(self, 20, 30, 31, 256)
            self.e("s_mov_b64 exec, 1")
            self.e("v_mov_b32 v1, 0")
            self.e("s_not_b32 s100, s70")
            self.e("v_mov_b32 v2, s100")
            self.e("buffer_atomic_umax v2, v1, s[20:23], 0 offen offset:4 sc1")
            if self.dbg_mode == "mlp":
                for i in range(self.nstamp):
                    self.e(f"v_mov_b32 v{3+i}, s{70+2*i}")
                    self.e(f"buffer_atomic_umax v{3+i}, v1, s[20:23], 0 offen offset:{8+4*i} sc1")
            self.e("s_waitcnt vmcnt(0)")
            self.e("s_mov_b64 exec, -1")
            self.label(lbl)
            return
        self.e("s_lshl_b32 s100, s2, 2")
        self.e(f"s_add_u32 s100, s100, s{S_WAVE}")
        self.e("s_lshl_b32 s100, s100, 7")
        self.e(f"s_add_u32 s100, s100, {DBG_OFF}")
        self.e("v_mov_b32 v1, 0")
        for i in range(self.nstamp):
            self.e(f"v_mov_b32 v2, s{70+2*i}")
            self.e(f"buffer_store_dword v2, v1, s[16:19], s100 offen offset:{4*i}")
            self.e("s_nop 1")
            self.e(f"v_mov_b32 v2, s{71+2*i}")
            self.e(f"buffer_store_dword v2, v1, s[16:19], s100 offen offset:{64+4*i}")
            self.e("s_nop 1")
        self.e(f"v_mov_b32 v2, {self.nstamp}")
        self.e(f"buffer_store_dword v2, v1, s[16:19], s100 offen offset:60")
        self.e("s_getreg_b32 s101, hwreg(HW_REG_HW_ID)")
        self.e("s_nop 1")
        self.e("v_mov_b32 v3, s101")
        self.e(f"buffer_store_dword v3, v1, s[16:19], s100 offen offset:124")
        self.e("s_getreg_b32 s101, hwreg(HW_REG_XCC_ID)")
        self.e("s_nop 1")
        self.e("v_mov_b32 v4, s101")
        self.e(f"buffer_store_dword v4, v1, s[16:19], s100 offen offset:120")
        self.e("s_waitcnt vmcnt(0)")

    def text(self):
        return "\n".join(self.lines) + "\n"


class Paced:
    def __init__(self, rate, cap, k=None):
        self.q, self.credit, self.rate, self.cap, self.k = [], 0, rate, cap, k

    def add(self, th, cost):
        self.q.append((th, cost))

    def gap(self, scale=1.0):
        self.credit = min(self.credit + self.rate * scale, self.cap)
        while self.q and self.q[0][1] <= self.credit and self.k.vm_out() < 58:
            th, c = self.q.pop(0)
            self.credit -= c
            th()

    def force_until(self, pred):
        while not pred():
            th, c = self.q.pop(0)
            th()

    def drain(self):
        while self.q:
            self.q.pop(0)[0]()


def icost(text):
    op = text.split()[0]
    if op.startswith("buffer_") or op.startswith("global_"):
        return COST["vm"]
    if op.startswith("ds_write"):
        return COST["dsw"]
    if op.startswith("ds_read_b128"):
        return COST["dsr128"]
    if op.startswith("ds_"):
        return 1
    if op in ("v_exp_f32", "v_rcp_f32"):
        return 2
    return 1


COST = {"vm": 5, "dsw": 4, "dsr128": 2}


class Sched:
    def __init__(self, k, rate, cap):
        self.k = k
        self.vq = []
        self.fill = []
        self.epi = []
        self.open = []
        self.credit, self.rate, self.cap = 0, rate, cap
        self.ready = lambda n: True

    def record(self, th):
        k = self.k
        prims = []
        save = (k.e, k.vmop, k.lgop, k.need)
        k.e = lambda t: prims.append(("e", t, None))
        k.vmop = lambda t, tag: prims.append(("vm", t, tag))
        k.lgop = lambda t, tag: prims.append(("lg", t, tag))
        k.need = lambda vm=None, lg=None: prims.append(("need", vm, lg))
        try:
            th()
        finally:
            del k.e, k.vmop, k.lgop, k.need
        return prims

    def add_v(self, th, cost):
        self.vq.append((self.record(th), cost))

    def add_f(self, th, atomic=False):
        self.fill.append([("call", th, None)] if atomic else self.record(th))

    def _cost(self, p):
        if p[0] in ("need", "call"):
            return 1
        return icost(p[1])

    def _emit(self, p):
        k = self.k
        if p[0] == "e":
            k.e(p[1])
        elif p[0] == "vm":
            k.vmop(p[1], p[2])
        elif p[0] == "lg":
            if k.lg_out() >= 13:
                k.need(lg=k.lg[k.lg_done + 4])
            k.lgop(p[1], p[2])
        elif p[0] == "need":
            if p[1] is not None:
                tags = p[1] if isinstance(p[1], list) else [p[1]]
                assert all(t in k.vm for t in tags), p
            k.need(vm=p[1], lg=p[2])
        else:
            p[1]()

    def flush_open(self):
        while self.open:
            self._emit(self.open.pop(0))

    def force_v(self, pred):
        self.flush_open()
        while not pred():
            prims, c = self.vq.pop(0)
            for p in prims:
                self._emit(p)

    def force_f(self, pred):
        self.flush_open()
        while not pred():
            for p in self.fill.pop(0):
                self._emit(p)

    def force_epi(self, upto):
        self.flush_open()
        while self.epi and self.epi[0][0] <= upto:
            n, prims = self.epi.pop(0)
            self.ready(n, True)
            for p in prims:
                self._emit(p)

    def drain(self):
        self.flush_open()
        self.force_f(lambda: not self.fill)
        self.force_v(lambda: not self.vq)

    def gap(self, budget, full):
        k = self.k
        self.credit = min(self.credit + self.rate, self.cap)
        progress = True
        while budget > 0 and progress:
            progress = False
            if not self.open:
                if self.vq and self.vq[0][1] <= self.credit and k.vm_out() < 58:
                    prims, c = self.vq.pop(0)
                    self.credit -= c
                    self.open = list(prims)
                elif self.fill and k.lg_out() < 10:
                    self.open = list(self.fill.pop(0))
                elif self.epi and len(self.epi[0][1]) > 1 and self.ready(self.epi[0][0], False):
                    self.open = list(self.epi.pop(0)[1])
            if self.open:
                c = self._cost(self.open[0])
                if c <= budget and not (self.open[0][0] == "lg" and k.lg_out() >= 11):
                    self._emit(self.open.pop(0))
                    budget -= c
                    progress = True
                    continue
            if self.epi and len(self.epi[0][1]) == 1 and self.ready(self.epi[0][0], False):
                c = self._cost(self.epi[0][1][0])
                if c <= budget:
                    self._emit(self.epi.pop(0)[1][0])
                    budget -= c
                    progress = True


def srd(k, d, lo, hi, nbytes):
    k.e(f"s_mov_b32 s{d}, s{lo}")
    k.e(f"s_mov_b32 s{d+1}, s{hi}")
    k.e(f"s_mov_b32 s{d+2}, {nbytes}")
    k.e(f"s_mov_b32 s{d+3}, 0x00020000")


def vr(b, n=4):
    return f"v[{b}:{b+n-1}]"


def ar(b, n=4):
    return f"a[{b}:{b+n-1}]"


S_WAVE, S_RB, S_FG = 32, 33, 34
S_WBASE, S_STBASE, S_M0W, S_T0, S_T1, S_T2 = 36, 37, 39, 40, 41, 42
S_FQ, S_I3, S_I2, S_IDX = 43, 44, 45, 51
S_XS = 64
S_NONCE = 68
S_XW = 38
XB = 131072

V_XL, V_XL2 = 36, 37
V_XWE, V_XWO = 38, 31
V_XR = 32
V_L16 = 39


S_PX, S_PW = 3, 35


def advance(k, sc, targets):
    k.e(f"s_add_u32 s{sc}, s{sc}, 1")
    k.e(f"s_cmp_eq_u32 s{sc}, 9")
    k.e(f"s_cselect_b32 s{sc}, 0, s{sc}")
    steps = sorted(set(st for _, st in targets))
    for st in steps:
        k.e(f"s_mov_b32 s{S_T0}, {st}")
        k.e(f"s_cselect_b32 s{S_T0}, {(-8*st) & 0xFFFFFFFF}, s{S_T0}")
        for (r, st2) in targets:
            if st2 == st:
                k.e(f"s_lshl1_add_u32 s{r}, 0, s{r}") if False else None
        if len(steps) == 1:
            for (r, st2) in targets:
                k.e(f"s_add_u32 s{r}, s{r}, s{S_T0}")
        else:
            k.e(f"s_mov_b32 s{S_T0 + 1 + steps.index(st)}, s{S_T0}")
    if len(steps) > 1:
        for (r, st2) in targets:
            k.e(f"s_add_u32 s{r}, s{r}, s{S_T0 + 1 + steps.index(st2)}")


def x_load(k, s, p, dst):
    v = V_XL if p % 2 == 0 else V_XL2
    if p == 0 and s > 0:
        advance(k, S_PX, [(S_XS + i, 128) for i in range(4)])
    if "xdw" in EXP[0] and s > 1:
        k.vmop(f"buffer_load_dword v1, v0, s[8:11], 0 offen", ("x", s))
        return
    k.vmop(f"buffer_load_dwordx4 {dst}, v{v}, s[8:11], s{S_XS + p//2} offen", ("x", s))


EXP = [""]


def x_write(k, s, p, src):
    if "noxw" in EXP[0] and s > 0:
        return
    v = V_XWE if p % 2 == 0 else V_XWO
    k.lgop(f"ds_write_b128 v{v}, {src} offset:{p*1024}", ("xw", s))


def x_read(k, s, ksl, rt, dst):
    k.lgop(f"ds_read_b128 {dst}, v{V_XR+ksl} offset:{rt*4096}", ("xf", 4 * s + ksl, rt))


XD = 98304


def x_dma_g(k, s, p):
    if p == 0 and s > 0:
        advance(k, S_PX, [(S_XS + i, 128) for i in range(4)])
    k.e(f"s_add_u32 m0, s{S_XW}, {(s&1)*8192 + p*1024}")
    k.e("s_nop 0")
    k.vmop(f"buffer_load_dwordx4 v{V_XWE if p % 2 == 0 else V_XWO}, s[8:11], s{S_XS + p//2} offen lds", ("x", s))


def prologue(k, P):
    k.e("s_cmp_ge_u32 s2, 256")
    k.e("s_cbranch_scc1 L_END")
    k.stamp()
    k.e("s_load_dwordx4 s[4:7], s[0:1], 0")
    k.e("s_load_dwordx4 s[24:27], s[0:1], 32")
    k.e("s_load_dwordx4 s[52:55], s[0:1], 48")
    k.e("s_load_dwordx4 s[28:31], s[0:1], 64")
    k.e("s_load_dwordx2 s[58:59], s[0:1], 80")
    k.e("s_load_dwordx2 s[56:57], s[0:1], 16")
    k.e("v_lshrrev_b32 v1, 6, v0")
    k.e("v_and_b32 v0, 63, v0")
    k.e("v_lshrrev_b32 v2, 3, v0")
    k.e(f"v_readfirstlane_b32 s{S_WAVE}, v1")
    k.e("v_and_b32 v3, 7, v0")
    k.e("v_mul_u32_u24 v7, 1152, v2")
    k.e(f"v_lshl_add_u32 v{V_XL}, v3, 4, v7")
    k.e(f"v_add_u32 v{V_XL2}, {8*1152}, v{V_XL}")
    k.e("s_and_b32 s50, s2, 7")
    k.e(f"s_lshr_b32 s{S_IDX}, s2, 3")
    if P["vidx"]:
        k.e(f"s_lshr_b32 s46, s{S_IDX}, 2")
        k.e(f"s_and_b32 s47, s{S_IDX}, 3")
        k.e("s_mul_i32 s48, s46, 3")
        k.e("s_add_u32 s48, s48, s47")
        k.e("s_add_u32 s46, s46, 24")
        k.e("s_cmp_eq_u32 s47, 3")
        k.e(f"s_cselect_b32 s{S_IDX}, s46, s48")
    k.e("s_and_b32 s46, s50, 1")
    k.e(f"s_lshr_b32 s{S_FQ}, s50, 1")
    k.e(f"s_lshl_b32 s{S_RB}, s46, 2")
    k.e(f"s_and_b32 s{S_I3}, s{S_IDX}, 3")
    k.e(f"s_add_u32 s{S_RB}, s{S_RB}, s{S_I3}")
    k.e(f"s_lshr_b32 s{S_I2}, s{S_IDX}, 2")
    k.e(f"s_lshl_b32 s47, s{S_RB}, 2")
    k.e(f"s_add_u32 s47, s47, s{S_WAVE}")
    k.e(f"s_mul_i32 s{S_XS}, s47, {64*1152}")
    k.e(f"s_lshl_b32 s{S_PX}, s{S_I3}, 1")
    k.e(f"s_add_u32 s{S_PX}, s{S_PX}, s{S_I2}")
    if not P["rot"]:
        k.e(f"s_mov_b32 s{S_PX}, 0")
    k.e(f"s_sub_u32 s47, s{S_PX}, 9")
    k.e(f"s_cmp_ge_u32 s{S_PX}, 9")
    k.e(f"s_cselect_b32 s{S_PX}, s47, s{S_PX}")
    k.e(f"s_mov_b32 s{S_PW}, s{S_PX}")
    k.e(f"s_lshl_b32 s47, s{S_PX}, 7")
    k.e(f"s_add_u32 s{S_XS}, s{S_XS}, s47")
    for i in range(1, 4):
        k.e(f"s_add_u32 s{S_XS+i}, s{S_XS}, {i*16*1152}")
    k.e(f"s_lshl_b32 s{S_XW}, s{S_WAVE}, 14")
    k.e(f"s_add_u32 s{S_XW}, s{S_XW}, {XD}")
    k.e("v_lshrrev_b32 v4, 1, v2")
    k.e("v_xor_b32 v5, v3, v4")
    k.e(f"v_lshl_add_u32 v{V_XWE}, v5, 4, v7")
    k.e("v_xor_b32 v6, 4, v5")
    k.e(f"v_lshl_add_u32 v{V_XWO}, v6, 4, v7")
    k.e(f"v_add_u32 v{V_XWO}, {8*1152}, v{V_XWO}")
    if P["ctouch"]:
        k.e("s_getpc_b64 s[60:61]")
        k.label("L_PC")
        k.e(f"s_sub_u32 s60, s60, L_PC-{NAME}_kernel")
        k.e("s_subb_u32 s61, s61, 0")
        k.e(f"s_mov_b32 s62, L_CODE_END-{NAME}_kernel")
        k.e("s_mov_b32 s63, 0x00020000")
        k.e("s_lshr_b32 s46, s2, 3")
        k.e(f"s_lshl_b32 s47, s{S_WAVE}, 5")
        k.e("s_add_u32 s46, s46, s47")
        k.e("s_lshl_b32 s46, s46, 10")
        k.e("v_and_b32 v4, 7, v0")
        k.e("v_lshlrev_b32 v4, 7, v4")
        k.vmop("buffer_load_dword v1, v4, s[60:63], s46 offen", ("ctouch",))
    k.e("s_waitcnt lgkmcnt(0)")
    srd(k, 8, 4, 5, 2048 * 1152)
    for p in range(8):
        x_dma_g(k, 0, p)
    k.e(f"s_cmp_ge_u32 s{S_IDX}, 24")
    k.e("s_cbranch_scc1 L_QKV")


def common2(k, wr=True):
    srd(k, 16, 58, 59, WS_BYTES)
    if wr:
        common2w(k)
    common2r(k)


def common2w(k):
    k.e("v_lshrrev_b32 v2, 3, v0")
    k.e("v_and_b32 v3, 7, v0")
    k.e("v_lshrrev_b32 v4, 1, v2")
    k.e("v_xor_b32 v5, v3, v4")
    k.e("v_xor_b32 v6, 4, v5")
    k.e("v_lshlrev_b32 v7, 7, v2")
    k.e(f"v_add_u32 v7, s{S_XW}, v7")
    k.e(f"v_lshl_add_u32 v{V_XWE}, v5, 4, v7")
    k.e(f"v_lshl_add_u32 v{V_XWO}, v6, 4, v7")


def common2r(k):
    k.e("v_and_b32 v2, 31, v0")
    k.e("v_lshrrev_b32 v3, 5, v0")
    k.e("v_bfe_u32 v4, v2, 1, 3")
    k.e("v_lshlrev_b32 v5, 7, v2")
    k.e(f"v_add_u32 v5, s{S_XW}, v5")
    for ksl in range(4):
        k.e(f"v_add_u32 v6, {2*ksl}, v3")
        k.e("v_xor_b32 v6, v6, v4")
        k.e(f"v_lshl_add_u32 v{V_XR+ksl}, v6, 4, v5")
    k.e(f"v_lshlrev_b32 v{V_L16}, 4, v0")


def nonce_create(k):
    srd(k, 20, 30, 31, 256)
    k.e(f"s_or_b32 s46, s2, s{S_WAVE}")
    k.e("s_cmp_lg_u32 s46, 0")
    k.e("s_cbranch_scc1 L_NONCE_SKIP")
    k.e("s_memrealtime s[46:47]")
    k.e("s_waitcnt lgkmcnt(0)")
    k.e("s_or_b32 s46, s46, 1")
    k.e("v_mov_b32 v4, s46")
    k.e("v_mov_b32 v5, 0")
    k.e("s_mov_b64 exec, 1")
    k.e("buffer_store_dword v4, v5, s[20:23], 0 offen sc0 sc1")
    k.e("s_mov_b64 exec, -1")
    k.label("L_NONCE_SKIP")


def nonce_issue(k, vbase):
    srd(k, 20, 30, 31, 256)
    k.e(f"v_mov_b32 v{vbase+1}, 0")
    k.vmop(f"buffer_load_dword v{vbase}, v{vbase+1}, s[20:23], 0 offen sc0 sc1", ("nonce",))


def nonce_get(k, vbase):
    lbl = f"L_NG{k.n}"
    k.need(vm=("nonce",))
    k.e(f"s_mov_b32 s69, {SPIN_MAX}")
    k.label(lbl)
    k.e(f"v_readfirstlane_b32 s{S_NONCE}, v{vbase}")
    k.e("s_nop 3")
    k.e(f"s_cmp_lg_u32 s{S_NONCE}, 0")
    k.e(f"s_cbranch_scc1 {lbl}_D")
    k.e("s_sub_u32 s69, s69, 1")
    k.e("s_cmp_eq_u32 s69, 0")
    k.e(f"s_cbranch_scc1 {lbl}_D")
    k.e("s_sleep 4")
    k.e(f"buffer_load_dword v{vbase}, v{vbase+1}, s[20:23], 0 offen sc0 sc1")
    k.e("s_waitcnt vmcnt(0)")
    k.e(f"s_branch {lbl}")
    k.label(lbl + "_D")


def publish(k, s_flag_off, vt, tag):
    lbl = f"L_PUB{k.n}"
    k.need(vm=tag)
    k.e("s_barrier")
    k.e(f"s_cmp_lg_u32 s{S_WAVE}, 0")
    k.e(f"s_cbranch_scc1 {lbl}")
    k.e(f"v_mov_b32 v{vt}, s{S_NONCE}")
    k.e(f"v_mov_b32 v{vt+1}, 0")
    k.e("s_mov_b64 exec, 1")
    k.e(f"buffer_store_dword v{vt}, v{vt+1}, s[16:19], s{s_flag_off} offen sc0 sc1")
    k.e("s_mov_b64 exec, -1")
    k.label(lbl)


def poll(k, s_line_off, nflags, vt):
    lbl = f"L_POLL{k.n}"
    k.e(f"v_lshlrev_b32 v{vt}, 2, v0")
    k.e(f"s_mov_b32 s69, {SPIN_MAX}")
    k.e(f"s_mov_b64 exec, {(1 << nflags) - 1}")
    k.label(lbl)
    k.e(f"buffer_load_dword v{vt+1}, v{vt}, s[16:19], s{s_line_off} offen sc0 sc1")
    k.e("s_waitcnt vmcnt(0)")
    k.e(f"v_cmp_ne_u32 vcc, s{S_NONCE}, v{vt+1}")
    k.e("s_sub_u32 s69, s69, 1")
    k.e("s_nop 4")
    k.e(f"s_cbranch_vccz {lbl}_D")
    k.e("s_cmp_eq_u32 s69, 0")
    k.e(f"s_cbranch_scc1 {lbl}_D")
    k.e("s_sleep 2")
    k.e(f"s_branch {lbl}")
    k.label(lbl + "_D")
    k.e("s_mov_b64 exec, -1")
    k.vm_done = len(k.vm)


def flag_store(k, s_off, imm, vt):
    k.e(f"v_mov_b32 v{vt}, s{S_NONCE}")
    k.e(f"v_mov_b32 v{vt+1}, 0")
    k.e("s_mov_b64 exec, 1")
    k.vmop(f"buffer_store_dword v{vt}, v{vt+1}, s[16:19], s{s_off} offen offset:{imm} sc0 sc1", ("flag",))
    k.e("s_mov_b64 exec, -1")


def flag_load(k, s_line_off, imm, vt, tag):
    k.e(f"v_and_b32 v{vt}, 15, v0")
    k.e(f"v_lshlrev_b32 v{vt}, 2, v{vt}")
    k.vmop(f"buffer_load_dword v{vt+1}, v{vt}, s[16:19], s{s_line_off} offen offset:{imm} sc0 sc1", tag)


def flag_check(k, s_line_off, imm, nflags, vt, tag):
    lbl = f"L_FC{k.n}"
    k.need(vm=tag)
    k.e(f"s_mov_b32 s69, {SPIN_MAX}")
    k.e(f"s_mov_b64 exec, {(1 << nflags) - 1}")
    k.label(lbl)
    k.e(f"v_cmp_ne_u32 vcc, s{S_NONCE}, v{vt+1}")
    k.e("s_sub_u32 s69, s69, 1")
    k.e("s_nop 4")
    k.e(f"s_cbranch_vccz {lbl}_D")
    k.e("s_cmp_eq_u32 s69, 0")
    k.e(f"s_cbranch_scc1 {lbl}_D")
    k.e("s_sleep 2")
    k.e(f"buffer_load_dword v{vt+1}, v{vt}, s[16:19], s{s_line_off} offen offset:{imm} sc0 sc1")
    k.e("s_waitcnt vmcnt(0)")
    k.e(f"s_branch {lbl}")
    k.label(lbl + "_D")
    k.e("s_mov_b64 exec, -1")
    k.e("s_nop 3")


def phaseA_mlp(k, P, B):
    DELTA, D, R, NB, RA = P["delta"], P["D"], P["R"], 4, P["ra"]
    BI = P["bi"]
    V_AF = 8
    V_WA, V_WB2 = 24, 40
    V_WD = 28
    V_T = 44
    V_XF = 64
    V_ACC = 96

    def xf(ks, rt):
        if ks < 32:
            return ar((ks * 2 + rt) * 4)
        return vr(V_XF + ((ks - 32) * 2 + rt) * 4)

    def xq(s, p):
        return xf(4 * s + p // 2, p % 2)

    def acc(slot, rt):
        return V_ACC + (slot * 2 + rt) * 16

    k.c("---------------- phase A: MLP path ----------------")
    def x_dma(s, p):
        x_dma_g(k, s, p)

    k.e(f"s_mul_i32 s{S_FG}, s{S_FQ}, 6")
    k.e(f"s_add_u32 s{S_FG}, s{S_FG}, s{S_I2}")
    k.e(f"s_cmp_ge_u32 s{S_WAVE}, 2")
    k.e("s_cselect_b32 s12, s26, s24")
    k.e("s_cselect_b32 s13, s27, s25")
    k.e(f"s_mov_b32 s14, {576*9216}")
    k.e("s_mov_b32 s15, 0x00020000")
    k.e("v_lshrrev_b32 v2, 3, v0")
    k.e("v_and_b32 v3, 7, v0")
    k.e("v_bfe_u32 v4, v2, 1, 1")
    k.e(f"s_and_b32 s46, s{S_WAVE}, 2")
    k.e("v_or_b32 v4, s46, v4")
    k.e("v_lshlrev_b32 v4, 1, v4")
    k.e("v_xor_b32 v3, v3, v4")
    k.e("s_mov_b32 s47, 9216")
    k.e("v_mul_lo_u32 v2, v2, s47")
    k.e(f"v_lshl_add_u32 v{V_WD}, v3, 4, v2")
    k.e(f"s_and_b32 s46, s{S_WAVE}, 1")
    k.e(f"s_mul_i32 s{S_WBASE}, s46, {8*9216}")
    k.e(f"s_lshl_b32 s47, s{S_FG}, 7")
    k.e(f"s_add_u32 s{S_WBASE}, s{S_WBASE}, s47")
    k.e(f"s_mul_i32 s47, s{S_PW}, {64*9216}")
    k.e(f"s_add_u32 s{S_WBASE}, s{S_WBASE}, s47")
    k.e(f"s_lshl_b32 s{S_M0W}, s{S_WAVE}, 10")

    NU = 108
    tof = {}
    for j in range(4):
        for u in range(NU):
            tof[(j, u)] = -(-u * (36 + j * DELTA) // 36) if (u < 36 and P["spread"]) else u + j * DELTA
    last_use = {u: max(tof[(j, u)] for j in range(4)) for u in range(NU)}
    slot_of = {}
    slot_busy = [-1] * 40
    last_bar = [-1]
    x_done = [10 ** 9]
    deadline = [10 ** 9] * 40

    def b_slots(st):
        lo = B.LB + B.pos(st) * B.SL
        return list(range(lo // 4096, (lo + B.SL) // 4096))
    for st in range(B.DW):
        for x in b_slots(st):
            deadline[x] = min(deadline[x], P["tbw"] + P["tbs"] * st)
    for st in range(B.DW, B.DW + B.BI):
        for x in b_slots(st):
            deadline[x] = min(deadline[x], 116)

    def try_alloc(u):
        for sl in sorted(range(32), key=lambda x: (deadline[x], x)):
            if sl >= 24 and not (x_done[0] < last_bar[0]):
                continue
            if last_use[u] >= deadline[sl]:
                continue
            if slot_busy[sl] < last_bar[0] or slot_busy[sl] == -1:
                slot_of[u] = sl
                slot_busy[sl] = last_use[u]
                return True
        return False

    def dma_w(u):
        c, ks = divmod(u, 36)
        def f():
            if u > 0 and u % 4 == 0:
                advance(k, S_PW, [(S_WBASE, 64 * 9216)])
            k.e(f"s_add_u32 m0, s{S_M0W}, {slot_of[u]*4096}")
            k.e(f"s_add_u32 s{S_T1}, s{S_WBASE}, {(ks%4)*16*9216 + c*24*128}")
            k.vmop(f"buffer_load_dwordx4 v{V_WD}, s[12:15], s{S_T1} offen lds", ("w", u))
        return f

    D0 = min(P["d0"], D)
    for u in range(0, 4):
        assert try_alloc(u)
        dma_w(u)()
    for p in range(8):
        x_dma(1, p)
    for u in range(4, D0):
        assert try_alloc(u)
        dma_w(u)()
    next_w = D0
    nonce_create(k)
    common2(k, wr=False)
    k.e("v_lshrrev_b32 v2, 4, v0")
    k.e("v_bfe_u32 v3, v0, 2, 2")
    k.e("v_and_b32 v4, 3, v0")
    k.e("v_lshrrev_b32 v5, 1, v4")
    k.e("v_lshrrev_b32 v6, 1, v2")
    k.e("v_lshl_add_u32 v6, v6, 3, v3")
    k.e("v_lshlrev_b32 v6, 7, v6")
    k.e("v_lshl_add_u32 v6, v5, 11, v6")
    k.e("v_and_b32 v7, 1, v4")
    k.e("v_lshl_add_u32 v6, v7, 4, v6")
    k.e("v_and_b32 v7, 1, v2")
    k.e("v_lshl_add_u32 v6, v7, 3, v6")
    k.e("v_lshrrev_b32 v7, 1, v3")
    k.e("v_lshl_or_b32 v7, v5, 1, v7")
    for j in range(4):
        k.e(f"v_xor_b32 v5, {j}, v7")
        k.e(f"v_lshl_add_u32 v{V_WA+j}, v5, 5, v6")
        k.e(f"v_add_u32 v{V_WB2+j}, 0x10000, v{V_WA+j}")
    k.e(f"s_lshl_b32 s46, s{S_RB}, 3")
    k.e(f"s_lshl_b32 s47, s{S_WAVE}, 1")
    k.e("s_add_u32 s46, s46, s47")
    k.e(f"s_mul_i32 s46, s46, {NKB}")
    k.e(f"s_mul_i32 s47, s{S_FQ}, 72")
    k.e("s_add_u32 s46, s46, s47")
    k.e(f"s_lshl_b32 s47, s{S_I2}, 2")
    k.e("s_add_u32 s46, s46, s47")
    k.e("s_add_u32 s46, s46, 36")
    k.e(f"s_lshl_b32 s{S_STBASE}, s46, 10")

    def aread(i, j, u, half):
        off = slot_of[u] * 4096 + half * 512
        base = V_WA + j
        if off >= 65536:
            off -= 65536
            base = V_WB2 + j
        d = V_AF + (i % NB) * 4 + half * 2
        k.lgop(f"ds_read_b64_tr_b16 {vr(d,2)}, v{base} offset:{off}", ("af", i, half))

    def epilogue(n):
        c, j = divmod(n, 4)
        slot = n % 5
        ops = []
        for rt in range(2):
            a = acc(slot, rt)
            tb = V_T
            pk = V_T + 8 + rt * 4
            gi = [a + 0, a + 1, a + 2, a + 3, a + 8, a + 9, a + 10, a + 11]
            ui = [a + 4, a + 5, a + 6, a + 7, a + 12, a + 13, a + 14, a + 15]
            for h in range(8):
                ops.append(f"v_mul_f32 v{tb+h}, 0x{f2u(-LOG2E):08x}, v{gi[h]}")
            for h in range(8):
                ops.append(f"v_exp_f32 v{tb+h}, v{tb+h}")
            for h in range(8):
                ops.append(f"v_add_f32 v{tb+h}, 1.0, v{tb+h}")
            for h in range(8):
                ops.append(f"v_rcp_f32 v{tb+h}, v{tb+h}")
            for h in range(8):
                ops.append(f"v_mul_f32 v{tb+h}, v{tb+h}, v{ui[h]}")
            for h in range(4):
                ops.append(f"v_cvt_pk_bf16_f32 v{pk+h}, v{tb+2*h}, v{tb+2*h+1}")
            off = (rt * NKB + 24 * c + j) * 1024
            ops.append(("st", f"s_add_u32 s{S_T2}, s{S_STBASE}, {off}",
                        f"buffer_store_dwordx4 {vr(pk)}, v{V_L16}, s[16:19], s{S_T2} offen sc0 sc1"))
        return ops

    T_F0, T_F1 = 60, 96
    T_TOUCH = P["ttouch"]
    sched = {}
    for j in range(4):
        for u in range(NU):
            if u < 36 and P["spread"]:
                t = -(-u * (36 + j * DELTA) // 36)
            else:
                t = u + j * DELTA
            sched.setdefault(t, []).append((t, j, u))
    pairs = []
    for t in range(NU + 3 * DELTA):
        pairs.extend(sched[t])
    first_of_step, npairs_in_step = {}, {}
    for i, (t, j, u) in enumerate(pairs):
        first_of_step.setdefault(t, i)
        npairs_in_step[t] = npairs_in_step.get(t, 0) + 1

    S = Sched(k, P["vrate"], P["vcap"])
    visible = -1
    issued_reads = 0
    last_mfma_n = {}
    GB = P["gb"]

    def ready(n, force):
        gap = k.n - last_mfma_n[n]
        if gap >= 13:
            return True
        if force:
            k.e(f"s_nop {min(15, 13 - gap)}")
            return True
        return False
    S.ready = ready

    def add_epi(n_):
        for o in epilogue(n_):
            if isinstance(o, tuple):
                S.epi.append((n_, [("e", o[1], None), ("vm", o[2], ("st", n_))]))
            else:
                S.epi.append((n_, [("e", o, None)]))

    def x_convert(s):
        def wx():
            S.force_v(lambda: k.vm.count(("x", s)) == 8)
            k.need(vm=("x", s))
        S.add_f(wx, atomic=True)
        for ksl in range(4):
            for rt in range(2):
                S.add_f(lambda ksl=ksl, rt=rt: k.lgop(
                    f"ds_read_b128 {xf(4*s+ksl, rt)}, v{V_XR+ksl} offset:{(s&1)*8192 + rt*4096}", ("xf", 4 * s + ksl, rt)))

    def x_next(s):
        if s + 2 > 8:
            return
        def w():
            S.force_f(lambda: ("xf", 4 * s + 3, 1) in k.lg)
            k.need(lg=("xf", 4 * s + 3, 1))
        S.vq.append(([("call", w, None)], 0))
        for p in range(8):
            S.add_v(lambda p=p: x_dma(s + 2, p), 19)

    x_convert(0)
    S.drain()
    k.need(vm=("w", 0))
    k.e("s_barrier")
    visible = 0
    x_next(0)
    b_claimed = [0]

    def queue_dmas(t):
        nonlocal next_w
        lead = D if t >= 36 else min(D, P["dfirst"])
        cnt = 0
        while next_w <= t + lead and next_w < NU and cnt < 2 and try_alloc(next_w):
            S.add_v(dma_w(next_w), 19)
            next_w += 1
            cnt += 1
        while b_claimed[0] < B.DW and t >= P["tbw"] + P["tbs"] * b_claimed[0]:
            assert not S.fill
            st = b_claimed[0]
            sl = b_slots(st)
            if not all((slot_busy[x] < last_bar[0] or slot_busy[x] == -1) for x in sl):
                break
            for x in sl:
                slot_busy[x] = 10 ** 9
            for ii in range(3):
                S.add_v(lambda st=st, ii=ii: B.dma_w(st, ii), 19)
            b_claimed[0] += 1

    def issue_reads_upto(i_target):
        nonlocal issued_reads
        cnt = 0
        while issued_reads <= i_target and issued_reads < len(pairs):
            t, j, u = pairs[issued_reads]
            if u > visible:
                break
            if k.lg_out() >= 13:
                k.need(lg=k.lg[k.lg_done + 4])
            aread(issued_reads, j, u, 0)
            aread(issued_reads, j, u, 1)
            issued_reads += 1
            cnt += 2
        return cnt

    epi_start = {}
    for i, (t, j, u) in enumerate(pairs):
        if u % 36 == 35:
            epi_start[i + 2] = (u // 36) * 4 + j

    def do_barrier(t, upto):
        nonlocal visible
        if upto is None:
            S.force_v(lambda: k.vm.count(("bw", B.BI)) == 3)
            k.need(vm=("bw", B.BI))
            k.e("s_barrier")
            last_bar[0] = t
            return
        assert upto in slot_of, (t, upto, next_w, slot_busy, last_bar, deadline)
        if ("w", upto) not in k.vm:
            S.force_v(lambda: ("w", upto) in k.vm)
        k.need(vm=("w", upto))
        if t in (T_F0, T_F1):
            n_last = 3 if t == T_F0 else 7
            assert k.vm.count(("st", n_last)) == 2
            k.need(vm=("st", n_last))
        k.e("s_barrier")
        last_bar[0] = t
        visible = upto
        if t in (T_F0, T_F1):
            S.flush_open()
            assert not S.fill
            flag_store(k, 50, 64 if t == T_F0 else 32, 60)

    for i, (t, j, u) in enumerate(pairs):
        if first_of_step[t] == i:
            if t in ((0, 36, 52, 72) if "fp" not in P["exp"] else (0, 12, 24, 36)):
                k.stamp()
            pending_bar = None
            bi = BI
            if t % bi == 0 and t < 116:
                pending_bar = (t, min(t + bi, NU - 1))
            if t == 116:
                pending_bar = (t, None)
            if pending_bar and visible < t and t < NU:
                do_barrier(*pending_bar)
                pending_bar = None
            if not pending_bar:
                queue_dmas(t)
            if (t + P["xlead"]) % 4 == 0 and 1 <= (t + P["xlead"]) // 4 <= 8:
                s = (t + P["xlead"]) // 4
                x_convert(s)
                if s == 8:
                    x_done[0] = 35
            if (t + P["xlead"] - 1) % 4 == 0 and 1 <= (t + P["xlead"] - 1) // 4 <= 8:
                x_next((t + P["xlead"] - 1) // 4)
            if t == 38:
                S.add_v(lambda: nonce_issue(k, 60), 10)
            if t == 62:
                for th in B.setup_thunks(2):
                    S.add_f(th)
            if t == T_F0 - 3:
                S.add_f(lambda: nonce_get(k, 60), atomic=True)
                def fl():
                    k.e(f"s_lshl_b32 s48, s{S_RB}, 2")
                    k.e(f"s_add_u32 s48, s48, s{S_FQ}")
                    k.e("s_lshl_b32 s48, s48, 7")
                    k.e(f"s_add_u32 s48, s48, {FLAG_OFF}")
                    k.e(f"s_lshl_b32 s46, s{S_I2}, 2")
                    k.e("s_add_u32 s50, s46, s48")
                S.add_f(fl)
            if t == 90:
                assert not S.fill
                S.add_v(lambda: flag_load(k, 48, 64, 62, ("fl0",)), 10)
            if t == P["tb0"]:
                S.force_v(lambda: ("fl0",) in k.vm)
                flag_check(k, 48, 64, 6, 62, ("fl0",))
                for st in range(B.DB):
                    S.add_v(lambda st=st: B.load_b(st, 0), 19)
                    S.add_v(lambda st=st: B.load_b(st, 1), 19)
        if i in epi_start:
            add_epi(epi_start[i])
        c, ks = divmod(u, 36)
        n = c * 4 + j
        slot = n % 5
        if ks == 0 and n >= 5:
            assert all(v != n - 5 or key <= i for key, v in epi_start.items())
            if S.epi and S.epi[0][0] <= n - 5:
                S.force_epi(n - 5)
        af = vr(V_AF + (i % NB) * 4)
        issue_reads_upto(i)
        assert issued_reads > i
        needs_lg = [("af", i, 1)]
        if c == 0 and j == 0:
            if ("xf", ks, 1) not in k.lg:
                S.force_f(lambda: ("xf", ks, 1) in k.lg)
            needs_lg += [("xf", ks, 0), ("xf", ks, 1)]
        k.need(lg=needs_lg)
        for rt in range(2):
            a = acc(slot, rt)
            cin = "0" if ks == 0 else vr(a, 16)
            k.e(f"v_mfma_f32_32x32x16_bf16 {vr(a,16)}, {af}, {xf(ks,rt)}, {cin}")
            last_mfma_n[n] = k.n
            budget = GB
            if rt == 0 and pending_bar:
                do_barrier(*pending_bar)
                pending_bar = None
                queue_dmas(t)
                budget -= 3
            if rt == 0:
                budget -= issue_reads_upto(i + RA)
            else:
                budget -= 1
            S.gap(budget, GB)
    S.flush_open()
    S.force_f(lambda: not S.fill)
    assert b_claimed[0] == B.DW, b_claimed
    k.stamp()
    for i in sorted(epi_start):
        if i >= len(pairs):
            add_epi(epi_start[i])
    S.force_epi(9)
    F2_ST = P["f2st"]

    def pre_bar(st):
        if st == F2_ST:
            S.force_epi(11)
            k.need(vm=("st", 11))

    def post_bar(st):
        if st == F2_ST:
            S.flush_open()
            flag_store(k, 50, 0, 60)
        if st == 12 - B.DB - 2:
            S.add_v(lambda: flag_load(k, 48, 32, 2, ("fl1",)), 10)
        if st == 12 - B.DB:
            S.force_v(lambda: ("fl1",) in k.vm)
            flag_check(k, 48, 32, 6, 2, ("fl1",))
        if st == 24 - B.DB - 2:
            S.add_v(lambda: flag_load(k, 48, 0, 2, ("fl2",)), 10)
        if st == 24 - B.DB:
            S.force_v(lambda: ("fl2",) in k.vm)
            flag_check(k, 48, 0, 6, 2, ("fl2",))
            k.stamp()

    B.main(B.BI, S=S, pre_bar=pre_bar, post_bar=post_bar)


def phaseA_qkv(k, P):
    k.label("L_QKV")
    k.c("---------------- phase A: QKV + attention path ----------------")
    NST = 3
    WST = 28672
    HB = NST * WST
    GB = HB + NST * 2048
    assert GB <= XD
    PITCH = 448
    V_WD = 40
    V_TA = 47
    V_HA = 54
    V_HB = 57
    V_GW = 59
    V_HW = 60
    V_HV = 63
    V_GA = 64
    V_AF = 68
    V_TA2 = 84
    V_HA2 = 91
    V_XF = 96
    V_GF = 224
    V_HAF = 232
    V_HBF = 244
    NXS = 4

    def xfr(s, ksl, rt):
        return V_XF + ((s % NXS) * 8 + ksl * 2 + rt) * 4

    def xq(s, p):
        return vr(V_XF + ((s % NXS) * 8 + p) * 4)

    k.e(f"s_lshl_b32 s{S_FG}, s{S_FQ}, 1")
    k.e(f"s_add_u32 s{S_FG}, s{S_FG}, s{S_I2}")
    k.e(f"s_sub_u32 s{S_FG}, s{S_FG}, 6")
    srd(k, 12, 6, 7, 576 * 3456)
    k.e(f"s_mul_i32 s46, s{S_WAVE}, {7*64}")
    k.e(f"s_mul_i32 s47, s{S_FG}, 144")
    k.e("s_mov_b32 s48, 3456")
    k.e(f"s_mul_i32 s{S_M0W}, s{S_WAVE}, {7*1024}")
    k.e(f"s_mul_i32 s{S_WBASE}, s{S_PW}, {64*3456}")
    k.e(f"s_lshl_b32 s{S_STBASE}, s{S_PW}, 7")

    def dma_w(s, ii):
        st = s % NST
        def f():
            if ii == 0 and s > 0:
                advance(k, S_PW, [(S_WBASE, 64 * 3456), (S_STBASE, 128)])
            k.e(f"s_add_u32 m0, s{S_M0W}, {st*WST + ii*1024}")
            k.e("s_nop 0")
            k.vmop(f"buffer_load_dwordx4 v{V_WD+ii}, s[12:15], s{S_WBASE} offen lds", ("w", s))
        return f

    for ii in range(7):
        k.e(f"v_add_u32 v2, s46, v0")
        k.e(f"v_add_u32 v2, {64*ii}, v2")
        k.e("v_mul_u32_u24 v3, 2341, v2")
        k.e("v_lshrrev_b32 v3, 16, v3")
        k.e("v_mul_u32_u24 v4, 28, v3")
        k.e("v_sub_u32 v4, v2, v4")
        k.e("v_mul_u32_u24 v5, 57, v4")
        k.e("v_lshrrev_b32 v5, 9, v5")
        k.e("v_mul_u32_u24 v6, 9, v5")
        k.e("v_sub_u32 v6, v4, v6")
        k.e("v_mul_lo_u32 v7, v3, s48")
        k.e("v_mul_u32_u24 v5, 1152, v5")
        k.e("v_add3_u32 v7, v7, v5, s47")
        k.e(f"v_lshl_add_u32 v{V_WD+ii}, v6, 4, v7")
        k.e("v_cmp_eq_u32 vcc, 27, v4")
        k.e("v_mov_b32 v4, 0x7ff00000")
        k.e("s_nop 0")
        k.e(f"v_cndmask_b32 v{V_WD+ii}, v{V_WD+ii}, v4, vcc")
        dma_w(0, ii)()
    k.e(f"s_and_b32 s46, s{S_WAVE}, 1")
    k.e("v_lshrrev_b32 v2, 3, v0")
    k.e("v_and_b32 v3, 7, v0")
    k.e("v_lshrrev_b32 v4, 1, v2")
    k.e("s_lshl_b32 s47, s46, 2")
    k.e("v_or_b32 v4, s47, v4")
    k.e("v_xor_b32 v3, v3, v4")
    k.e("v_mul_u32_u24 v7, 1152, v2")
    k.e("v_lshl_add_u32 v7, v3, 4, v7")
    k.e(f"s_lshl_b32 s47, s{S_RB}, 8")
    k.e("s_lshl_b32 s48, s46, 3")
    k.e("s_add_u32 s47, s47, s48")
    k.e("s_sub_u32 s47, s47, 16")
    k.e("s_mul_i32 s47, s47, 1152")
    k.e(f"v_add_u32 v{V_HV}, s47, v7")
    k.e("s_lshl_b32 s49, s46, 10")
    k.e(f"s_add_u32 s49, s49, {HB}")

    def dma_h(s):
        st = s % NST
        def f():
            k.e(f"s_add_u32 m0, s49, {st*2048}")
            k.e("s_nop 0")
            k.vmop(f"buffer_load_dwordx4 v{V_HV}, s[8:11], s{S_STBASE} offen lds", ("w", s))
        return f

    k.e(f"v_lshlrev_b32 v{V_L16}, 4, v0")
    dma_h(0)()
    for p in range(8):
        x_dma_g(k, 1, p)
    for ii in range(7):
        dma_w(1, ii)()
    dma_h(1)()
    common2(k, wr=False)
    k.e("v_lshrrev_b32 v2, 4, v0")
    k.e("v_bfe_u32 v3, v0, 2, 2")
    k.e("v_and_b32 v4, 3, v0")
    k.e("v_lshrrev_b32 v5, 1, v2")
    k.e("v_lshl_add_u32 v5, v5, 3, v3")
    k.e(f"v_mul_u32_u24 v5, {PITCH}, v5")
    k.e("v_and_b32 v6, 1, v2")
    k.e("v_lshl_add_u32 v5, v6, 5, v5")
    k.e(f"v_lshl_add_u32 v{V_TA}, v4, 3, v5")
    k.e(f"v_add_u32 v{V_TA2}, {2*WST}, v{V_TA}")
    k.e("v_lshl_add_u32 v5, v2, 3, v3")
    k.e(f"v_mul_u32_u24 v5, {PITCH}, v5")
    k.e("v_lshl_add_u32 v5, v4, 3, v5")
    k.e("v_and_b32 v10, 15, v0")
    k.e("v_mul_u32_u24 v10, 592, v10")
    k.e("v_lshl_add_u32 v10, v2, 4, v10")
    for i in range(3):
        k.e(f"s_mul_i32 s46, s{S_WAVE}, 3")
        k.e(f"s_add_u32 s46, s46, {i}")
        k.e("s_min_u32 s46, s46, 8")
        k.e("s_lshl_b32 s47, s46, 5")
        k.e("s_add_u32 s47, s47, 144")
        k.e(f"v_add_u32 v{V_HA+i}, s47, v5")
        k.e(f"v_add_u32 v{V_HA2+i}, {2*WST}, v{V_HA+i}")
        k.e("s_lshl_b32 s47, s46, 6")
        k.e(f"v_add_u32 v{V_HW+i}, s47, v10")
    k.e("v_and_b32 v5, 15, v0")
    k.e("v_bfe_u32 v6, v5, 1, 3")
    for k32 in range(2):
        k.e(f"v_add_u32 v7, {4*k32}, v2")
        k.e("v_xor_b32 v7, v7, v6")
        k.e("v_lshlrev_b32 v7, 4, v7")
        k.e("v_lshl_add_u32 v7, v5, 7, v7")
        k.e(f"v_add_u32 v{V_HB+k32}, {HB}, v7")

    def aread(i, s, ksl, T, half):
        st = s % NST
        off = (ksl * 16 + half * 4) * PITCH + (st % 2) * WST + 64 * T
        base = (V_TA2 if st >= 2 else V_TA)
        d = V_AF + (i % 4) * 4 + half * 2
        k.lgop(f"ds_read_b64_tr_b16 {vr(d,2)}, v{base} offset:{off}", ("af", i, half))

    def haread(s, k32, i, half):
        st = s % NST
        off = (k32 * 32 + half * 4) * PITCH + (st % 2) * WST
        base = (V_HA2 if st >= 2 else V_HA) + i
        d = V_HAF + i * 4 + half * 2
        k.lgop(f"ds_read_b64_tr_b16 {vr(d,2)}, v{base} offset:{off}", ("haf", s, k32, i, half))

    def accq(T, rt):
        return (T * 2 + rt) * 16
    A_H = 224

    S = Sched(k, P["q_rate"], 130)
    GB = P["gb"]

    def x_convert(s):
        def wx():
            S.force_v(lambda: k.vm.count(("x", s)) == 8)
            k.need(vm=("x", s))
        S.add_f(wx, atomic=True)
        for ksl in range(4):
            for rt in range(2):
                S.add_f(lambda ksl=ksl, rt=rt: k.lgop(
                    f"ds_read_b128 {vr(xfr(s, ksl, rt))}, v{V_XR+ksl} offset:{(s&1)*8192 + rt*4096}", ("xf", 4 * s + ksl, rt)))

    def guard():
        if k.lg_out() >= 13:
            k.need(lg=k.lg[k.lg_done + 4])

    def queue_stage(sw, sx):
        if sx is not None and sx <= 8:
            def w():
                k.need(lg=("xf", 4 * (sx - 2) + 3, 1))
            S.vq.append(([("call", w, None)], 0))
        for ii in range(8):
            if sx is not None and sx <= 8:
                S.add_v(lambda p=ii: x_dma_g(k, sx, p), 19)
            if sw is not None and sw <= 8:
                S.add_v(dma_w(sw, ii) if ii < 7 else dma_h(sw), 33 if ii < 7 else 19)

    x_convert(0)
    S.drain()
    k.need(vm=("w", 0))
    k.e("s_barrier")

    pairs = [(s, ksl, T) for s in range(9) for ksl in range(4) for T in range(7)]
    issued = 0
    visible = 0

    def issue_upto(it):
        nonlocal issued
        cnt = 0
        while issued <= it and issued < len(pairs):
            s, ksl, T = pairs[issued]
            if s > visible:
                break
            guard()
            aread(issued, s, ksl, T, 0)
            aread(issued, s, ksl, T, 1)
            issued += 1
            cnt += 2
        return cnt

    state = {"t0": False}

    def touches():
        def t0():
            k.e("v_mul_u32_u24 v2, 7282, v0")
            k.e("v_lshrrev_b32 v2, 16, v2")
            k.e("v_mul_u32_u24 v3, 9, v2")
            k.e("v_sub_u32 v3, v0, v3")
            k.e("v_min_u32 v2, 5, v2")
            k.e("v_mul_u32_u24 v2, 1152, v2")
            k.e("v_lshl_add_u32 v2, v3, 7, v2")
            srd(k, 60, 52, 53, 4608 * 1152)
            k.e(f"s_sub_u32 s48, s{S_IDX}, 24")
            k.e("s_lshl_b32 s48, s48, 2")
            k.e(f"s_add_u32 s48, s48, s{S_WAVE}")
            k.e(f"s_lshr_b32 s46, s{S_RB}, 2")
            k.e("s_lshl_b32 s46, s46, 5")
            k.e("s_add_u32 s48, s48, s46")
            k.e(f"s_lshl_b32 s47, s{S_FQ}, 6")
            k.e("s_add_u32 s48, s48, s47")
            k.e(f"s_mul_i32 s50, s48, {6*1152}")
        S.add_f(t0)
        S.add_f(lambda: state.update(t0=True), atomic=True)
        return

    def touches2():
        for c in range(3):
            def tc(c=c):
                k.e(f"s_add_u32 s47, s50, {c*1536*1152}")
                k.vmop("buffer_load_dword v1, v2, s[60:63], s47 offen", ("touch",))
            S.add_v(tc, 127)
        def tw():
            srd(k, 60, 56, 57, 576 * 1152)
            k.vmop("buffer_load_dword v1, v2, s[60:63], s50 offen", ("touch",))
        S.add_v(tw, 127)

    for i, (s, ksl, T) in enumerate(pairs):
        ks = 4 * s + ksl
        pend = False
        if ksl == 0 and T == 0 and s in (0, 2):
            k.stamp()
        if ksl == 3 and T == 0 and s + 1 <= 8:
            pend = True
        pend0 = (ksl == 0 and T == 0 and s + 2 <= 8)
        if ksl == 2 and T == 3 and s + 1 <= 8:
            x_convert(s + 1)
        if P["touch2"] and s == 7 and ksl == 0 and T == 1:
            touches()
        if P["touch2"] and s == 7 and ksl == 1 and T == 1:
            S.force_f(lambda: state["t0"])
            touches2()
        if s == 6 and ksl == 1 and T == 1:
            S.add_v(lambda: nonce_issue(k, 252), 10)
        if T == 0 and ksl % 2 == 0:
            guard()
            k32 = ksl // 2
            k.lgop(f"ds_read_b128 {vr(V_HBF + k32*4)}, v{V_HB+k32} offset:{(s%NST)*2048}", ("hbf", s, k32))
        issue_upto(i)
        assert issued > i
        need = [("af", i, 1)]
        if T == 0:
            if ("xf", ks, 1) not in k.lg:
                S.force_f(lambda: ("xf", ks, 1) in k.lg)
            need += [("xf", ks, 0), ("xf", ks, 1)]
        k.need(lg=need)
        af = vr(V_AF + (i % 4) * 4)
        for rt in range(2):
            a = accq(T, rt)
            cin = "0" if ks == 0 else ar(a, 16)
            k.e(f"v_mfma_f32_32x32x16_bf16 {ar(a,16)}, {af}, {vr(xfr(s,ksl,rt))}, {cin}")
            budget = GB
            if rt == 0 and pend:
                if k.vm.count(("w", s + 1)) != 8:
                    S.force_v(lambda: k.vm.count(("w", s + 1)) == 8)
                k.need(vm=("w", s + 1))
                k.e("s_barrier")
                visible = s + 1
                budget -= 3
            if rt == 0 and pend0:
                if s >= 1:
                    k.e("s_barrier")
                    budget -= 2
                queue_stage(s + 2, s + 2)
            if rt == 0:
                budget -= issue_upto(i + 3)
                if ksl % 2 == 0 and T in (1, 2, 3):
                    guard()
                    haread(s, ksl // 2, T - 1, 0)
                    haread(s, ksl // 2, T - 1, 1)
                    budget -= 2
            else:
                budget -= 1
            S.gap(budget, GB)
        if ksl % 2 == 0 and T in (4, 5, 6):
            k32 = ksl // 2
            hi = T - 4
            k.need(lg=[("haf", s, k32, hi, 1), ("hbf", s, k32)])
            a = A_H + hi * 4
            cin = "0" if ks == 0 else ar(a, 4)
            k.e(f"v_mfma_f32_16x16x32_bf16 {ar(a,4)}, {vr(V_HAF+hi*4)}, {vr(V_HBF+k32*4)}, {cin}")
    S.drain()
    k.wait_all(vm=False)
    k.e("s_nop 7")
    k.e("s_nop 7")
    k.e("s_barrier")
    k.stamp()
    k.e("v_and_b32 v2, 31, v0")
    k.e("v_lshrrev_b32 v3, 5, v0")
    k.e(f"s_lshl_b32 s46, s{S_WAVE}, 6")
    k.e("s_add_u32 s46, s46, 16")
    k.e("v_add_u32 v4, s46, v2")
    k.e("v_mul_u32_u24 v4, 592, v4")
    k.e("v_lshl_add_u32 v8, v3, 4, v4")
    k.e("v_mul_u32_u24 v5, 144, v3")
    k.e("v_add_u32 v4, v4, v5")
    V_Q = 84
    combos = [(T, qq) for T in range(7) for qq in range(4)]
    for rt in range(2):
        for (T, qq) in combos:
            g2 = 8 * T + 2 * qq
            if g2 < 18:
                guard()
                k.lgop(f"ds_write_b128 v8, {ar(accq(T, rt) + qq*4)} offset:{rt*18944 + g2*16}", ("qw",))
    for rt in range(2):
        for g9 in range(9):
            guard()
            k.lgop(f"ds_read_b128 {vr(V_Q + rt*36 + g9*4)}, v4 offset:{rt*18944 + g9*16}", ("qr",))
    for rt in range(2):
        for (T, qq) in combos:
            g2 = 8 * T + 2 * qq
            if 18 <= g2 < 54:
                guard()
                k.lgop(f"ds_write_b128 v8, {ar(accq(T, rt) + qq*4)} offset:{rt*18944 + (g2-18)*16}", ("kvw",))
    for hi in range(3):
        guard()
        k.lgop(f"ds_write_b128 v{V_HW+hi}, {ar(A_H+hi*4)}", ("kvw",))
    sc = (18 ** -0.5) * LOG2E
    k.e(f"s_mov_b32 s48, 0x{f2u(sc):08x}")
    k.wait_all(vm=False)
    nonce_get(k, 252)
    k.e("s_barrier")
    k.stamp()
    k.e(f"s_lshl_b32 s46, s{S_RB}, 2")
    k.e(f"s_add_u32 s46, s46, s{S_WAVE}")
    k.e("s_lshl_b32 s46, s46, 6")
    k.e("v_add_u32 v5, s46, v2")
    k.e(f"v_subrev_u32 v9, {14*592}, v4")
    V_K = 160
    V_L = 232
    V_P = 10
    V_O = 40
    V_SA = 240
    k.e(f"s_mul_i32 s47, s{S_FG}, {9*512}")
    k.e(f"v_mul_u32_u24 v6, {5*512}, v3")
    k.e("v_lshl_add_u32 v7, v2, 4, s47")
    k.e(f"v_add_u32 v{V_SA}, v6, v7")
    k.e(f"v_mul_u32_u24 v6, {NKB*1024}, v3")
    k.e(f"v_add3_u32 v{V_SA+1}, v6, v7, 0")
    k.e(f"v_add_u32 v{V_SA+1}, {4*512}, v{V_SA+1}")
    k.e(f"s_lshl_b32 s46, s{S_RB}, 3")
    k.e(f"s_lshl_b32 s47, s{S_WAVE}, 1")
    k.e("s_add_u32 s46, s46, s47")
    k.e(f"s_mul_i32 s{S_STBASE}, s46, {NKB*1024}")

    def kvread(rt, w, isv, buf):
        off = rt * 18944 + (14 - 2 * w) * 592 + isv * 288
        for g in range(9):
            k.lgop(f"ds_read_b128 {vr(V_K + buf*36 + g*4)}, v9 offset:{off + g*16}", ("kv", rt, w, isv))

    for rt in range(2):
        q = V_Q + rt * 36
        kvread(rt, 0, 0, 0)
        for w in range(8):
            buf = w & 1
            k.need(lg=("kv", rt, w, 0))
            if w + 1 < 8:
                kvread(rt, w + 1, 0, buf ^ 1)
            else:
                kvread(rt, 0, 1, buf ^ 1)
            kb = V_K + buf * 36
            for d in range(9):
                for e in range(2):
                    a = q + e * 18 + 2 * d
                    b = kb + e * 18 + 2 * d
                    l = V_L + e * 4 + (d & 1) * 2
                    if d < 2:
                        k.e(f"v_pk_mul_f32 {vr(l,2)}, {vr(a,2)}, {vr(b,2)}")
                    else:
                        k.e(f"v_pk_fma_f32 {vr(l,2)}, {vr(a,2)}, {vr(b,2)}, {vr(l,2)}")
            for e in range(2):
                k.e(f"v_pk_add_f32 {vr(V_L+e*4,2)}, {vr(V_L+e*4,2)}, {vr(V_L+e*4+2,2)}")
            for e in range(2):
                k.e(f"v_add_f32 v{V_P + e*8 + w}, v{V_L+e*4}, v{V_L+e*4+1}")
        k.e(f"v_add_u32 v26, {32*rt}, v5")
        k.e("v_mov_b32 v27, 0xff7fffff")
        for w in range(1, 8):
            k.e(f"v_cmp_le_u32 vcc, {2*w}, v26")
            k.e("s_nop 1")
            for e in range(2):
                k.e(f"v_cndmask_b32 v{V_P+e*8+w}, v27, v{V_P+e*8+w}, vcc")
        for e in range(2):
            p = V_P + e * 8
            m = 28 + e
            k.e(f"v_max3_f32 v{m}, v{p}, v{p+1}, v{p+2}")
            k.e(f"v_max3_f32 v{m}, v{m}, v{p+3}, v{p+4}")
            k.e(f"v_max3_f32 v{m}, v{m}, v{p+5}, v{p+6}")
            k.e(f"v_max_f32 v{m}, v{m}, v{p+7}")
        for e in range(2):
            p = V_P + e * 8
            for w in range(8):
                k.e(f"v_sub_f32 v{p+w}, v{p+w}, v{28+e}")
            for w in range(8):
                k.e(f"v_mul_f32 v{p+w}, s48, v{p+w}")
        for e in range(2):
            p = V_P + e * 8
            for w in range(8):
                k.e(f"v_exp_f32 v{p+w}, v{p+w}")
        k.e("s_nop 0")
        for e in range(2):
            p = V_P + e * 8
            k.e(f"v_add_f32 v{28+e}, v{p}, v{p+1}")
        for w in range(2, 8):
            for e in range(2):
                p = V_P + e * 8
                k.e(f"v_add_f32 v{28+e}, v{28+e}, v{p+w}")
        for e in range(2):
            k.e(f"v_rcp_f32 v{28+e}, v{28+e}")
        k.e("s_nop 0")
        for e in range(2):
            p = V_P + e * 8
            for w in range(8):
                k.e(f"v_mul_f32 v{p+w}, v{p+w}, v{28+e}")
        for w in range(8):
            buf = (w & 1)
            k.need(lg=("kv", rt, w, 1))
            if w + 1 < 8:
                kvread(rt, w + 1, 1, buf ^ 1)
            vb = V_K + buf * 36
            for e in range(2):
                p = V_P + e * 8 + w
                pe = p & ~1
                sel = p & 1
                for d in range(9):
                    o = V_O + e * 18 + 2 * d
                    b = vb + e * 18 + 2 * d
                    if w == 0:
                        k.e(f"v_pk_mul_f32 {vr(o,2)}, {vr(pe,2)}, {vr(b,2)} op_sel:[{sel},0] op_sel_hi:[{sel},1]")
                    else:
                        k.e(f"v_pk_fma_f32 {vr(o,2)}, {vr(pe,2)}, {vr(b,2)}, {vr(o,2)} op_sel:[{sel},0,0] op_sel_hi:[{sel},1,1]")
        for a in range(9):
            d = q + a * 2
            k.e(f"v_cvt_pk_bf16_f32 v{d}, v{V_O+4*a}, v{V_O+4*a+1}")
            k.e(f"v_cvt_pk_bf16_f32 v{d+1}, v{V_O+4*a+2}, v{V_O+4*a+3}")
        k.e("v_cmp_ne_u32 vcc, 0, v3")
        k.e(f"s_add_u32 s{S_T2}, s{S_STBASE}, {rt*NKB*1024}")
        k.e("s_nop 0")
        for i in range(16):
            k.e(f"v_cndmask_b32 v{q+20+i}, v{q+i}, v{q+i+2}, vcc")
        for i in range(2):
            k.e(f"v_cndmask_b32 v{V_SA+4+2*rt+i}, v{q+16+i}, v{q+i}, vcc")
        for m in range(4):
            k.vmop(f"buffer_store_dwordx4 {vr(q+20+4*m)}, v{V_SA}, s[16:19], s{S_T2} offen offset:{m*512} sc0 sc1", ("st",))
    k.e("s_nop 1")
    k.e(f"v_permlane32_swap_b32 v{V_SA+4}, v{V_SA+6}")
    k.e(f"v_permlane32_swap_b32 v{V_SA+5}, v{V_SA+7}")
    k.e("s_nop 1")
    k.vmop(f"buffer_store_dwordx4 {vr(V_SA+4)}, v{V_SA+1}, s[16:19], s{S_STBASE} offen sc0 sc1", ("st",))
    k.stamp()


S_RT, S_NT, S_SPLIT = 65, 66, 49
S_SEG = 64
S_M0B = 38
S_PB, S_GA, S_OA, S_LATE = 36, 39, 3, 37
S_SG = 24
S_BB = 67
S_FL = 35


class PhaseB:
    LB = 49152

    def __init__(self, k, P, is_o):
        self.k, self.P, self.is_o = k, P, is_o
        self.NS = 18 if is_o else 36
        self.RS = 9
        self.DW = 8 - P["b_bi"]
        self.DB = P["b_db"]
        self.SL = 12288
        self.V_WD = [32, 33, 34]
        self.V_AE = [35, 36, 37, 38, 31, 30]
        self.V_SC = 8
        self.V_T = 10
        self.V_AF = 64
        self.NAF = 8
        self.RA = P["b_ra"]
        self.BI = P["b_bi"]
        self.V_ACC = 160
        self.NBB = self.DB + 1
        self.in_main = False

    def pos(self, st):
        return (8 - st) % 9

    def setup_thunks(self, t):
        k, P = self.k, self.P
        th = []

        def f0():
            if self.is_o:
                k.e(f"s_and_b32 s46, s{S_FG}, 1")
                k.e(f"s_lshr_b32 s{S_NT}, s{S_FG}, 1")
                k.e(f"s_mov_b32 s{S_SPLIT}, 4")
                srd(k, 60, 56, 57, 576 * 1152)
            else:
                k.e(f"s_and_b32 s46, s{S_I2}, 1")
                k.e(f"s_lshr_b32 s{S_NT}, s{S_I2}, 1")
                k.e(f"s_mov_b32 s{S_SPLIT}, s{S_FQ}")
                srd(k, 60, 52, 53, 4608 * 1152)
            k.e(f"s_lshl_b32 s{S_RT}, s{S_RB}, 1")
            k.e(f"s_add_u32 s{S_RT}, s{S_RT}, s46")
        th.append(f0)

        def f1():
            k.e(f"s_mul_i32 s{S_SEG}, s{S_WAVE}, {8*1152}")
            k.e(f"s_mul_i32 s46, s{S_NT}, 384")
            k.e(f"s_add_u32 s{S_SEG}, s{S_SEG}, s46")
            if not self.is_o:
                k.e(f"s_mul_i32 s46, s{S_SPLIT}, {384*1152}")
                k.e(f"s_add_u32 s{S_SEG}, s{S_SEG}, s46")
            k.e(f"s_mul_i32 s{S_M0B}, s{S_WAVE}, 3072")
        th.append(f1)

        def f2():
            k.e(f"s_lshl_b32 s46, s{S_RT}, 2")
            k.e(f"s_add_u32 s46, s46, s{S_WAVE}")
            k.e(f"s_mul_i32 s46, s46, {NKB}")
            if not self.is_o:
                k.e(f"s_mul_i32 s{S_BB}, s{S_SPLIT}, 72")
                k.e(f"s_add_u32 s46, s46, s{S_BB}")
                k.e("s_add_u32 s46, s46, 36")
            k.e(f"s_lshl_b32 s{S_BB}, s46, 10")
        th.append(f2)
        for i in range(3):
            def g0(i=i):
                k.e(f"v_add_u32 v{t}, {64*i}, v0")
                k.e(f"v_mul_u32_u24 v{t+1}, 2731, v{t}")
                k.e(f"v_lshrrev_b32 v{t+1}, 16, v{t+1}")
                k.e(f"v_mul_u32_u24 v{t+2}, 24, v{t+1}")
                k.e(f"v_sub_u32 v{t+2}, v{t}, v{t+2}")
            def g1(i=i):
                k.e(f"v_bfe_u32 v{t+3}, v{t+1}, 1, 1")
                k.e(f"v_lshlrev_b32 v{t+3}, 2, v{t+3}")
                k.e(f"v_xor_b32 v{t+2}, v{t+2}, v{t+3}")
                if not self.is_o:
                    k.e(f"s_mul_i32 s46, s{S_SPLIT}, 6")
                    k.e(f"v_add_u32 v{t+2}, s46, v{t+2}")
                    k.e(f"v_subrev_u32 v{t+3}, 24, v{t+2}")
                    k.e(f"v_min_u32 v{t+2}, v{t+2}, v{t+3}")
                k.e(f"v_mul_u32_u24 v{t+1}, 1152, v{t+1}")
                k.e(f"v_lshl_add_u32 v{self.V_WD[i]}, v{t+2}, 4, v{t+1}")
                if i:
                    k.e(f"v_subrev_u32 v{self.V_WD[i]}, {i*1024}, v{self.V_WD[i]}")
            th += [g0, g1]

        def h0():
            k.e(f"v_lshrrev_b32 v{t}, 4, v0")
            k.e(f"v_bfe_u32 v{t+1}, v0, 2, 2")
            k.e(f"v_and_b32 v{t+2}, 3, v0")
            k.e(f"v_lshrrev_b32 v{t+3}, 1, v{t}")
            k.e(f"v_lshl_add_u32 v{t+3}, v{t+3}, 3, v{t+1}")
        def h1():
            k.e(f"v_mul_u32_u24 v{t+3}, 384, v{t+3}")
            k.e(f"v_and_b32 v{t+4}, 1, v{t}")
            k.e(f"v_lshl_add_u32 v{t+3}, v{t+4}, 5, v{t+3}")
            k.e(f"v_lshl_add_u32 v{t+3}, v{t+2}, 3, v{t+3}")
            k.e(f"v_lshrrev_b32 v{t+4}, 1, v{t+1}")
        def h2():
            ae = self.V_AE
            k.e(f"v_lshlrev_b32 v{t+4}, 6, v{t+4}")
            k.e(f"v_add_u32 v{t+3}, {self.LB}, v{t+3}")
            k.e(f"v_add_u32 v{ae[0]}, v{t+3}, v{t+4}")
            k.e(f"v_sub_u32 v{ae[1]}, v{t+3}, v{t+4}")
            k.e(f"v_add_u32 v{ae[1]}, 64, v{ae[1]}")
        def h3():
            ae = self.V_AE
            for z in (1, 2):
                k.e(f"v_add_u32 v{ae[2*z]}, {z*4*self.SL}, v{ae[0]}")
                k.e(f"v_add_u32 v{ae[2*z+1]}, {z*4*self.SL}, v{ae[1]}")
        th += [h0, h1, h2, h3]
        return th

    def dma_w(self, st, i):
        k = self.k
        seg, r = divmod(st, 12)
        segstride = 384 if self.is_o else 1536
        if i == 0 or not self.in_main:
            k.e(f"s_add_u32 m0, s{S_M0B}, {self.LB + self.pos(st)*self.SL}")
            k.e(f"s_add_u32 s{S_T1}, s{S_SEG}, {(seg*segstride + r*32)*1152}")
        k.vmop(f"buffer_load_dwordx4 v{self.V_WD[i]}, s[60:63], s{S_T1} offen offset:{i*1024} lds", ("bw", st))

    def bfr(self, st, kh):
        return ((st % self.NBB) * 2 + kh) * 4

    def load_b(self, st, kh):
        k = self.k
        if kh == 0 or not self.in_main:
            k.e(f"s_add_u32 s{S_T0}, s{S_BB}, {st*2048}")
        k.vmop(f"buffer_load_dwordx4 {ar(self.bfr(st,kh))}, v{V_L16}, s[16:19], s{S_T0} offen offset:{kh*1024} {self.P['ldscope']}", ("b", st, kh))

    def aread(self, i, st, kh, a, half):
        k = self.k
        z, sl = divmod(self.pos(st), 4)
        off = sl * self.SL + (16 * kh + 4 * half) * 384
        be, bo = self.V_AE[2 * z], self.V_AE[2 * z + 1]
        if a % 2 == 0:
            base, off = be, off + a * 64
        else:
            base, off = bo, off + (a - 1) * 64
        assert 0 <= off < 65536
        d = self.V_AF + (i % self.NAF) * 4 + half * 2
        k.lgop(f"ds_read_b64_tr_b16 {vr(d,2)}, v{base} offset:{off}", ("baf", i, half))

    def main(self, visible, S=None, pre_bar=None, post_bar=None):
        k, P = self.k, self.P
        NS, DW, DB = self.NS, self.DW, self.DB
        if S is None:
            S = Sched(k, P["brate"], P["vcap"])
        S.rate = P["brate"]
        self.in_main = True
        GB = P["gb"]
        ops = [(st, kh, a) for st in range(NS - 1) for kh in range(2) for a in range(6)]
        ops += [(NS - 1, kh, a) for a in (2, 3, 4, 5, 1, 0) for kh in range(2)]
        issued = 0
        lastn = {}
        prev_ready = S.ready

        def ready(n, force):
            if n < 100:
                return prev_ready(n, force)
            gap = k.n - lastn[n]
            if gap >= 13:
                return True
            if force:
                k.e(f"s_nop {min(15, 13 - gap)}")
                return True
            return False
        S.ready = ready

        hissued = 0

        def issue_h(nmax, it):
            nonlocal issued, hissued
            cnt = 0
            while cnt < nmax and hissued // 2 <= it and hissued // 2 < len(ops):
                i_, half = divmod(hissued, 2)
                st, kh, a = ops[i_]
                if st > visible or k.lg_out() >= 15:
                    break
                self.aread(i_, st, kh, a, half)
                hissued += 1
                issued = hissued // 2
                cnt += 1
            return cnt

        def issue_upto(it):
            return issue_h(1000, it)

        BI = self.BI

        def boundary(st):
            nonlocal visible
            if st >= 1 and st % BI == 0:
                upto = min(st + BI, NS - 1)
                if upto > visible:
                    if k.vm.count(("bw", upto)) != 3:
                        S.force_v(lambda: k.vm.count(("bw", upto)) == 3)
                    k.need(vm=("bw", upto))
                    visible = upto
                if pre_bar:
                    pre_bar(st)
                k.e("s_barrier")
            if post_bar and st >= 1:
                post_bar(st)
            if st + DB < NS:
                S.add_v(lambda st=st: self.load_b(st + DB, 0), 19)
                S.add_v(lambda st=st: self.load_b(st + DB, 1), 19)
            if st + DW < NS:
                for ii in range(3):
                    S.add_v(lambda st=st, ii=ii: self.dma_w(st + DW, ii), 19)
            if st == NS - 7:
                for th in self.epi_setup():
                    S.add_f(th)
            if not self.is_o:
                if st == NS - P["ochk"] - 2:
                    S.force_f(lambda: not S.fill)
                    S.add_v(lambda: flag_load(k, S_FL, 16, 2, ("flo",)), 10)
                if st == NS - P["ochk"]:
                    S.force_v(lambda: ("flo",) in k.vm)
                    flag_check(k, S_FL, 16, 2, 2, ("flo",))
                    S.add_v(lambda: k.vmop(f"buffer_load_dword v{self.V_SC}, v{self.V_T+2}, s[16:19], s{S_GA} offen sc0 sc1", ("g",)), 10)
                    for pr in range(3):
                        def ld4(pr=pr):
                            k.e(f"s_add_u32 s{S_T2}, s{S_PB}, {4*4*12288}")
                            k.vmop(f"buffer_load_dwordx4 {vr(144+pr*4)}, v{V_L16}, s[16:19], s{S_T2} offen offset:{pr*1024} sc0 sc1", ("pl4",))
                        S.add_v(ld4, 19)

        first_in_step = {}
        for i, (st, kh, a) in enumerate(ops):
            first_in_step.setdefault(st, i)
        for i, (st, kh, a) in enumerate(ops):
            issue_upto(i)
            assert issued > i
            if ("b", st, kh) not in k.vm:
                S.force_v(lambda: ("b", st, kh) in k.vm)
            k.need(vm=("b", st, kh))
            if P["b_pair"] == 1 and i % 2 == 0:
                k.need(lg=("baf", max(i, min(i + 1, issued - 1)), 1))
            else:
                k.need(lg=("baf", i, 1))
            ac = self.V_ACC + a * 16
            cin = "0" if (st == 0 and kh == 0) else vr(ac, 16)
            k.e(f"v_mfma_f32_32x32x16_bf16 {vr(ac,16)}, {vr(self.V_AF+(i%self.NAF)*4)}, {ar(self.bfr(st,kh))}, {cin}")
            budget = GB
            if st == NS - 1 and kh == 1:
                assert not S.fill
                lastn[100 + a] = k.n
                for pr in (2 * a, 2 * a + 1):
                    if pr < 3 and not self.is_o:
                        continue
                    a0 = self.V_ACC + pr * 8
                    pk = 96 + pr * 4
                    for r in range(4):
                        S.epi.append((100 + a, [("e", f"v_cvt_pk_bf16_f32 v{pk+r}, v{a0+2*r}, v{a0+2*r+1}", None)]))
                    g_, r_ = divmod(pr, 3)
                    S.epi.append((100 + a, [("e", "s_nop 0", None),
                                            ("vm", f"buffer_store_dwordx4 {vr(pk)}, v{V_L16}, s[16:19], s{S_SG+g_} offen offset:{r_*1024} sc0 sc1", ("pst",))]))
            if first_in_step[st] == i:
                n0 = k.n
                boundary(st)
                budget -= (k.n - n0)
            if P["b_pair"] == 1:
                if i % 2 == 0:
                    budget -= issue_upto(i + self.RA)
                else:
                    budget -= 1
            elif P["b_pair"] == 2:
                vm_next = bool(S.open) and S.open[0][0] == "vm"
                if vm_next:
                    S._emit(S.open.pop(0))
                    issue_h(P["b_rv"], i + self.RA)
                    budget = 1
                else:
                    budget -= issue_h(P["b_rn"], i + self.RA) + 1
                    budget = min(budget, COST["vm"] - 1)
            else:
                budget -= issue_upto(i + self.RA) + 1
            S.gap(budget, GB)
        S.drain()
        k.stamp()
        S.force_epi(1000)

    def epi_setup(self):
        k = self.k
        t = self.V_T
        th = []

        def f0():
            k.e(f"s_mul_i32 s46, s{S_RT}, 3")
            k.e(f"s_add_u32 s46, s46, s{S_NT}")
            k.e(f"s_add_u32 s{S_FL}, s46, 40")
            k.e(f"s_lshl_b32 s{S_FL}, s{S_FL}, 7")
            k.e(f"s_add_u32 s{S_FL}, s{S_FL}, {FLAG_OFF}")
            k.e("s_mul_i32 s46, s46, 20")
            k.e(f"s_add_u32 s46, s46, s{S_WAVE}")
            k.e(f"s_mul_i32 s{S_PB}, s46, 12288")
            k.e(f"s_add_u32 s{S_PB}, s{S_PB}, {PART_OFF}")
            k.e(f"s_mul_i32 s46, s{S_SPLIT}, {4*12288}")
            k.e(f"s_add_u32 s47, s{S_PB}, s46")
            for g in range(4):
                if self.is_o:
                    k.e(f"s_add_u32 s{S_SG+g}, s47, {g*3072}")
                else:
                    k.e(f"s_add_u32 s46, s{S_SPLIT}, {g}")
                    k.e("s_and_b32 s46, s46, 3")
                    k.e("s_mul_i32 s46, s46, 3072")
                    k.e(f"s_add_u32 s{S_SG+g}, s47, s46")
            k.e(f"s_lshl_b32 s46, s{S_SPLIT}, 2")
            k.e(f"s_add_u32 s50, s46, s{S_FL}")
        th.append(f0)
        if not self.is_o:
            def f1():
                k.e(f"s_mul_i32 s46, s{S_SPLIT}, 3072")
                k.e(f"s_add_u32 s{S_PB}, s{S_PB}, s46")
                k.e(f"s_lshl_b32 s46, s{S_RT}, 2")
                k.e(f"s_add_u32 s46, s46, s{S_WAVE}")
                k.e(f"s_lshl_b32 s{S_GA}, s46, 7")
                k.e(f"s_add_u32 s{S_GA}, s{S_GA}, {G_OFF}")
                k.e(f"s_mul_i32 s{S_OA}, s46, {32*1152}")
                k.e(f"s_mul_i32 s46, s{S_NT}, 384")
                k.e(f"s_add_u32 s{S_OA}, s{S_OA}, s46")
                k.e(f"s_mul_i32 s46, s{S_SPLIT}, 96")
                k.e(f"s_add_u32 s{S_OA}, s{S_OA}, s46")
                srd(k, 8, 28, 29, 2048 * 576 * 2)
            def f2():
                k.e(f"v_and_b32 v{t+2}, 31, v0")
                k.e(f"v_mul_u32_u24 v{t+3}, 1152, v{t+2}")
                k.e(f"v_lshlrev_b32 v{t+2}, 2, v{t+2}")
                k.e(f"v_lshrrev_b32 v{t+4}, 5, v0")
                k.e(f"v_lshl_add_u32 v{t+3}, v{t+4}, 4, v{t+3}")
            th += [f1, f2]
        return th

    def t4(self):
        k, sc = self.k, self.V_SC
        for d in range(12):
            k.e(f"v_lshlrev_b32 v{64+2*d}, 16, v{144+d}")
            k.e(f"v_and_b32 v{64+2*d+1}, 0xffff0000, v{144+d}")
        for d in range(24):
            k.e(f"v_mul_f32 v{64+d}, v{sc}, v{64+d}")
        k.e(f"v_sub_f32 v{sc}, 1.0, v{sc}")

    def epilogue(self):
        k = self.k
        k.stamp()
        if not self.is_o:
            k.need(vm=("pl4",))
            self.t4()
        publish(k, 50, self.V_T, ("pst",))
        k.stamp()

    def phaseC(self):
        k, P = self.k, self.P
        t, sc = self.V_T, self.V_SC
        poll(k, S_FL, 4, t)
        k.stamp()
        L, A, TT = 96, self.V_ACC, 192
        for o in range(1, 4):
            k.e(f"s_add_u32 s46, s{S_SPLIT}, {o}")
            k.e("s_and_b32 s46, s46, 3")
            k.e(f"s_mul_i32 s46, s46, {4*12288}")
            k.e(f"s_add_u32 s{S_T0}, s{S_PB}, s46")
            for pr in range(3):
                k.vmop(f"buffer_load_dwordx4 {vr(L + ((o-1)*3+pr)*4)}, v{V_L16}, s[16:19], s{S_T0} offen offset:{pr*1024} sc0 sc1", ("pl", o))
        for o in range(1, 4):
            k.need(vm=("pl", o))
            for d in range(12):
                src = L + (o - 1) * 12 + d
                k.e(f"v_lshlrev_b32 v{TT+2*d}, 16, v{src}")
                k.e(f"v_and_b32 v{TT+2*d+1}, 0xffff0000, v{src}")
            for d in range(12):
                k.e(f"v_pk_add_f32 {vr(A+2*d,2)}, {vr(A+2*d,2)}, {vr(TT+2*d,2)}")
        for d in range(24):
            k.e(f"v_fma_f32 v{A+d}, v{sc}, v{A+d}, v{64+d}")
        for d in range(12):
            k.e(f"v_cvt_pk_bf16_f32 v{TT+d}, v{A+2*d}, v{A+2*d+1}")
        k.e("s_nop 1")
        for pr in range(3):
            b = TT + pr * 4
            k.e(f"v_permlane32_swap_b32 v{b}, v{b+2}")
            k.e(f"v_permlane32_swap_b32 v{b+1}, v{b+3}")
        k.e("s_nop 1")
        for pr in range(3):
            k.vmop(f"buffer_store_dwordx4 {vr(TT+pr*4)}, v{t+3}, s[8:11], s{S_OA} offen offset:{pr*32}{P['oscope']}", ("ost",))
        if k.stamps_on:
            k.wait_all()
        k.stamp()


def gate_wg(k, P):
    k.c("---------------- gate rows ----------------")
    srd(k, 20, 54, 55, 1152)
    k.e("v_and_b32 v3, 7, v0")
    k.e("v_lshlrev_b32 v3, 4, v3")
    GW = 64
    for s in range(9):
        k.vmop(f"buffer_load_dwordx4 {vr(GW+4*s)}, v3, s[20:23], 0 offen offset:{s*128}", ("gw",))
    k.e(f"s_lshl_b32 s46, s{S_RB}, 1")
    k.e(f"s_add_u32 s46, s46, s{S_FG}")
    k.e(f"s_sub_u32 s49, s46, 6")
    k.e(f"s_lshl_b32 s46, s49, 2")
    k.e(f"s_add_u32 s46, s46, s{S_WAVE}")
    k.e(f"s_mul_i32 s{S_XS}, s46, {32*1152}")
    k.e(f"s_add_u32 s{S_XS+1}, s{S_XS}, {16*1152}")
    k.e("s_lshl_b32 s48, s46, 7")
    k.e(f"s_add_u32 s48, s48, {G_OFF}")
    X = 100
    for p in range(4):
        for s in range(9):
            v = V_XL if p % 2 == 0 else V_XL2
            k.vmop(f"buffer_load_dwordx4 {vr(X+(p*9+s)*4)}, v{v}, s[8:11], s{S_XS+p//2} offen offset:{s*128}", ("gx", p))
    for p in range(4):
        k.e(f"v_mov_b32 v{4+p}, 0")
    for p in range(4):
        k.need(vm=("gx", p))
        for s in range(9):
            for d in range(4):
                k.e(f"v_dot2_f32_bf16 v{4+p}, v{X+(p*9+s)*4+d}, v{GW+4*s+d}, v{4+p}")
    k.e("s_nop 3")
    for m in (1, 2, 4):
        for p in range(4):
            k.lgop(f"ds_swizzle_b32 v{8+p}, v{4+p} offset:{(m << 10) | 0x1f}", ("sw",))
        k.wait_all(vm=False)
        for p in range(4):
            k.e(f"v_add_f32 v{4+p}, v{4+p}, v{8+p}")
    for p in range(4):
        k.e(f"v_mul_f32 v{4+p}, 0x{f2u(-LOG2E):08x}, v{4+p}")
    for p in range(4):
        k.e(f"v_exp_f32 v{4+p}, v{4+p}")
    k.e("s_nop 0")
    for p in range(4):
        k.e(f"v_add_f32 v{4+p}, 1.0, v{4+p}")
    for p in range(4):
        k.e(f"v_rcp_f32 v{4+p}, v{4+p}")
    k.e("v_lshrrev_b32 v2, 3, v0")
    k.e("v_lshlrev_b32 v2, 2, v2")
    for p in range(4):
        k.vmop(f"buffer_store_dword v{4+p}, v2, s[16:19], s48 offen offset:{p*32} sc0 sc1", ("gst",))
    k.wait_all()
    k.e("s_barrier")
    k.e(f"s_cmp_lg_u32 s{S_WAVE}, 0")
    k.e("s_cbranch_scc1 L_QEND")
    k.e(f"s_mul_i32 s46, s49, 3")
    k.e("s_add_u32 s46, s46, 40")
    k.e("s_lshl_b32 s46, s46, 7")
    k.e(f"s_add_u32 s46, s46, {FLAG_OFF + 20}")
    k.e(f"v_mov_b32 v4, s{S_NONCE}")
    k.e("v_lshlrev_b32 v5, 7, v0")
    k.e("s_mov_b64 exec, 7")
    k.e("buffer_store_dword v4, v5, s[16:19], s46 offen sc0 sc1")
    k.e("s_mov_b64 exec, -1")
    k.e("s_branch L_QEND")


def gen(P):
    k = KB()
    k.stamps_on = P["stamps"]
    prologue(k, P)
    st0 = k.save()
    B = PhaseB(k, P, False)
    phaseA_mlp(k, P, B)
    B.epilogue()
    B.phaseC()
    k.dbg_mode = "mlp" if P["dbgstamps"] else None
    k.stamp_flush()
    k.e("s_branch L_END")
    k.restore(st0)
    phaseA_qkv(k, P)
    k.e(f"s_add_u32 s{S_FL}, s{S_RB}, 32")
    k.e(f"s_lshl_b32 s{S_FL}, s{S_FL}, 7")
    k.e(f"s_add_u32 s{S_FL}, s{S_FL}, {FLAG_OFF}")
    k.e(f"s_lshl_b32 s46, s{S_FG}, 2")
    k.e(f"s_add_u32 s50, s46, s{S_FL}")
    k.wait_all(vm=False)
    publish(k, 50, 2, ("st",))
    k.stamp()
    k.e(f"s_cmp_lt_u32 s{S_FG}, 6")
    k.e("s_cbranch_scc1 L_QB")
    st1 = k.save()
    k.wait_all()
    gate_wg(k, P)
    k.restore(st1)
    k.label("L_QB")
    B2 = PhaseB(k, P, True)
    for th in B2.setup_thunks(2):
        th()
    for st in range(B2.DW):
        for ii in range(3):
            B2.dma_w(st, ii)
    poll(k, S_FL, 8, B2.V_T)
    k.e("s_barrier")
    k.stamp()
    for st in range(B2.DB):
        B2.load_b(st, 0)
        B2.load_b(st, 1)
    B2.main(B2.DW - 1)
    B2.epilogue()
    k.label("L_QEND")
    k.wait_all()
    k.dbg_mode = "qkv" if P["dbgstamps"] else None
    k.stamp_flush()
    k.label("L_END")
    k.e("s_endpgm")
    k.label("L_CODE_END")
    label = NAME + "_kernel"
    s = open("cdna_kernels/" + NAME + ".s.ref").read().split("; Override")[0]
    s += "; @launch grid=(256,1,1) block=(256,1,1) lds=163840\n"
    s += '.amdgcn_target "amdgcn-amd-amdhsa--gfx950"\n.text\n'
    s += f".globl {label}\n.p2align 8\n.type {label},@function\n{label}:\n"
    s += k.text()
    s += f"""
.section .rodata,"a"
.p2align 6
.amdhsa_kernel {label}
  .amdhsa_next_free_vgpr 512
  .amdhsa_next_free_sgpr 102
  .amdhsa_accum_offset 256
  .amdhsa_group_segment_fixed_size 0
  .amdhsa_kernarg_size 88
  .amdhsa_user_sgpr_count 2
  .amdhsa_user_sgpr_kernarg_segment_ptr 1
  .amdhsa_system_sgpr_workgroup_id_x 1
.end_amdhsa_kernel
"""
    return s


def main():
    ap = argparse.ArgumentParser()
    ap.add_argument("-o", default="cdna_kernels/" + NAME + ".s")
    ap.add_argument("--delta", type=int, default=4)
    ap.add_argument("--D", type=int, default=15)
    ap.add_argument("--R", type=int, default=32)
    ap.add_argument("--ra", type=int, default=3)
    ap.add_argument("--epg", type=int, default=3)
    ap.add_argument("--nx0", type=int, default=2)
    ap.add_argument("--xlead", type=int, default=3)
    ap.add_argument("--d0", type=int, default=9)
    ap.add_argument("--spread", type=int, default=1)
    ap.add_argument("--touch2", type=int, default=1)
    ap.add_argument("--b-ring", type=int, default=10)
    ap.add_argument("--b-dw", type=int, default=8)
    ap.add_argument("--b-db", type=int, default=5)
    ap.add_argument("--stamps", action="store_true")
    ap.add_argument("--exp", default="")
    ap.add_argument("--b-rv", type=int, default=1)
    ap.add_argument("--b-rn", type=int, default=3)
    ap.add_argument("--tbw", type=int, default=88)
    ap.add_argument("--tbs", type=int, default=4)
    ap.add_argument("--q-n0", type=int, default=2)
    ap.add_argument("--q-rate", type=float, default=10.0)
    ap.add_argument("--ochk", type=int, default=2)
    ap.add_argument("--oscope", default="nt")
    ap.add_argument("--gb", type=int, default=7)
    ap.add_argument("--b-pair", type=int, default=1)
    ap.add_argument("--cvm", type=int, default=5)
    ap.add_argument("--cdsw", type=int, default=4)
    ap.add_argument("--dbgstamps", action="store_true")
    ap.add_argument("--ctouch", type=int, default=1)
    ap.add_argument("--vidx", type=int, default=1)
    ap.add_argument("--bi", type=int, default=4)
    ap.add_argument("--bi-from", type=int, default=0)
    ap.add_argument("--bar-late", type=int, default=1)
    ap.add_argument("--b-ra", type=int, default=5)
    ap.add_argument("--b-bi", type=int, default=2)
    ap.add_argument("--ttouch", type=int, default=66)
    ap.add_argument("--tb0", type=int, default=105)
    ap.add_argument("--dfirst", type=int, default=18)
    ap.add_argument("--brate", type=float, default=9.0)
    ap.add_argument("--f2st", type=int, default=12)
    ap.add_argument("--ldscope", default="sc0 sc1")
    ap.add_argument("--rot", type=int, default=1)
    ap.add_argument("--nx1", type=int, default=0)
    ap.add_argument("--d1", type=int, default=18)
    ap.add_argument("--xper", type=int, default=4)
    ap.add_argument("--vrate", type=float, default=12.0)
    ap.add_argument("--vcap", type=float, default=40.0)
    a = ap.parse_args()
    P = vars(a)
    if P["oscope"]:
        P["oscope"] = " " + P["oscope"].replace("+", " ")
    EXP[0] = a.exp
    COST["vm"] = a.cvm
    COST["dsw"] = a.cdsw
    s = gen(P)
    open(a.o, "w").write(s)
    print("wrote", a.o, len(s), "bytes")


if __name__ == "__main__":
    main()
```

```python
import sys, argparse, struct

NAME = "gated_mix__sliding_local_dilated__glu_gated_glu__prompt"

NKB = 324
G_OFF = 0x1500000
FLAG_OFF = 0x1510000
PART_OFF = 0x1600000
WS_BYTES = 268435456
DBG_OFF = 0x4000000
LOG2E = 1.4426950408889634
SPIN_MAX = 200000


def f2u(x):
    return struct.unpack("<I", struct.pack("<f", x))[0]


class KB:
    def __init__(self):
        self.lines = []
        self.vm = []
        self.vm_done = 0
        self.lg = []
        self.lg_done = 0
        self.n = 0
        self.stamps_on = False
        self.nstamp = 0
        self.dbg_mode = None

    def e(self, s):
        self.lines.append("    " + s)
        self.n += 1

    def c(self, s):
        self.lines.append("    ; " + s)

    def label(self, s):
        self.lines.append(s + ":")

    def vmop(self, s, tag):
        self.e(s)
        self.vm.append(tag)
        assert len(self.vm) - self.vm_done <= 63, "too many vm outstanding"

    def lgop(self, s, tag):
        self.e(s)
        self.lg.append(tag)
        assert len(self.lg) - self.lg_done <= 15, "too many lgkm outstanding"

    def vm_out(self):
        return len(self.vm) - self.vm_done

    def lg_out(self):
        return len(self.lg) - self.lg_done

    def _last(self, lst, tag):
        for i in range(len(lst) - 1, -1, -1):
            if lst[i] == tag:
                return i
        raise KeyError(tag)

    def need(self, vm=None, lg=None):
        parts = []
        if vm is not None:
            tags = vm if isinstance(vm, list) else [vm]
            i = max(self._last(self.vm, t) for t in tags)
            if i >= self.vm_done:
                n = len(self.vm) - 1 - i
                parts.append(f"vmcnt({n})")
                self.vm_done = len(self.vm) - n
        if lg is not None:
            tags = lg if isinstance(lg, list) else [lg]
            i = max(self._last(self.lg, t) for t in tags)
            if i >= self.lg_done:
                n = len(self.lg) - 1 - i
                parts.append(f"lgkmcnt({n})")
                self.lg_done = len(self.lg) - n
        if parts:
            self.e("s_waitcnt " + " ".join(parts))

    def wait_all(self, vm=True, lg=True):
        p = []
        if vm:
            p.append("vmcnt(0)")
            self.vm_done = len(self.vm)
        if lg:
            p.append("lgkmcnt(0)")
            self.lg_done = len(self.lg)
        self.e("s_waitcnt " + " ".join(p))

    def save(self):
        return (list(self.vm), self.vm_done, list(self.lg), self.lg_done, self.nstamp)

    def restore(self, st):
        self.vm, self.vm_done, self.lg, self.lg_done, self.nstamp = list(st[0]), st[1], list(st[2]), st[3], st[4]

    def stamp(self):
        if not self.stamps_on:
            return
        i = self.nstamp
        self.nstamp += 1
        assert i < 15
        self.e(f"s_memrealtime s[{70+2*i}:{71+2*i}]")
        self.e(f"s_memtime s[100:101]")
        self.e("s_waitcnt lgkmcnt(0)")
        self.e(f"s_mov_b32 s{71+2*i}, s100")
        self.e("s_waitcnt lgkmcnt(0)")
        self.lg_done = len(self.lg)

    def stamp_flush(self):
        if not self.stamps_on:
            return
        if self.dbg_mode:
            lbl = f"L_DS{self.n}"
            self.e(f"s_cmp_lg_u32 s{S_WAVE}, 0")
            self.e(f"s_cbranch_scc1 {lbl}")
            srd(self, 20, 30, 31, 256)
            self.e("s_mov_b64 exec, 1")
            self.e("v_mov_b32 v1, 0")
            self.e("s_not_b32 s100, s70")
            self.e("v_mov_b32 v2, s100")
            self.e("buffer_atomic_umax v2, v1, s[20:23], 0 offen offset:4 sc1")
            if self.dbg_mode == "mlp":
                for i in range(self.nstamp):
                    self.e(f"v_mov_b32 v{3+i}, s{70+2*i}")
                    self.e(f"buffer_atomic_umax v{3+i}, v1, s[20:23], 0 offen offset:{8+4*i} sc1")
            self.e("s_waitcnt vmcnt(0)")
            self.e("s_mov_b64 exec, -1")
            self.label(lbl)
            return
        self.e("s_lshl_b32 s100, s2, 2")
        self.e(f"s_add_u32 s100, s100, s{S_WAVE}")
        self.e("s_lshl_b32 s100, s100, 7")
        self.e(f"s_add_u32 s100, s100, {DBG_OFF}")
        self.e("v_mov_b32 v1, 0")
        for i in range(self.nstamp):
            self.e(f"v_mov_b32 v2, s{70+2*i}")
            self.e(f"buffer_store_dword v2, v1, s[16:19], s100 offen offset:{4*i}")
            self.e("s_nop 1")
            self.e(f"v_mov_b32 v2, s{71+2*i}")
            self.e(f"buffer_store_dword v2, v1, s[16:19], s100 offen offset:{64+4*i}")
            self.e("s_nop 1")
        self.e(f"v_mov_b32 v2, {self.nstamp}")
        self.e(f"buffer_store_dword v2, v1, s[16:19], s100 offen offset:60")
        self.e("s_getreg_b32 s101, hwreg(HW_REG_HW_ID)")
        self.e("s_nop 1")
        self.e("v_mov_b32 v3, s101")
        self.e(f"buffer_store_dword v3, v1, s[16:19], s100 offen offset:124")
        self.e("s_getreg_b32 s101, hwreg(HW_REG_XCC_ID)")
        self.e("s_nop 1")
        self.e("v_mov_b32 v4, s101")
        self.e(f"buffer_store_dword v4, v1, s[16:19], s100 offen offset:120")
        self.e("s_waitcnt vmcnt(0)")

    def text(self):
        return "\n".join(self.lines) + "\n"


class Paced:
    def __init__(self, rate, cap, k=None):
        self.q, self.credit, self.rate, self.cap, self.k = [], 0, rate, cap, k

    def add(self, th, cost):
        self.q.append((th, cost))

    def gap(self, scale=1.0):
        self.credit = min(self.credit + self.rate * scale, self.cap)
        while self.q and self.q[0][1] <= self.credit and self.k.vm_out() < 58:
            th, c = self.q.pop(0)
            self.credit -= c
            th()

    def force_until(self, pred):
        while not pred():
            th, c = self.q.pop(0)
            th()

    def drain(self):
        while self.q:
            self.q.pop(0)[0]()


def icost(text):
    op = text.split()[0]
    if op.startswith("buffer_") or op.startswith("global_"):
        return COST["vm"]
    if op.startswith("ds_write"):
        return COST["dsw"]
    if op.startswith("ds_read_b128"):
        return COST["dsr128"]
    if op.startswith("ds_"):
        return 1
    if op in ("v_exp_f32", "v_rcp_f32"):
        return 2
    return 1


COST = {"vm": 5, "dsw": 4, "dsr128": 2}


class Sched:
    def __init__(self, k, rate, cap):
        self.k = k
        self.vq = []
        self.fill = []
        self.epi = []
        self.open = []
        self.credit, self.rate, self.cap = 0, rate, cap
        self.ready = lambda n: True

    def record(self, th):
        k = self.k
        prims = []
        save = (k.e, k.vmop, k.lgop, k.need)
        k.e = lambda t: prims.append(("e", t, None))
        k.vmop = lambda t, tag: prims.append(("vm", t, tag))
        k.lgop = lambda t, tag: prims.append(("lg", t, tag))
        k.need = lambda vm=None, lg=None: prims.append(("need", vm, lg))
        try:
            th()
        finally:
            del k.e, k.vmop, k.lgop, k.need
        return prims

    def add_v(self, th, cost):
        self.vq.append((self.record(th), cost))

    def add_f(self, th, atomic=False):
        self.fill.append([("call", th, None)] if atomic else self.record(th))

    def _cost(self, p):
        if p[0] in ("need", "call"):
            return 1
        return icost(p[1])

    def _emit(self, p):
        k = self.k
        if p[0] == "e":
            k.e(p[1])
        elif p[0] == "vm":
            k.vmop(p[1], p[2])
        elif p[0] == "lg":
            if k.lg_out() >= 13:
                k.need(lg=k.lg[k.lg_done + 4])
            k.lgop(p[1], p[2])
        elif p[0] == "need":
            if p[1] is not None:
                tags = p[1] if isinstance(p[1], list) else [p[1]]
                assert all(t in k.vm for t in tags), p
            k.need(vm=p[1], lg=p[2])
        else:
            p[1]()

    def flush_open(self):
        while self.open:
            self._emit(self.open.pop(0))

    def force_v(self, pred):
        self.flush_open()
        while not pred():
            prims, c = self.vq.pop(0)
            for p in prims:
                self._emit(p)

    def force_f(self, pred):
        self.flush_open()
        while not pred():
            for p in self.fill.pop(0):
                self._emit(p)

    def force_epi(self, upto):
        self.flush_open()
        while self.epi and self.epi[0][0] <= upto:
            n, prims = self.epi.pop(0)
            self.ready(n, True)
            for p in prims:
                self._emit(p)

    def drain(self):
        self.flush_open()
        self.force_f(lambda: not self.fill)
        self.force_v(lambda: not self.vq)

    def gap(self, budget, full):
        k = self.k
        self.credit = min(self.credit + self.rate, self.cap)
        progress = True
        while budget > 0 and progress:
            progress = False
            if not self.open:
                if self.vq and self.vq[0][1] <= self.credit and k.vm_out() < 58:
                    prims, c = self.vq.pop(0)
                    self.credit -= c
                    self.open = list(prims)
                elif self.fill and k.lg_out() < 10:
                    self.open = list(self.fill.pop(0))
                elif self.epi and len(self.epi[0][1]) > 1 and self.ready(self.epi[0][0], False):
                    self.open = list(self.epi.pop(0)[1])
            if self.open:
                c = self._cost(self.open[0])
                if c <= budget and not (self.open[0][0] == "lg" and k.lg_out() >= 11):
                    self._emit(self.open.pop(0))
                    budget -= c
                    progress = True
                    continue
            if self.epi and len(self.epi[0][1]) == 1 and self.ready(self.epi[0][0], False):
                c = self._cost(self.epi[0][1][0])
                if c <= budget:
                    self._emit(self.epi.pop(0)[1][0])
                    budget -= c
                    progress = True


def srd(k, d, lo, hi, nbytes):
    k.e(f"s_mov_b32 s{d}, s{lo}")
    k.e(f"s_mov_b32 s{d+1}, s{hi}")
    k.e(f"s_mov_b32 s{d+2}, {nbytes}")
    k.e(f"s_mov_b32 s{d+3}, 0x00020000")


def vr(b, n=4):
    return f"v[{b}:{b+n-1}]"


def ar(b, n=4):
    return f"a[{b}:{b+n-1}]"


S_WAVE, S_RB, S_FG = 32, 33, 34
S_WBASE, S_STBASE, S_M0W, S_T0, S_T1, S_T2 = 36, 37, 39, 40, 41, 42
S_FQ, S_I3, S_I2, S_IDX = 43, 44, 45, 51
S_XS = 64
S_NONCE = 68
S_XW = 38
XB = 131072

V_XL, V_XL2 = 36, 37
V_XWE, V_XWO = 38, 31
V_XR = 32
V_L16 = 39


S_PX, S_PW = 3, 35


def advance(k, sc, targets):
    k.e(f"s_add_u32 s{sc}, s{sc}, 1")
    k.e(f"s_cmp_eq_u32 s{sc}, 9")
    k.e(f"s_cselect_b32 s{sc}, 0, s{sc}")
    steps = sorted(set(st for _, st in targets))
    for st in steps:
        k.e(f"s_mov_b32 s{S_T0}, {st}")
        k.e(f"s_cselect_b32 s{S_T0}, {(-8*st) & 0xFFFFFFFF}, s{S_T0}")
        for (r, st2) in targets:
            if st2 == st:
                k.e(f"s_lshl1_add_u32 s{r}, 0, s{r}") if False else None
        if len(steps) == 1:
            for (r, st2) in targets:
                k.e(f"s_add_u32 s{r}, s{r}, s{S_T0}")
        else:
            k.e(f"s_mov_b32 s{S_T0 + 1 + steps.index(st)}, s{S_T0}")
    if len(steps) > 1:
        for (r, st2) in targets:
            k.e(f"s_add_u32 s{r}, s{r}, s{S_T0 + 1 + steps.index(st2)}")


def x_load(k, s, p, dst):
    v = V_XL if p % 2 == 0 else V_XL2
    if p == 0 and s > 0:
        advance(k, S_PX, [(S_XS + i, 128) for i in range(4)])
    if "xdw" in EXP[0] and s > 1:
        k.vmop(f"buffer_load_dword v1, v0, s[8:11], 0 offen", ("x", s))
        return
    k.vmop(f"buffer_load_dwordx4 {dst}, v{v}, s[8:11], s{S_XS + p//2} offen", ("x", s))


EXP = [""]
SLEEP = [2]


def x_write(k, s, p, src):
    if "noxw" in EXP[0] and s > 0:
        return
    v = V_XWE if p % 2 == 0 else V_XWO
    k.lgop(f"ds_write_b128 v{v}, {src} offset:{p*1024}", ("xw", s))


def x_read(k, s, ksl, rt, dst):
    k.lgop(f"ds_read_b128 {dst}, v{V_XR+ksl} offset:{rt*4096}", ("xf", 4 * s + ksl, rt))


XD = 98304


def x_dma_g(k, s, p):
    if p == 0 and s > 0:
        advance(k, S_PX, [(S_XS + i, 128) for i in range(4)])
    k.e(f"s_add_u32 m0, s{S_XW}, {(s&1)*8192 + p*1024}")
    k.e("s_nop 0")
    k.vmop(f"buffer_load_dwordx4 v{V_XWE if p % 2 == 0 else V_XWO}, s[8:11], s{S_XS + p//2} offen lds", ("x", s))


def prologue(k, P):
    k.e("s_cmp_ge_u32 s2, 256")
    k.e("s_cbranch_scc1 L_END")
    k.stamp()
    k.e("s_load_dwordx4 s[4:7], s[0:1], 0")
    k.e("s_load_dwordx4 s[24:27], s[0:1], 32")
    k.e("s_load_dwordx4 s[52:55], s[0:1], 48")
    k.e("s_load_dwordx4 s[28:31], s[0:1], 64")
    k.e("s_load_dwordx2 s[58:59], s[0:1], 80")
    k.e("s_load_dwordx2 s[56:57], s[0:1], 16")
    k.e("v_lshrrev_b32 v1, 6, v0")
    k.e("v_and_b32 v0, 63, v0")
    if P["ct0"]:
        k.e("s_getpc_b64 s[60:61]")
        k.label("L_PC0")
        k.e(f"s_mov_b32 s62, L_CODE_END-L_PC0")
        k.e("s_mov_b32 s63, 0x00020000")
        k.e("v_lshlrev_b32 v8, 7, v0")
        k.vmop("buffer_load_dword v9, v8, s[60:63], 0 offen", ("ct0",))
    k.e("v_lshrrev_b32 v2, 3, v0")
    k.e(f"v_readfirstlane_b32 s{S_WAVE}, v1")
    k.e("v_and_b32 v3, 7, v0")
    k.e("v_mul_u32_u24 v7, 1152, v2")
    k.e(f"v_lshl_add_u32 v{V_XL}, v3, 4, v7")
    k.e(f"v_add_u32 v{V_XL2}, {8*1152}, v{V_XL}")
    k.e("s_and_b32 s50, s2, 7")
    k.e(f"s_lshr_b32 s{S_IDX}, s2, 3")
    if P["vidx"]:
        k.e(f"s_lshr_b32 s46, s{S_IDX}, 2")
        k.e(f"s_and_b32 s47, s{S_IDX}, 3")
        k.e("s_mul_i32 s48, s46, 3")
        k.e("s_add_u32 s48, s48, s47")
        k.e("s_add_u32 s46, s46, 24")
        k.e("s_cmp_eq_u32 s47, 3")
        k.e(f"s_cselect_b32 s{S_IDX}, s46, s48")
    k.e("s_and_b32 s46, s50, 1")
    k.e(f"s_lshr_b32 s{S_FQ}, s50, 1")
    k.e(f"s_lshl_b32 s{S_RB}, s46, 2")
    k.e(f"s_and_b32 s{S_I3}, s{S_IDX}, 3")
    k.e(f"s_add_u32 s{S_RB}, s{S_RB}, s{S_I3}")
    k.e(f"s_lshr_b32 s{S_I2}, s{S_IDX}, 2")
    k.e(f"s_lshl_b32 s47, s{S_RB}, 2")
    k.e(f"s_add_u32 s47, s47, s{S_WAVE}")
    k.e(f"s_mul_i32 s{S_XS}, s47, {64*1152}")
    k.e(f"s_lshl_b32 s{S_PX}, s{S_I3}, 1")
    k.e(f"s_add_u32 s{S_PX}, s{S_PX}, s{S_I2}")
    if P["rot"] == 2:
        k.e(f"s_add_u32 s{S_PX}, s{S_I3}, s{S_I2}")
        k.e(f"s_mul_i32 s47, s{S_PX}, 86")
        k.e("s_lshr_b32 s47, s47, 8")
        k.e("s_mul_i32 s47, s47, 3")
        k.e(f"s_sub_u32 s{S_PX}, s{S_PX}, s47")
        k.e(f"s_mul_i32 s{S_PX}, s{S_PX}, 3")
    if not P["rot"]:
        k.e(f"s_mov_b32 s{S_PX}, 0")
    k.e(f"s_sub_u32 s47, s{S_PX}, 9")
    k.e(f"s_cmp_ge_u32 s{S_PX}, 9")
    k.e(f"s_cselect_b32 s{S_PX}, s47, s{S_PX}")
    k.e(f"s_mov_b32 s{S_PW}, s{S_PX}")
    k.e(f"s_lshl_b32 s47, s{S_PX}, 7")
    k.e(f"s_add_u32 s{S_XS}, s{S_XS}, s47")
    for i in range(1, 4):
        k.e(f"s_add_u32 s{S_XS+i}, s{S_XS}, {i*16*1152}")
    k.e(f"s_lshl_b32 s{S_XW}, s{S_WAVE}, 14")
    k.e(f"s_add_u32 s{S_XW}, s{S_XW}, {XD}")
    k.e("v_lshrrev_b32 v4, 1, v2")
    k.e("v_xor_b32 v5, v3, v4")
    k.e(f"v_lshl_add_u32 v{V_XWE}, v5, 4, v7")
    k.e("v_xor_b32 v6, 4, v5")
    k.e(f"v_lshl_add_u32 v{V_XWO}, v6, 4, v7")
    k.e(f"v_add_u32 v{V_XWO}, {8*1152}, v{V_XWO}")
    if P["ctouch"]:
        k.e("s_getpc_b64 s[60:61]")
        k.label("L_PC")
        k.e(f"s_sub_u32 s60, s60, L_PC-{NAME}_kernel")
        k.e("s_subb_u32 s61, s61, 0")
        k.e(f"s_mov_b32 s62, L_CODE_END-{NAME}_kernel")
        k.e("s_mov_b32 s63, 0x00020000")
        k.e("s_lshr_b32 s46, s2, 3")
        k.e(f"s_lshl_b32 s47, s{S_WAVE}, 5")
        k.e("s_add_u32 s46, s46, s47")
        k.e("s_lshl_b32 s46, s46, 10")
        k.e("v_and_b32 v4, 7, v0")
        k.e("v_lshlrev_b32 v4, 7, v4")
        k.vmop("buffer_load_dword v1, v4, s[60:63], s46 offen", ("ctouch",))
    if not P["early"]:
        k.e("s_waitcnt lgkmcnt(0)")
        if "su" in P["exp"]:
            k.stamp()
        srd(k, 8, 4, 5, 2048 * 1152)
        for p in range(8):
            x_dma_g(k, 0, p)
    k.e(f"s_cmp_ge_u32 s{S_IDX}, 24")
    k.e("s_cbranch_scc1 L_QKV")


def common2(k, wr=True):
    srd(k, 16, 58, 59, WS_BYTES)
    if wr:
        common2w(k)
    common2r(k)


def common2w(k):
    k.e("v_lshrrev_b32 v2, 3, v0")
    k.e("v_and_b32 v3, 7, v0")
    k.e("v_lshrrev_b32 v4, 1, v2")
    k.e("v_xor_b32 v5, v3, v4")
    k.e("v_xor_b32 v6, 4, v5")
    k.e("v_lshlrev_b32 v7, 7, v2")
    k.e(f"v_add_u32 v7, s{S_XW}, v7")
    k.e(f"v_lshl_add_u32 v{V_XWE}, v5, 4, v7")
    k.e(f"v_lshl_add_u32 v{V_XWO}, v6, 4, v7")


def common2r(k):
    k.e("v_and_b32 v2, 31, v0")
    k.e("v_lshrrev_b32 v3, 5, v0")
    k.e("v_bfe_u32 v4, v2, 1, 3")
    k.e("v_lshlrev_b32 v5, 7, v2")
    k.e(f"v_add_u32 v5, s{S_XW}, v5")
    for ksl in range(4):
        k.e(f"v_add_u32 v6, {2*ksl}, v3")
        k.e("v_xor_b32 v6, v6, v4")
        k.e(f"v_lshl_add_u32 v{V_XR+ksl}, v6, 4, v5")
    k.e(f"v_lshlrev_b32 v{V_L16}, 4, v0")


def nonce_create(k):
    srd(k, 20, 30, 31, 256)
    k.e(f"s_or_b32 s46, s2, s{S_WAVE}")
    k.e("s_cmp_lg_u32 s46, 0")
    k.e("s_cbranch_scc1 L_NONCE_SKIP")
    k.e("s_memrealtime s[46:47]")
    k.e("s_waitcnt lgkmcnt(0)")
    k.e("s_or_b32 s46, s46, 1")
    k.e("v_mov_b32 v4, s46")
    k.e("v_mov_b32 v5, 0")
    k.e("s_mov_b64 exec, 1")
    k.e("buffer_store_dword v4, v5, s[20:23], 0 offen sc0 sc1")
    k.e("s_mov_b64 exec, -1")
    k.label("L_NONCE_SKIP")


def nonce_issue(k, vbase):
    srd(k, 20, 30, 31, 256)
    k.e(f"v_mov_b32 v{vbase+1}, 0")
    k.vmop(f"buffer_load_dword v{vbase}, v{vbase+1}, s[20:23], 0 offen sc0 sc1", ("nonce",))


def nonce_get(k, vbase):
    lbl = f"L_NG{k.n}"
    k.need(vm=("nonce",))
    k.e(f"s_mov_b32 s69, {SPIN_MAX}")
    k.label(lbl)
    k.e(f"v_readfirstlane_b32 s{S_NONCE}, v{vbase}")
    k.e("s_nop 3")
    k.e(f"s_cmp_lg_u32 s{S_NONCE}, 0")
    k.e(f"s_cbranch_scc1 {lbl}_D")
    k.e("s_sub_u32 s69, s69, 1")
    k.e("s_cmp_eq_u32 s69, 0")
    k.e(f"s_cbranch_scc1 {lbl}_D")
    k.e("s_sleep 4")
    k.e(f"buffer_load_dword v{vbase}, v{vbase+1}, s[20:23], 0 offen sc0 sc1")
    k.e("s_waitcnt vmcnt(0)")
    k.e(f"s_branch {lbl}")
    k.label(lbl + "_D")


def publish(k, s_flag_off, vt, tag):
    lbl = f"L_PUB{k.n}"
    k.need(vm=tag)
    k.e("s_barrier")
    k.e(f"s_cmp_lg_u32 s{S_WAVE}, 0")
    k.e(f"s_cbranch_scc1 {lbl}")
    k.e(f"v_mov_b32 v{vt}, s{S_NONCE}")
    k.e(f"v_mov_b32 v{vt+1}, 0")
    k.e("s_mov_b64 exec, 1")
    k.e(f"buffer_store_dword v{vt}, v{vt+1}, s[16:19], s{s_flag_off} offen sc0 sc1")
    k.e("s_mov_b64 exec, -1")
    k.label(lbl)


def poll(k, s_line_off, nflags, vt):
    lbl = f"L_POLL{k.n}"
    k.e(f"v_lshlrev_b32 v{vt}, 2, v0")
    k.e(f"s_mov_b32 s69, {SPIN_MAX}")
    k.e(f"s_mov_b64 exec, {(1 << nflags) - 1}")
    k.label(lbl)
    k.e(f"buffer_load_dword v{vt+1}, v{vt}, s[16:19], s{s_line_off} offen sc0 sc1")
    k.e("s_waitcnt vmcnt(0)")
    k.e(f"v_cmp_ne_u32 vcc, s{S_NONCE}, v{vt+1}")
    k.e("s_sub_u32 s69, s69, 1")
    k.e("s_nop 4")
    k.e(f"s_cbranch_vccz {lbl}_D")
    k.e("s_cmp_eq_u32 s69, 0")
    k.e(f"s_cbranch_scc1 {lbl}_D")
    if SLEEP[0]:
        k.e(f"s_sleep {SLEEP[0]}")
    k.e(f"s_branch {lbl}")
    k.label(lbl + "_D")
    k.e("s_mov_b64 exec, -1")
    k.vm_done = len(k.vm)


def flag_store(k, s_off, imm, vt):
    k.e(f"v_mov_b32 v{vt}, s{S_NONCE}")
    k.e(f"v_mov_b32 v{vt+1}, 0")
    k.e("s_mov_b64 exec, 1")
    k.vmop(f"buffer_store_dword v{vt}, v{vt+1}, s[16:19], s{s_off} offen offset:{imm} sc0 sc1", ("flag",))
    k.e("s_mov_b64 exec, -1")


def flag_load(k, s_line_off, imm, vt, tag):
    k.e(f"v_and_b32 v{vt}, 15, v0")
    k.e(f"v_lshlrev_b32 v{vt}, 2, v{vt}")
    k.vmop(f"buffer_load_dword v{vt+1}, v{vt}, s[16:19], s{s_line_off} offen offset:{imm} sc0 sc1", tag)


def flag_check(k, s_line_off, imm, nflags, vt, tag):
    lbl = f"L_FC{k.n}"
    k.need(vm=tag)
    k.e(f"s_mov_b32 s69, {SPIN_MAX}")
    k.e(f"s_mov_b64 exec, {(1 << nflags) - 1}")
    k.label(lbl)
    k.e(f"v_cmp_ne_u32 vcc, s{S_NONCE}, v{vt+1}")
    k.e("s_sub_u32 s69, s69, 1")
    k.e("s_nop 4")
    k.e(f"s_cbranch_vccz {lbl}_D")
    k.e("s_cmp_eq_u32 s69, 0")
    k.e(f"s_cbranch_scc1 {lbl}_D")
    k.e("s_sleep 2")
    k.e(f"buffer_load_dword v{vt+1}, v{vt}, s[16:19], s{s_line_off} offen offset:{imm} sc0 sc1")
    k.e("s_waitcnt vmcnt(0)")
    k.e(f"s_branch {lbl}")
    k.label(lbl + "_D")
    k.e("s_mov_b64 exec, -1")
    k.e("s_nop 3")


def phaseA_mlp(k, P, B):
    DELTA, D, R, NB, RA = P["delta"], P["D"], P["R"], 4, P["ra"]
    BI = P["bi"]
    V_AF = 8
    V_WA, V_WB2 = 24, 40
    V_WD = 28
    V_T = 44
    V_XF = 64
    V_ACC = 96

    def xf(ks, rt):
        if ks < 32:
            return ar((ks * 2 + rt) * 4)
        return vr(V_XF + ((ks - 32) * 2 + rt) * 4)

    def xq(s, p):
        return xf(4 * s + p // 2, p % 2)

    def acc(slot, rt):
        return V_ACC + (slot * 2 + rt) * 16

    k.c("---------------- phase A: MLP path ----------------")
    def x_dma(s, p):
        x_dma_g(k, s, p)

    k.e(f"s_mul_i32 s{S_FG}, s{S_FQ}, 6")
    k.e(f"s_add_u32 s{S_FG}, s{S_FG}, s{S_I2}")
    def wsrd():
        k.e(f"s_cmp_ge_u32 s{S_WAVE}, 2")
        k.e("s_cselect_b32 s12, s26, s24")
        k.e("s_cselect_b32 s13, s27, s25")
        k.e(f"s_mov_b32 s14, {576*9216}")
        k.e("s_mov_b32 s15, 0x00020000")
    if not P["early"]:
        wsrd()
    k.e("v_lshrrev_b32 v2, 3, v0")
    k.e("v_and_b32 v3, 7, v0")
    k.e("v_bfe_u32 v4, v2, 1, 1")
    k.e(f"s_and_b32 s46, s{S_WAVE}, 2")
    k.e("v_or_b32 v4, s46, v4")
    k.e("v_lshlrev_b32 v4, 1, v4")
    k.e("v_xor_b32 v3, v3, v4")
    k.e("s_mov_b32 s47, 9216")
    k.e("v_mul_lo_u32 v2, v2, s47")
    k.e(f"v_lshl_add_u32 v{V_WD}, v3, 4, v2")
    k.e(f"s_and_b32 s46, s{S_WAVE}, 1")
    k.e(f"s_mul_i32 s{S_WBASE}, s46, {8*9216}")
    k.e(f"s_lshl_b32 s47, s{S_FG}, 7")
    k.e(f"s_add_u32 s{S_WBASE}, s{S_WBASE}, s47")
    k.e(f"s_mul_i32 s47, s{S_PW}, {64*9216}")
    k.e(f"s_add_u32 s{S_WBASE}, s{S_WBASE}, s47")
    k.e(f"s_lshl_b32 s{S_M0W}, s{S_WAVE}, 10")

    NU = 108
    tof = {}
    for j in range(4):
        for u in range(NU):
            tof[(j, u)] = -(-u * (36 + j * DELTA) // 36) if (u < 36 and P["spread"]) else u + j * DELTA
    last_use = {u: max(tof[(j, u)] for j in range(4)) for u in range(NU)}
    slot_of = {}
    slot_busy = [-1] * 40
    last_bar = [-1]
    x_done = [10 ** 9]
    deadline = [10 ** 9] * 40

    def b_slots(st):
        lo = B.LB + B.pos(st) * B.SL
        return list(range(lo // 4096, (lo + B.SL) // 4096))
    for st in range(B.DW):
        for x in b_slots(st):
            deadline[x] = min(deadline[x], P["tbw"] + P["tbs"] * st)
    for st in range(B.DW, B.DW + B.BI):
        for x in b_slots(st):
            deadline[x] = min(deadline[x], 116)

    def try_alloc(u):
        for sl in sorted(range(32), key=lambda x: (deadline[x], x)):
            if sl >= 24 and not (x_done[0] < last_bar[0]):
                continue
            if last_use[u] >= deadline[sl]:
                continue
            if slot_busy[sl] < last_bar[0] or slot_busy[sl] == -1:
                slot_of[u] = sl
                slot_busy[sl] = last_use[u]
                return True
        return False

    def dma_w(u):
        c, ks = divmod(u, 36)
        def f():
            if u > 0 and u % 4 == 0:
                advance(k, S_PW, [(S_WBASE, 64 * 9216)])
            k.e(f"s_add_u32 m0, s{S_M0W}, {slot_of[u]*4096}")
            k.e(f"s_add_u32 s{S_T1}, s{S_WBASE}, {(ks%4)*16*9216 + c*24*128}")
            k.vmop(f"buffer_load_dwordx4 v{V_WD}, s[12:15], s{S_T1} offen lds", ("w", u))
        return f

    D0 = min(P["d0"], D)
    if P["early"]:
        k.e("s_waitcnt lgkmcnt(0)")
        if "su" in P["exp"]:
            k.stamp()
        srd(k, 8, 4, 5, 2048 * 1152)
        x_dma(0, 0)
        wsrd()
        for u in range(0, 4):
            assert try_alloc(u)
        dma_w(0)()
        for p in range(1, 8):
            x_dma(0, p)
            if p in (2, 4, 6):
                dma_w(p // 2)()
    else:
        for u in range(0, 4):
            assert try_alloc(u)
            dma_w(u)()
    def second():
        for p in range(8):
            x_dma(1, p)
        for u in range(4, D0):
            assert try_alloc(u)
            dma_w(u)()
    if not P["late2"]:
        second()
    next_w = D0
    nonce_create(k)
    common2(k, wr=False)
    k.e("v_lshrrev_b32 v2, 4, v0")
    k.e("v_bfe_u32 v3, v0, 2, 2")
    k.e("v_and_b32 v4, 3, v0")
    k.e("v_lshrrev_b32 v5, 1, v4")
    k.e("v_lshrrev_b32 v6, 1, v2")
    k.e("v_lshl_add_u32 v6, v6, 3, v3")
    k.e("v_lshlrev_b32 v6, 7, v6")
    k.e("v_lshl_add_u32 v6, v5, 11, v6")
    k.e("v_and_b32 v7, 1, v4")
    k.e("v_lshl_add_u32 v6, v7, 4, v6")
    k.e("v_and_b32 v7, 1, v2")
    k.e("v_lshl_add_u32 v6, v7, 3, v6")
    k.e("v_lshrrev_b32 v7, 1, v3")
    k.e("v_lshl_or_b32 v7, v5, 1, v7")
    for j in range(4):
        k.e(f"v_xor_b32 v5, {j}, v7")
        k.e(f"v_lshl_add_u32 v{V_WA+j}, v5, 5, v6")
        k.e(f"v_add_u32 v{V_WB2+j}, 0x10000, v{V_WA+j}")
    k.e(f"s_lshl_b32 s46, s{S_RB}, 3")
    k.e(f"s_lshl_b32 s47, s{S_WAVE}, 1")
    k.e("s_add_u32 s46, s46, s47")
    k.e(f"s_mul_i32 s46, s46, {NKB}")
    k.e(f"s_mul_i32 s47, s{S_FQ}, 72")
    k.e("s_add_u32 s46, s46, s47")
    k.e(f"s_lshl_b32 s47, s{S_I2}, 2")
    k.e("s_add_u32 s46, s46, s47")
    k.e("s_add_u32 s46, s46, 36")
    k.e(f"s_lshl_b32 s{S_STBASE}, s46, 10")

    def aread(i, j, u, half):
        off = slot_of[u] * 4096 + half * 512
        base = V_WA + j
        if off >= 65536:
            off -= 65536
            base = V_WB2 + j
        d = V_AF + (i % NB) * 4 + half * 2
        k.lgop(f"ds_read_b64_tr_b16 {vr(d,2)}, v{base} offset:{off}", ("af", i, half))

    def epilogue(n):
        c, j = divmod(n, 4)
        slot = n % 5
        ops = []
        for rt in range(2):
            a = acc(slot, rt)
            tb = V_T
            pk = V_T + 8 + rt * 4
            gi = [a + 0, a + 1, a + 2, a + 3, a + 8, a + 9, a + 10, a + 11]
            ui = [a + 4, a + 5, a + 6, a + 7, a + 12, a + 13, a + 14, a + 15]
            for h in range(8):
                ops.append(f"v_mul_f32 v{tb+h}, 0x{f2u(-LOG2E):08x}, v{gi[h]}")
            for h in range(8):
                ops.append(f"v_exp_f32 v{tb+h}, v{tb+h}")
            for h in range(8):
                ops.append(f"v_add_f32 v{tb+h}, 1.0, v{tb+h}")
            for h in range(8):
                ops.append(f"v_rcp_f32 v{tb+h}, v{tb+h}")
            for h in range(8):
                ops.append(f"v_mul_f32 v{tb+h}, v{tb+h}, v{ui[h]}")
            for h in range(4):
                ops.append(f"v_cvt_pk_bf16_f32 v{pk+h}, v{tb+2*h}, v{tb+2*h+1}")
            off = (rt * NKB + 24 * c + j) * 1024
            ops.append(("st", f"s_add_u32 s{S_T2}, s{S_STBASE}, {off}",
                        f"buffer_store_dwordx4 {vr(pk)}, v{V_L16}, s[16:19], s{S_T2} offen sc0 sc1"))
        return ops

    T_F0, T_F1 = 60, 96
    T_TOUCH = P["ttouch"]
    sched = {}
    for j in range(4):
        for u in range(NU):
            if u < 36 and P["spread"]:
                t = -(-u * (36 + j * DELTA) // 36)
            else:
                t = u + j * DELTA
            sched.setdefault(t, []).append((t, j, u))
    pairs = []
    for t in range(NU + 3 * DELTA):
        pairs.extend(sched[t])
    first_of_step, npairs_in_step = {}, {}
    for i, (t, j, u) in enumerate(pairs):
        first_of_step.setdefault(t, i)
        npairs_in_step[t] = npairs_in_step.get(t, 0) + 1

    S = Sched(k, P["vrate"], P["vcap"])
    visible = -1
    issued_reads = 0
    last_mfma_n = {}
    GB = P["gb"]

    def ready(n, force):
        gap = k.n - last_mfma_n[n]
        if gap >= 13:
            return True
        if force:
            k.e(f"s_nop {min(15, 13 - gap)}")
            return True
        return False
    S.ready = ready

    def add_epi(n_):
        for o in epilogue(n_):
            if isinstance(o, tuple):
                S.epi.append((n_, [("e", o[1], None), ("vm", o[2], ("st", n_))]))
            else:
                S.epi.append((n_, [("e", o, None)]))

    def x_convert(s):
        def wx():
            S.force_v(lambda: k.vm.count(("x", s)) == 8)
            k.need(vm=("x", s))
        S.add_f(wx, atomic=True)
        for ksl in range(4):
            for rt in range(2):
                S.add_f(lambda ksl=ksl, rt=rt: k.lgop(
                    f"ds_read_b128 {xf(4*s+ksl, rt)}, v{V_XR+ksl} offset:{(s&1)*8192 + rt*4096}", ("xf", 4 * s + ksl, rt)))

    def x_next(s):
        if s + 2 > 8:
            return
        def w():
            S.force_f(lambda: ("xf", 4 * s + 3, 1) in k.lg)
            k.need(lg=("xf", 4 * s + 3, 1))
        S.vq.append(([("call", w, None)], 0))
        for p in range(8):
            S.add_v(lambda p=p: x_dma(s + 2, p), 19)

    if P["late2"] == 1:
        second()
    if P["late2"] == 2:
        k.need(vm=("x", 0))
        second()
    if "su" in P["exp"]:
        k.stamp()
        k.need(vm=("ctouch",))
        k.stamp()
        k.need(vm=("x", 0))
        k.stamp()
    x_convert(0)
    S.drain()
    k.need(vm=("w", 0))
    k.e("s_barrier")
    visible = 0
    x_next(0)
    b_claimed = [0]

    def queue_dmas(t):
        nonlocal next_w
        lead = D if t >= 36 else min(D, P["dfirst"])
        cnt = 0
        while next_w <= t + lead and next_w < NU and cnt < 2 and try_alloc(next_w):
            S.add_v(dma_w(next_w), 19)
            next_w += 1
            cnt += 1
        while b_claimed[0] < B.DW and t >= P["tbw"] + P["tbs"] * b_claimed[0]:
            assert not S.fill
            st = b_claimed[0]
            sl = b_slots(st)
            if not all((slot_busy[x] < last_bar[0] or slot_busy[x] == -1) for x in sl):
                break
            for x in sl:
                slot_busy[x] = 10 ** 9
            for ii in range(3):
                S.add_v(lambda st=st, ii=ii: B.dma_w(st, ii), 19)
            b_claimed[0] += 1

    def issue_reads_upto(i_target):
        nonlocal issued_reads
        cnt = 0
        while issued_reads <= i_target and issued_reads < len(pairs):
            t, j, u = pairs[issued_reads]
            if u > visible:
                break
            if k.lg_out() >= 13:
                k.need(lg=k.lg[k.lg_done + 4])
            aread(issued_reads, j, u, 0)
            aread(issued_reads, j, u, 1)
            issued_reads += 1
            cnt += 2
        return cnt

    epi_start = {}
    for i, (t, j, u) in enumerate(pairs):
        if u % 36 == 35:
            epi_start[i + 2] = (u // 36) * 4 + j

    def do_barrier(t, upto):
        nonlocal visible
        if upto is None:
            S.force_v(lambda: k.vm.count(("bw", B.BI)) == 3)
            k.need(vm=("bw", B.BI))
            k.e("s_barrier")
            last_bar[0] = t
            return
        assert upto in slot_of, (t, upto, next_w, slot_busy, last_bar, deadline)
        if ("w", upto) not in k.vm:
            S.force_v(lambda: ("w", upto) in k.vm)
        k.need(vm=("w", upto))
        if t in (T_F0, T_F1):
            n_last = 3 if t == T_F0 else 7
            assert k.vm.count(("st", n_last)) == 2
            k.need(vm=("st", n_last))
        k.e("s_barrier")
        last_bar[0] = t
        visible = upto
        if t in (T_F0, T_F1):
            S.flush_open()
            assert not S.fill
            flag_store(k, 50, 64 if t == T_F0 else 32, 60)

    for i, (t, j, u) in enumerate(pairs):
        if first_of_step[t] == i:
            if t in ((0, 1, 4) if "su" in P["exp"] else (72, 88, 100, 108) if "tr" in P["exp"] else (0, 36, 52, 72) if "fp" not in P["exp"] else (0, 12, 24, 36)):
                k.stamp()
            pending_bar = None
            bi = BI
            if t % bi == 0 and t < 116:
                pending_bar = (t, min(t + bi, NU - 1))
            if t == 116:
                pending_bar = (t, None)
            if pending_bar and visible < t and t < NU:
                do_barrier(*pending_bar)
                pending_bar = None
            if not pending_bar:
                queue_dmas(t)
            if (t + P["xlead"]) % 4 == 0 and 1 <= (t + P["xlead"]) // 4 <= 8:
                s = (t + P["xlead"]) // 4
                x_convert(s)
                if s == 8:
                    x_done[0] = 35
            if (t + P["xlead"] - 1) % 4 == 0 and 1 <= (t + P["xlead"] - 1) // 4 <= 8:
                x_next((t + P["xlead"] - 1) // 4)
            if t == 38:
                S.add_v(lambda: nonce_issue(k, 60), 10)
            if t == 62:
                for th in B.setup_thunks(2):
                    S.add_f(th)
            if t == T_F0 - 3:
                S.add_f(lambda: nonce_get(k, 60), atomic=True)
                def fl():
                    k.e(f"s_lshl_b32 s48, s{S_RB}, 2")
                    k.e(f"s_add_u32 s48, s48, s{S_FQ}")
                    k.e("s_lshl_b32 s48, s48, 7")
                    k.e(f"s_add_u32 s48, s48, {FLAG_OFF}")
                    k.e(f"s_lshl_b32 s46, s{S_I2}, 2")
                    k.e("s_add_u32 s50, s46, s48")
                S.add_f(fl)
            if t == 90:
                assert not S.fill
                S.add_v(lambda: flag_load(k, 48, 64, 62, ("fl0",)), 10)
            if t == P["tb0"]:
                S.force_v(lambda: ("fl0",) in k.vm)
                flag_check(k, 48, 64, 6, 62, ("fl0",))
                for st in range(B.DB):
                    S.add_v(lambda st=st: B.load_b(st, 0), 19)
                    S.add_v(lambda st=st: B.load_b(st, 1), 19)
        if i in epi_start:
            add_epi(epi_start[i])
        c, ks = divmod(u, 36)
        n = c * 4 + j
        slot = n % 5
        if ks == 0 and n >= 5:
            assert all(v != n - 5 or key <= i for key, v in epi_start.items())
            if S.epi and S.epi[0][0] <= n - 5:
                S.force_epi(n - 5)
        af = vr(V_AF + (i % NB) * 4)
        issue_reads_upto(i)
        assert issued_reads > i
        needs_lg = [("af", i, 1)]
        if c == 0 and j == 0:
            if ("xf", ks, 1) not in k.lg:
                S.force_f(lambda: ("xf", ks, 1) in k.lg)
            needs_lg += [("xf", ks, 0), ("xf", ks, 1)]
        k.need(lg=needs_lg)
        for rt in range(2):
            a = acc(slot, rt)
            cin = "0" if ks == 0 else vr(a, 16)
            k.e(f"v_mfma_f32_32x32x16_bf16 {vr(a,16)}, {af}, {xf(ks,rt)}, {cin}")
            last_mfma_n[n] = k.n
            budget = GB
            if rt == 0 and pending_bar:
                do_barrier(*pending_bar)
                pending_bar = None
                queue_dmas(t)
                budget -= 3
            if rt == 0:
                budget -= issue_reads_upto(i + RA)
            else:
                budget -= 1
            S.gap(budget, GB)
    S.flush_open()
    S.force_f(lambda: not S.fill)
    assert b_claimed[0] == B.DW, b_claimed
    k.stamp()
    for i in sorted(epi_start):
        if i >= len(pairs):
            add_epi(epi_start[i])
    S.force_epi(9)
    F2_ST = P["f2st"]

    def pre_bar(st):
        if st == F2_ST:
            S.force_epi(11)
            k.need(vm=("st", 11))

    def post_bar(st):
        if st == F2_ST - P["f2lead"]:
            S.force_epi(11)
        if "tr" in P["exp"] and st in (2, 6, 12):
            S.flush_open()
            k.stamp()
        if st == F2_ST:
            S.flush_open()
            flag_store(k, 50, 0, 60)
        if st == 12 - B.DB - 2:
            S.add_v(lambda: flag_load(k, 48, 32, 2, ("fl1",)), 10)
        if st == 12 - B.DB:
            S.force_v(lambda: ("fl1",) in k.vm)
            flag_check(k, 48, 32, 6, 2, ("fl1",))
        if st == 24 - B.DB - 2:
            S.add_v(lambda: flag_load(k, 48, 0, 2, ("fl2",)), 10)
        if st == 24 - B.DB:
            S.force_v(lambda: ("fl2",) in k.vm)
            flag_check(k, 48, 0, 6, 2, ("fl2",))
            k.stamp()

    B.main(B.BI, S=S, pre_bar=pre_bar, post_bar=post_bar)


def phaseA_qkv(k, P):
    k.label("L_QKV")
    k.c("---------------- phase A: QKV + attention path ----------------")
    NST = 3
    WST = 28672
    HB = NST * WST
    GB = HB + NST * 2048
    assert GB <= XD
    PITCH = 448
    V_WD = 40
    V_TA = 47
    V_HA = 54
    V_HB = 57
    V_GW = 59
    V_HW = 60
    V_HV = 63
    V_GA = 64
    V_AF = 68
    V_TA2 = 84
    V_HA2 = 91
    V_XF = 96
    V_GF = 224
    V_HAF = 232
    V_HBF = 244
    NXS = 4

    def xfr(s, ksl, rt):
        return V_XF + ((s % NXS) * 8 + ksl * 2 + rt) * 4

    def xq(s, p):
        return vr(V_XF + ((s % NXS) * 8 + p) * 4)

    if P["early"]:
        k.e("s_waitcnt lgkmcnt(0)")
        if "su" in P["exp"]:
            k.stamp()
        srd(k, 8, 4, 5, 2048 * 1152)
        for p in range(8):
            x_dma_g(k, 0, p)
    k.e(f"s_lshl_b32 s{S_FG}, s{S_FQ}, 1")
    k.e(f"s_add_u32 s{S_FG}, s{S_FG}, s{S_I2}")
    k.e(f"s_sub_u32 s{S_FG}, s{S_FG}, 6")
    srd(k, 12, 6, 7, 576 * 3456)
    k.e(f"s_mul_i32 s46, s{S_WAVE}, {7*64}")
    k.e(f"s_mul_i32 s47, s{S_FG}, 144")
    k.e("s_mov_b32 s48, 3456")
    k.e(f"s_mul_i32 s{S_M0W}, s{S_WAVE}, {7*1024}")
    k.e(f"s_mul_i32 s{S_WBASE}, s{S_PW}, {64*3456}")
    k.e(f"s_lshl_b32 s{S_STBASE}, s{S_PW}, 7")

    def dma_w(s, ii):
        st = s % NST
        def f():
            if ii == 0 and s > 0:
                advance(k, S_PW, [(S_WBASE, 64 * 3456), (S_STBASE, 128)])
            k.e(f"s_add_u32 m0, s{S_M0W}, {st*WST + ii*1024}")
            k.e("s_nop 0")
            k.vmop(f"buffer_load_dwordx4 v{V_WD+ii}, s[12:15], s{S_WBASE} offen lds", ("w", s))
        return f

    for ii in range(7):
        k.e(f"v_add_u32 v2, s46, v0")
        k.e(f"v_add_u32 v2, {64*ii}, v2")
        k.e("v_mul_u32_u24 v3, 2341, v2")
        k.e("v_lshrrev_b32 v3, 16, v3")
        k.e("v_mul_u32_u24 v4, 28, v3")
        k.e("v_sub_u32 v4, v2, v4")
        k.e("v_mul_u32_u24 v5, 57, v4")
        k.e("v_lshrrev_b32 v5, 9, v5")
        k.e("v_mul_u32_u24 v6, 9, v5")
        k.e("v_sub_u32 v6, v4, v6")
        k.e("v_mul_lo_u32 v7, v3, s48")
        k.e("v_mul_u32_u24 v5, 1152, v5")
        k.e("v_add3_u32 v7, v7, v5, s47")
        k.e(f"v_lshl_add_u32 v{V_WD+ii}, v6, 4, v7")
        k.e("v_cmp_eq_u32 vcc, 27, v4")
        k.e("v_mov_b32 v4, 0x7ff00000")
        k.e("s_nop 0")
        k.e(f"v_cndmask_b32 v{V_WD+ii}, v{V_WD+ii}, v4, vcc")
        dma_w(0, ii)()
    k.e(f"s_and_b32 s46, s{S_WAVE}, 1")
    k.e("v_lshrrev_b32 v2, 3, v0")
    k.e("v_and_b32 v3, 7, v0")
    k.e("v_lshrrev_b32 v4, 1, v2")
    k.e("s_lshl_b32 s47, s46, 2")
    k.e("v_or_b32 v4, s47, v4")
    k.e("v_xor_b32 v3, v3, v4")
    k.e("v_mul_u32_u24 v7, 1152, v2")
    k.e("v_lshl_add_u32 v7, v3, 4, v7")
    k.e(f"s_lshl_b32 s47, s{S_RB}, 8")
    k.e("s_lshl_b32 s48, s46, 3")
    k.e("s_add_u32 s47, s47, s48")
    k.e("s_sub_u32 s47, s47, 16")
    k.e("s_mul_i32 s47, s47, 1152")
    k.e(f"v_add_u32 v{V_HV}, s47, v7")
    k.e("s_lshl_b32 s49, s46, 10")
    k.e(f"s_add_u32 s49, s49, {HB}")

    def dma_h(s):
        st = s % NST
        def f():
            k.e(f"s_add_u32 m0, s49, {st*2048}")
            k.e("s_nop 0")
            k.vmop(f"buffer_load_dwordx4 v{V_HV}, s[8:11], s{S_STBASE} offen lds", ("w", s))
        return f

    k.e(f"v_lshlrev_b32 v{V_L16}, 4, v0")
    dma_h(0)()
    for p in range(8):
        x_dma_g(k, 1, p)
    for ii in range(7):
        dma_w(1, ii)()
    dma_h(1)()
    common2(k, wr=False)
    k.e("v_lshrrev_b32 v2, 4, v0")
    k.e("v_bfe_u32 v3, v0, 2, 2")
    k.e("v_and_b32 v4, 3, v0")
    k.e("v_lshrrev_b32 v5, 1, v2")
    k.e("v_lshl_add_u32 v5, v5, 3, v3")
    k.e(f"v_mul_u32_u24 v5, {PITCH}, v5")
    k.e("v_and_b32 v6, 1, v2")
    k.e("v_lshl_add_u32 v5, v6, 5, v5")
    k.e(f"v_lshl_add_u32 v{V_TA}, v4, 3, v5")
    k.e(f"v_add_u32 v{V_TA2}, {2*WST}, v{V_TA}")
    k.e("v_lshl_add_u32 v5, v2, 3, v3")
    k.e(f"v_mul_u32_u24 v5, {PITCH}, v5")
    k.e("v_lshl_add_u32 v5, v4, 3, v5")
    k.e("v_and_b32 v10, 15, v0")
    k.e("v_mul_u32_u24 v10, 592, v10")
    k.e("v_lshl_add_u32 v10, v2, 4, v10")
    for i in range(3):
        k.e(f"s_mul_i32 s46, s{S_WAVE}, 3")
        k.e(f"s_add_u32 s46, s46, {i}")
        k.e("s_min_u32 s46, s46, 8")
        k.e("s_lshl_b32 s47, s46, 5")
        k.e("s_add_u32 s47, s47, 144")
        k.e(f"v_add_u32 v{V_HA+i}, s47, v5")
        k.e(f"v_add_u32 v{V_HA2+i}, {2*WST}, v{V_HA+i}")
        k.e("s_lshl_b32 s47, s46, 6")
        k.e(f"v_add_u32 v{V_HW+i}, s47, v10")
    k.e("v_and_b32 v5, 15, v0")
    k.e("v_bfe_u32 v6, v5, 1, 3")
    for k32 in range(2):
        k.e(f"v_add_u32 v7, {4*k32}, v2")
        k.e("v_xor_b32 v7, v7, v6")
        k.e("v_lshlrev_b32 v7, 4, v7")
        k.e("v_lshl_add_u32 v7, v5, 7, v7")
        k.e(f"v_add_u32 v{V_HB+k32}, {HB}, v7")

    def aread(i, s, ksl, T, half):
        st = s % NST
        off = (ksl * 16 + half * 4) * PITCH + (st % 2) * WST + 64 * T
        base = (V_TA2 if st >= 2 else V_TA)
        d = V_AF + (i % 4) * 4 + half * 2
        k.lgop(f"ds_read_b64_tr_b16 {vr(d,2)}, v{base} offset:{off}", ("af", i, half))

    def haread(s, k32, i, half):
        st = s % NST
        off = (k32 * 32 + half * 4) * PITCH + (st % 2) * WST
        base = (V_HA2 if st >= 2 else V_HA) + i
        d = V_HAF + i * 4 + half * 2
        k.lgop(f"ds_read_b64_tr_b16 {vr(d,2)}, v{base} offset:{off}", ("haf", s, k32, i, half))

    def accq(T, rt):
        return (T * 2 + rt) * 16
    A_H = 224

    S = Sched(k, P["q_rate"], 130)
    GB = P["gb"]

    def x_convert(s):
        def wx():
            S.force_v(lambda: k.vm.count(("x", s)) == 8)
            k.need(vm=("x", s))
        S.add_f(wx, atomic=True)
        for ksl in range(4):
            for rt in range(2):
                S.add_f(lambda ksl=ksl, rt=rt: k.lgop(
                    f"ds_read_b128 {vr(xfr(s, ksl, rt))}, v{V_XR+ksl} offset:{(s&1)*8192 + rt*4096}", ("xf", 4 * s + ksl, rt)))

    def guard():
        if k.lg_out() >= 13:
            k.need(lg=k.lg[k.lg_done + 4])

    def queue_stage(sw, sx):
        if sx is not None and sx <= 8:
            def w():
                k.need(lg=("xf", 4 * (sx - 2) + 3, 1))
            S.vq.append(([("call", w, None)], 0))
        for ii in range(8):
            if sx is not None and sx <= 8:
                S.add_v(lambda p=ii: x_dma_g(k, sx, p), 19)
            if sw is not None and sw <= 8:
                S.add_v(dma_w(sw, ii) if ii < 7 else dma_h(sw), 33 if ii < 7 else 19)

    x_convert(0)
    S.drain()
    k.need(vm=("w", 0))
    k.e("s_barrier")

    pairs = [(s, ksl, T) for s in range(9) for ksl in range(4) for T in range(7)]
    issued = 0
    visible = 0

    def issue_upto(it):
        nonlocal issued
        cnt = 0
        while issued <= it and issued < len(pairs):
            s, ksl, T = pairs[issued]
            if s > visible:
                break
            guard()
            aread(issued, s, ksl, T, 0)
            aread(issued, s, ksl, T, 1)
            issued += 1
            cnt += 2
        return cnt

    state = {"t0": False}

    def touches():
        def t0():
            k.e("v_mul_u32_u24 v2, 7282, v0")
            k.e("v_lshrrev_b32 v2, 16, v2")
            k.e("v_mul_u32_u24 v3, 9, v2")
            k.e("v_sub_u32 v3, v0, v3")
            k.e("v_min_u32 v2, 5, v2")
            k.e("v_mul_u32_u24 v2, 1152, v2")
            k.e("v_lshl_add_u32 v2, v3, 7, v2")
            srd(k, 60, 52, 53, 4608 * 1152)
            k.e(f"s_sub_u32 s48, s{S_IDX}, 24")
            k.e("s_lshl_b32 s48, s48, 2")
            k.e(f"s_add_u32 s48, s48, s{S_WAVE}")
            k.e(f"s_lshr_b32 s46, s{S_RB}, 2")
            k.e("s_lshl_b32 s46, s46, 5")
            k.e("s_add_u32 s48, s48, s46")
            k.e(f"s_lshl_b32 s47, s{S_FQ}, 6")
            k.e("s_add_u32 s48, s48, s47")
            k.e(f"s_mul_i32 s50, s48, {6*1152}")
        S.add_f(t0)
        S.add_f(lambda: state.update(t0=True), atomic=True)
        return

    def touches2():
        for c in range(3):
            def tc(c=c):
                k.e(f"s_add_u32 s47, s50, {c*1536*1152}")
                k.vmop("buffer_load_dword v1, v2, s[60:63], s47 offen", ("touch",))
            S.add_v(tc, 127)
        def tw():
            srd(k, 60, 56, 57, 576 * 1152)
            k.vmop("buffer_load_dword v1, v2, s[60:63], s50 offen", ("touch",))
        S.add_v(tw, 127)

    for i, (s, ksl, T) in enumerate(pairs):
        ks = 4 * s + ksl
        pend = False
        if ksl == 0 and T == 0 and s in (0, 2):
            k.stamp()
        if ksl == 3 and T == 0 and s + 1 <= 8:
            pend = True
        pend0 = (ksl == 0 and T == 0 and s + 2 <= 8)
        if ksl == 2 and T == 3 and s + 1 <= 8:
            x_convert(s + 1)
        if P["touch2"] and s == 7 and ksl == 0 and T == 1:
            touches()
        if P["touch2"] and s == 7 and ksl == 1 and T == 1:
            S.force_f(lambda: state["t0"])
            touches2()
        if s == 6 and ksl == 1 and T == 1:
            S.add_v(lambda: nonce_issue(k, 252), 10)
        if T == 0 and ksl % 2 == 0:
            guard()
            k32 = ksl // 2
            k.lgop(f"ds_read_b128 {vr(V_HBF + k32*4)}, v{V_HB+k32} offset:{(s%NST)*2048}", ("hbf", s, k32))
        issue_upto(i)
        assert issued > i
        need = [("af", i, 1)]
        if T == 0:
            if ("xf", ks, 1) not in k.lg:
                S.force_f(lambda: ("xf", ks, 1) in k.lg)
            need += [("xf", ks, 0), ("xf", ks, 1)]
        k.need(lg=need)
        af = vr(V_AF + (i % 4) * 4)
        for rt in range(2):
            a = accq(T, rt)
            cin = "0" if ks == 0 else ar(a, 16)
            k.e(f"v_mfma_f32_32x32x16_bf16 {ar(a,16)}, {af}, {vr(xfr(s,ksl,rt))}, {cin}")
            budget = GB
            if rt == 0 and pend:
                if k.vm.count(("w", s + 1)) != 8:
                    S.force_v(lambda: k.vm.count(("w", s + 1)) == 8)
                k.need(vm=("w", s + 1))
                k.e("s_barrier")
                visible = s + 1
                budget -= 3
            if rt == 0 and pend0:
                if s >= 1:
                    k.e("s_barrier")
                    budget -= 2
                queue_stage(s + 2, s + 2)
            if rt == 0:
                budget -= issue_upto(i + 3)
                if ksl % 2 == 0 and T in (1, 2, 3):
                    guard()
                    haread(s, ksl // 2, T - 1, 0)
                    haread(s, ksl // 2, T - 1, 1)
                    budget -= 2
            else:
                budget -= 1
            S.gap(budget, GB)
        if ksl % 2 == 0 and T in (4, 5, 6):
            k32 = ksl // 2
            hi = T - 4
            k.need(lg=[("haf", s, k32, hi, 1), ("hbf", s, k32)])
            a = A_H + hi * 4
            cin = "0" if ks == 0 else ar(a, 4)
            k.e(f"v_mfma_f32_16x16x32_bf16 {ar(a,4)}, {vr(V_HAF+hi*4)}, {vr(V_HBF+k32*4)}, {cin}")
    S.drain()
    k.wait_all(vm=False)
    k.e("s_nop 7")
    k.e("s_nop 7")
    k.e("s_barrier")
    k.stamp()
    k.e("v_and_b32 v2, 31, v0")
    k.e("v_lshrrev_b32 v3, 5, v0")
    k.e(f"s_lshl_b32 s46, s{S_WAVE}, 6")
    k.e("s_add_u32 s46, s46, 16")
    k.e("v_add_u32 v4, s46, v2")
    k.e("v_mul_u32_u24 v4, 592, v4")
    k.e("v_lshl_add_u32 v8, v3, 4, v4")
    k.e("v_mul_u32_u24 v5, 144, v3")
    k.e("v_add_u32 v4, v4, v5")
    V_Q = 84
    combos = [(T, qq) for T in range(7) for qq in range(4)]
    for rt in range(2):
        for (T, qq) in combos:
            g2 = 8 * T + 2 * qq
            if g2 < 18:
                guard()
                k.lgop(f"ds_write_b128 v8, {ar(accq(T, rt) + qq*4)} offset:{rt*18944 + g2*16}", ("qw",))
    for rt in range(2):
        for g9 in range(9):
            guard()
            k.lgop(f"ds_read_b128 {vr(V_Q + rt*36 + g9*4)}, v4 offset:{rt*18944 + g9*16}", ("qr",))
    for rt in range(2):
        for (T, qq) in combos:
            g2 = 8 * T + 2 * qq
            if 18 <= g2 < 54:
                guard()
                k.lgop(f"ds_write_b128 v8, {ar(accq(T, rt) + qq*4)} offset:{rt*18944 + (g2-18)*16}", ("kvw",))
    for hi in range(3):
        guard()
        k.lgop(f"ds_write_b128 v{V_HW+hi}, {ar(A_H+hi*4)}", ("kvw",))
    sc = (18 ** -0.5) * LOG2E
    k.e(f"s_mov_b32 s48, 0x{f2u(sc):08x}")
    k.wait_all(vm=False)
    nonce_get(k, 252)
    k.e("s_barrier")
    k.stamp()
    k.e(f"s_lshl_b32 s46, s{S_RB}, 2")
    k.e(f"s_add_u32 s46, s46, s{S_WAVE}")
    k.e("s_lshl_b32 s46, s46, 6")
    k.e("v_add_u32 v5, s46, v2")
    k.e(f"v_subrev_u32 v9, {14*592}, v4")
    V_K = 160
    V_L = 232
    V_P = 10
    V_O = 40
    V_SA = 240
    k.e(f"s_mul_i32 s47, s{S_FG}, {9*512}")
    k.e(f"v_mul_u32_u24 v6, {5*512}, v3")
    k.e("v_lshl_add_u32 v7, v2, 4, s47")
    k.e(f"v_add_u32 v{V_SA}, v6, v7")
    k.e(f"v_mul_u32_u24 v6, {NKB*1024}, v3")
    k.e(f"v_add3_u32 v{V_SA+1}, v6, v7, 0")
    k.e(f"v_add_u32 v{V_SA+1}, {4*512}, v{V_SA+1}")
    k.e(f"s_lshl_b32 s46, s{S_RB}, 3")
    k.e(f"s_lshl_b32 s47, s{S_WAVE}, 1")
    k.e("s_add_u32 s46, s46, s47")
    k.e(f"s_mul_i32 s{S_STBASE}, s46, {NKB*1024}")

    def kvread(rt, w, isv, buf):
        off = rt * 18944 + (14 - 2 * w) * 592 + isv * 288
        for g in range(9):
            k.lgop(f"ds_read_b128 {vr(V_K + buf*36 + g*4)}, v9 offset:{off + g*16}", ("kv", rt, w, isv))

    for rt in range(2):
        q = V_Q + rt * 36
        kvread(rt, 0, 0, 0)
        for w in range(8):
            buf = w & 1
            k.need(lg=("kv", rt, w, 0))
            if w + 1 < 8:
                kvread(rt, w + 1, 0, buf ^ 1)
            else:
                kvread(rt, 0, 1, buf ^ 1)
            kb = V_K + buf * 36
            for d in range(9):
                for e in range(2):
                    a = q + e * 18 + 2 * d
                    b = kb + e * 18 + 2 * d
                    l = V_L + e * 4 + (d & 1) * 2
                    if d < 2:
                        k.e(f"v_pk_mul_f32 {vr(l,2)}, {vr(a,2)}, {vr(b,2)}")
                    else:
                        k.e(f"v_pk_fma_f32 {vr(l,2)}, {vr(a,2)}, {vr(b,2)}, {vr(l,2)}")
            for e in range(2):
                k.e(f"v_pk_add_f32 {vr(V_L+e*4,2)}, {vr(V_L+e*4,2)}, {vr(V_L+e*4+2,2)}")
            for e in range(2):
                k.e(f"v_add_f32 v{V_P + e*8 + w}, v{V_L+e*4}, v{V_L+e*4+1}")
        k.e(f"v_add_u32 v26, {32*rt}, v5")
        k.e("v_mov_b32 v27, 0xff7fffff")
        for w in range(1, 8):
            k.e(f"v_cmp_le_u32 vcc, {2*w}, v26")
            k.e("s_nop 1")
            for e in range(2):
                k.e(f"v_cndmask_b32 v{V_P+e*8+w}, v27, v{V_P+e*8+w}, vcc")
        for e in range(2):
            p = V_P + e * 8
            m = 28 + e
            k.e(f"v_max3_f32 v{m}, v{p}, v{p+1}, v{p+2}")
            k.e(f"v_max3_f32 v{m}, v{m}, v{p+3}, v{p+4}")
            k.e(f"v_max3_f32 v{m}, v{m}, v{p+5}, v{p+6}")
            k.e(f"v_max_f32 v{m}, v{m}, v{p+7}")
        for e in range(2):
            p = V_P + e * 8
            for w in range(8):
                k.e(f"v_sub_f32 v{p+w}, v{p+w}, v{28+e}")
            for w in range(8):
                k.e(f"v_mul_f32 v{p+w}, s48, v{p+w}")
        for e in range(2):
            p = V_P + e * 8
            for w in range(8):
                k.e(f"v_exp_f32 v{p+w}, v{p+w}")
        k.e("s_nop 0")
        for e in range(2):
            p = V_P + e * 8
            k.e(f"v_add_f32 v{28+e}, v{p}, v{p+1}")
        for w in range(2, 8):
            for e in range(2):
                p = V_P + e * 8
                k.e(f"v_add_f32 v{28+e}, v{28+e}, v{p+w}")
        for e in range(2):
            k.e(f"v_rcp_f32 v{28+e}, v{28+e}")
        k.e("s_nop 0")
        for e in range(2):
            p = V_P + e * 8
            for w in range(8):
                k.e(f"v_mul_f32 v{p+w}, v{p+w}, v{28+e}")
        for w in range(8):
            buf = (w & 1)
            k.need(lg=("kv", rt, w, 1))
            if w + 1 < 8:
                kvread(rt, w + 1, 1, buf ^ 1)
            vb = V_K + buf * 36
            for e in range(2):
                p = V_P + e * 8 + w
                pe = p & ~1
                sel = p & 1
                for d in range(9):
                    o = V_O + e * 18 + 2 * d
                    b = vb + e * 18 + 2 * d
                    if w == 0:
                        k.e(f"v_pk_mul_f32 {vr(o,2)}, {vr(pe,2)}, {vr(b,2)} op_sel:[{sel},0] op_sel_hi:[{sel},1]")
                    else:
                        k.e(f"v_pk_fma_f32 {vr(o,2)}, {vr(pe,2)}, {vr(b,2)}, {vr(o,2)} op_sel:[{sel},0,0] op_sel_hi:[{sel},1,1]")
        for a in range(9):
            d = q + a * 2
            k.e(f"v_cvt_pk_bf16_f32 v{d}, v{V_O+4*a}, v{V_O+4*a+1}")
            k.e(f"v_cvt_pk_bf16_f32 v{d+1}, v{V_O+4*a+2}, v{V_O+4*a+3}")
        k.e("v_cmp_ne_u32 vcc, 0, v3")
        k.e(f"s_add_u32 s{S_T2}, s{S_STBASE}, {rt*NKB*1024}")
        k.e("s_nop 0")
        for i in range(16):
            k.e(f"v_cndmask_b32 v{q+20+i}, v{q+i}, v{q+i+2}, vcc")
        for i in range(2):
            k.e(f"v_cndmask_b32 v{V_SA+4+2*rt+i}, v{q+16+i}, v{q+i}, vcc")
        for m in range(4):
            k.vmop(f"buffer_store_dwordx4 {vr(q+20+4*m)}, v{V_SA}, s[16:19], s{S_T2} offen offset:{m*512} sc0 sc1", ("st",))
    k.e("s_nop 1")
    k.e(f"v_permlane32_swap_b32 v{V_SA+4}, v{V_SA+6}")
    k.e(f"v_permlane32_swap_b32 v{V_SA+5}, v{V_SA+7}")
    k.e("s_nop 1")
    k.vmop(f"buffer_store_dwordx4 {vr(V_SA+4)}, v{V_SA+1}, s[16:19], s{S_STBASE} offen sc0 sc1", ("st",))
    k.stamp()


S_RT, S_NT, S_SPLIT = 65, 66, 49
S_SEG = 64
S_M0B = 38
S_PB, S_GA, S_OA, S_LATE = 36, 39, 3, 37
S_SG = 24
S_BB = 67
S_FL = 35


class PhaseB:
    LB = 49152

    def __init__(self, k, P, is_o):
        self.k, self.P, self.is_o = k, P, is_o
        self.NS = 18 if is_o else 36
        self.RS = 9
        self.DW = 8 - P["b_bi"]
        self.DB = P["b_db"]
        self.SL = 12288
        self.V_WD = [32, 33, 34]
        self.V_AE = [35, 36, 37, 38, 31, 30]
        self.V_SC = 8
        self.V_T = 10
        self.V_AF = 64
        self.NAF = 8
        self.RA = P["b_ra"]
        self.BI = P["b_bi"]
        self.V_ACC = 160
        self.NBB = self.DB + 1
        self.in_main = False

    def pos(self, st):
        return (8 - st) % 9

    def setup_thunks(self, t):
        k, P = self.k, self.P
        th = []

        def f0():
            if self.is_o:
                k.e(f"s_and_b32 s46, s{S_FG}, 1")
                k.e(f"s_lshr_b32 s{S_NT}, s{S_FG}, 1")
                k.e(f"s_mov_b32 s{S_SPLIT}, 4")
                srd(k, 60, 56, 57, 576 * 1152)
            else:
                k.e(f"s_and_b32 s46, s{S_I2}, 1")
                k.e(f"s_lshr_b32 s{S_NT}, s{S_I2}, 1")
                k.e(f"s_mov_b32 s{S_SPLIT}, s{S_FQ}")
                srd(k, 60, 52, 53, 4608 * 1152)
            k.e(f"s_lshl_b32 s{S_RT}, s{S_RB}, 1")
            k.e(f"s_add_u32 s{S_RT}, s{S_RT}, s46")
        th.append(f0)

        def f1():
            k.e(f"s_mul_i32 s{S_SEG}, s{S_WAVE}, {8*1152}")
            k.e(f"s_mul_i32 s46, s{S_NT}, 384")
            k.e(f"s_add_u32 s{S_SEG}, s{S_SEG}, s46")
            if not self.is_o:
                k.e(f"s_mul_i32 s46, s{S_SPLIT}, {384*1152}")
                k.e(f"s_add_u32 s{S_SEG}, s{S_SEG}, s46")
            k.e(f"s_mul_i32 s{S_M0B}, s{S_WAVE}, 3072")
        th.append(f1)

        def f2():
            k.e(f"s_lshl_b32 s46, s{S_RT}, 2")
            k.e(f"s_add_u32 s46, s46, s{S_WAVE}")
            k.e(f"s_mul_i32 s46, s46, {NKB}")
            if not self.is_o:
                k.e(f"s_mul_i32 s{S_BB}, s{S_SPLIT}, 72")
                k.e(f"s_add_u32 s46, s46, s{S_BB}")
                k.e("s_add_u32 s46, s46, 36")
            k.e(f"s_lshl_b32 s{S_BB}, s46, 10")
        th.append(f2)
        for i in range(3):
            def g0(i=i):
                k.e(f"v_add_u32 v{t}, {64*i}, v0")
                k.e(f"v_mul_u32_u24 v{t+1}, 2731, v{t}")
                k.e(f"v_lshrrev_b32 v{t+1}, 16, v{t+1}")
                k.e(f"v_mul_u32_u24 v{t+2}, 24, v{t+1}")
                k.e(f"v_sub_u32 v{t+2}, v{t}, v{t+2}")
            def g1(i=i):
                k.e(f"v_bfe_u32 v{t+3}, v{t+1}, 1, 1")
                k.e(f"v_lshlrev_b32 v{t+3}, 2, v{t+3}")
                k.e(f"v_xor_b32 v{t+2}, v{t+2}, v{t+3}")
                if not self.is_o:
                    k.e(f"s_mul_i32 s46, s{S_SPLIT}, 6")
                    k.e(f"v_add_u32 v{t+2}, s46, v{t+2}")
                    k.e(f"v_subrev_u32 v{t+3}, 24, v{t+2}")
                    k.e(f"v_min_u32 v{t+2}, v{t+2}, v{t+3}")
                k.e(f"v_mul_u32_u24 v{t+1}, 1152, v{t+1}")
                k.e(f"v_lshl_add_u32 v{self.V_WD[i]}, v{t+2}, 4, v{t+1}")
                if i:
                    k.e(f"v_subrev_u32 v{self.V_WD[i]}, {i*1024}, v{self.V_WD[i]}")
            th += [g0, g1]

        def h0():
            k.e(f"v_lshrrev_b32 v{t}, 4, v0")
            k.e(f"v_bfe_u32 v{t+1}, v0, 2, 2")
            k.e(f"v_and_b32 v{t+2}, 3, v0")
            k.e(f"v_lshrrev_b32 v{t+3}, 1, v{t}")
            k.e(f"v_lshl_add_u32 v{t+3}, v{t+3}, 3, v{t+1}")
        def h1():
            k.e(f"v_mul_u32_u24 v{t+3}, 384, v{t+3}")
            k.e(f"v_and_b32 v{t+4}, 1, v{t}")
            k.e(f"v_lshl_add_u32 v{t+3}, v{t+4}, 5, v{t+3}")
            k.e(f"v_lshl_add_u32 v{t+3}, v{t+2}, 3, v{t+3}")
            k.e(f"v_lshrrev_b32 v{t+4}, 1, v{t+1}")
        def h2():
            ae = self.V_AE
            k.e(f"v_lshlrev_b32 v{t+4}, 6, v{t+4}")
            k.e(f"v_add_u32 v{t+3}, {self.LB}, v{t+3}")
            k.e(f"v_add_u32 v{ae[0]}, v{t+3}, v{t+4}")
            k.e(f"v_sub_u32 v{ae[1]}, v{t+3}, v{t+4}")
            k.e(f"v_add_u32 v{ae[1]}, 64, v{ae[1]}")
        def h3():
            ae = self.V_AE
            for z in (1, 2):
                k.e(f"v_add_u32 v{ae[2*z]}, {z*4*self.SL}, v{ae[0]}")
                k.e(f"v_add_u32 v{ae[2*z+1]}, {z*4*self.SL}, v{ae[1]}")
        th += [h0, h1, h2, h3]
        return th

    def dma_w(self, st, i):
        k = self.k
        seg, r = divmod(st, 12)
        segstride = 384 if self.is_o else 1536
        if i == 0 or not self.in_main:
            k.e(f"s_add_u32 m0, s{S_M0B}, {self.LB + self.pos(st)*self.SL}")
            k.e(f"s_add_u32 s{S_T1}, s{S_SEG}, {(seg*segstride + r*32)*1152}")
        k.vmop(f"buffer_load_dwordx4 v{self.V_WD[i]}, s[60:63], s{S_T1} offen offset:{i*1024} lds", ("bw", st))

    def bfr(self, st, kh):
        return ((st % self.NBB) * 2 + kh) * 4

    def load_b(self, st, kh):
        k = self.k
        if kh == 0 or not self.in_main:
            k.e(f"s_add_u32 s{S_T0}, s{S_BB}, {st*2048}")
        k.vmop(f"buffer_load_dwordx4 {ar(self.bfr(st,kh))}, v{V_L16}, s[16:19], s{S_T0} offen offset:{kh*1024} {self.P['ldscope']}", ("b", st, kh))

    def aread(self, i, st, kh, a, half):
        k = self.k
        z, sl = divmod(self.pos(st), 4)
        off = sl * self.SL + (16 * kh + 4 * half) * 384
        be, bo = self.V_AE[2 * z], self.V_AE[2 * z + 1]
        if a % 2 == 0:
            base, off = be, off + a * 64
        else:
            base, off = bo, off + (a - 1) * 64
        assert 0 <= off < 65536
        d = self.V_AF + (i % self.NAF) * 4 + half * 2
        k.lgop(f"ds_read_b64_tr_b16 {vr(d,2)}, v{base} offset:{off}", ("baf", i, half))

    def main(self, visible, S=None, pre_bar=None, post_bar=None):
        k, P = self.k, self.P
        NS, DW, DB = self.NS, self.DW, self.DB
        if S is None:
            S = Sched(k, P["brate"], P["vcap"])
        S.rate = P["brate"]
        self.in_main = True
        GB = P["gb"]
        ops = [(st, kh, a) for st in range(NS - 1) for kh in range(2) for a in range(6)]
        ops += [(NS - 1, kh, a) for a in (2, 3, 4, 5, 1, 0) for kh in range(2)]
        issued = 0
        lastn = {}
        prev_ready = S.ready

        def ready(n, force):
            if n < 100:
                return prev_ready(n, force)
            gap = k.n - lastn[n]
            if gap >= 13:
                return True
            if force:
                k.e(f"s_nop {min(15, 13 - gap)}")
                return True
            return False
        S.ready = ready

        hissued = 0

        def issue_h(nmax, it):
            nonlocal issued, hissued
            cnt = 0
            while cnt < nmax and hissued // 2 <= it and hissued // 2 < len(ops):
                i_, half = divmod(hissued, 2)
                st, kh, a = ops[i_]
                if st > visible or k.lg_out() >= 15:
                    break
                self.aread(i_, st, kh, a, half)
                hissued += 1
                issued = hissued // 2
                cnt += 1
            return cnt

        def issue_upto(it):
            return issue_h(1000, it)

        BI = self.BI

        def boundary(st):
            nonlocal visible
            if st >= 1 and st % BI == 0:
                upto = min(st + BI, NS - 1)
                if upto > visible:
                    if k.vm.count(("bw", upto)) != 3:
                        S.force_v(lambda: k.vm.count(("bw", upto)) == 3)
                    k.need(vm=("bw", upto))
                    visible = upto
                if pre_bar:
                    pre_bar(st)
                k.e("s_barrier")
            if post_bar and st >= 1:
                post_bar(st)
            if st + DB < NS:
                S.add_v(lambda st=st: self.load_b(st + DB, 0), 19)
                S.add_v(lambda st=st: self.load_b(st + DB, 1), 19)
            if st + DW < NS:
                for ii in range(3):
                    S.add_v(lambda st=st, ii=ii: self.dma_w(st + DW, ii), 19)
            if st == NS - 7:
                for th in self.epi_setup():
                    S.add_f(th)
            if not self.is_o:
                if st == NS - P["ochk"] - 2:
                    S.force_f(lambda: not S.fill)
                    S.add_v(lambda: flag_load(k, S_FL, 16, 2, ("flo",)), 10)
                if st == NS - P["ochk"]:
                    S.force_v(lambda: ("flo",) in k.vm)
                    flag_check(k, S_FL, 16, 2, 2, ("flo",))
                    S.add_v(lambda: k.vmop(f"buffer_load_dword v{self.V_SC}, v{self.V_T+2}, s[16:19], s{S_GA} offen sc0 sc1", ("g",)), 10)
                    for pr in range(3):
                        def ld4(pr=pr):
                            k.e(f"s_add_u32 s{S_T2}, s{S_PB}, {4*4*12288}")
                            k.vmop(f"buffer_load_dwordx4 {vr(144+pr*4)}, v{V_L16}, s[16:19], s{S_T2} offen offset:{pr*1024} sc0 sc1", ("pl4",))
                        S.add_v(ld4, 19)

        first_in_step = {}
        for i, (st, kh, a) in enumerate(ops):
            first_in_step.setdefault(st, i)
        for i, (st, kh, a) in enumerate(ops):
            issue_upto(i)
            assert issued > i
            if ("b", st, kh) not in k.vm:
                S.force_v(lambda: ("b", st, kh) in k.vm)
            k.need(vm=("b", st, kh))
            if P["b_pair"] == 1 and i % 2 == 0:
                k.need(lg=("baf", max(i, min(i + 1, issued - 1)), 1))
            else:
                k.need(lg=("baf", i, 1))
            ac = self.V_ACC + a * 16
            cin = "0" if (st == 0 and kh == 0) else vr(ac, 16)
            k.e(f"v_mfma_f32_32x32x16_bf16 {vr(ac,16)}, {vr(self.V_AF+(i%self.NAF)*4)}, {ar(self.bfr(st,kh))}, {cin}")
            budget = GB
            if st == NS - 1 and kh == 1:
                assert not S.fill
                lastn[100 + a] = k.n
                for pr in (2 * a, 2 * a + 1):
                    if pr < 3 and not self.is_o:
                        continue
                    a0 = self.V_ACC + pr * 8
                    pk = 96 + pr * 4
                    for r in range(4):
                        S.epi.append((100 + a, [("e", f"v_cvt_pk_bf16_f32 v{pk+r}, v{a0+2*r}, v{a0+2*r+1}", None)]))
                    g_, r_ = divmod(pr, 3)
                    S.epi.append((100 + a, [("e", "s_nop 0", None),
                                            ("vm", f"buffer_store_dwordx4 {vr(pk)}, v{V_L16}, s[16:19], s{S_SG+g_} offen offset:{r_*1024} sc0 sc1", ("pst",))]))
            if first_in_step[st] == i:
                n0 = k.n
                boundary(st)
                budget -= (k.n - n0)
            if P["b_pair"] == 1:
                if i % 2 == 0:
                    budget -= issue_upto(i + self.RA)
                else:
                    budget -= 1
            elif P["b_pair"] == 2:
                vm_next = bool(S.open) and S.open[0][0] == "vm"
                if vm_next:
                    S._emit(S.open.pop(0))
                    issue_h(P["b_rv"], i + self.RA)
                    budget = 1
                else:
                    budget -= issue_h(P["b_rn"], i + self.RA) + 1
                    budget = min(budget, COST["vm"] - 1)
            else:
                budget -= issue_upto(i + self.RA) + 1
            S.gap(budget, GB)
        S.drain()
        k.stamp()
        S.force_epi(1000)

    def epi_setup(self):
        k = self.k
        t = self.V_T
        th = []

        def f0():
            k.e(f"s_mul_i32 s46, s{S_RT}, 3")
            k.e(f"s_add_u32 s46, s46, s{S_NT}")
            k.e(f"s_add_u32 s{S_FL}, s46, 40")
            k.e(f"s_lshl_b32 s{S_FL}, s{S_FL}, 7")
            k.e(f"s_add_u32 s{S_FL}, s{S_FL}, {FLAG_OFF}")
            k.e("s_mul_i32 s46, s46, 20")
            k.e(f"s_add_u32 s46, s46, s{S_WAVE}")
            k.e(f"s_mul_i32 s{S_PB}, s46, 12288")
            k.e(f"s_add_u32 s{S_PB}, s{S_PB}, {PART_OFF}")
            k.e(f"s_mul_i32 s46, s{S_SPLIT}, {4*12288}")
            k.e(f"s_add_u32 s47, s{S_PB}, s46")
            for g in range(4):
                if self.is_o:
                    k.e(f"s_add_u32 s{S_SG+g}, s47, {g*3072}")
                else:
                    k.e(f"s_add_u32 s46, s{S_SPLIT}, {g}")
                    k.e("s_and_b32 s46, s46, 3")
                    k.e("s_mul_i32 s46, s46, 3072")
                    k.e(f"s_add_u32 s{S_SG+g}, s47, s46")
            k.e(f"s_lshl_b32 s46, s{S_SPLIT}, 2")
            k.e(f"s_add_u32 s50, s46, s{S_FL}")
        th.append(f0)
        if not self.is_o:
            def f1():
                k.e(f"s_mul_i32 s46, s{S_SPLIT}, 3072")
                k.e(f"s_add_u32 s{S_PB}, s{S_PB}, s46")
                k.e(f"s_lshl_b32 s46, s{S_RT}, 2")
                k.e(f"s_add_u32 s46, s46, s{S_WAVE}")
                k.e(f"s_lshl_b32 s{S_GA}, s46, 7")
                k.e(f"s_add_u32 s{S_GA}, s{S_GA}, {G_OFF}")
                k.e(f"s_mul_i32 s{S_OA}, s46, {32*1152}")
                k.e(f"s_mul_i32 s46, s{S_NT}, 384")
                k.e(f"s_add_u32 s{S_OA}, s{S_OA}, s46")
                k.e(f"s_mul_i32 s46, s{S_SPLIT}, 96")
                k.e(f"s_add_u32 s{S_OA}, s{S_OA}, s46")
                srd(k, 8, 28, 29, 2048 * 576 * 2)
            def f2():
                k.e(f"v_and_b32 v{t+2}, 31, v0")
                k.e(f"v_mul_u32_u24 v{t+3}, 1152, v{t+2}")
                k.e(f"v_lshlrev_b32 v{t+2}, 2, v{t+2}")
                k.e(f"v_lshrrev_b32 v{t+4}, 5, v0")
                k.e(f"v_lshl_add_u32 v{t+3}, v{t+4}, 4, v{t+3}")
            th += [f1, f2]
        return th

    def t4(self):
        k, sc = self.k, self.V_SC
        for d in range(12):
            k.e(f"v_lshlrev_b32 v{64+2*d}, 16, v{144+d}")
            k.e(f"v_and_b32 v{64+2*d+1}, 0xffff0000, v{144+d}")
        for d in range(24):
            k.e(f"v_mul_f32 v{64+d}, v{sc}, v{64+d}")
        k.e(f"v_sub_f32 v{sc}, 1.0, v{sc}")

    def epilogue(self):
        k = self.k
        k.stamp()
        if not self.is_o:
            k.need(vm=("pl4",))
            self.t4()
        publish(k, 50, self.V_T, ("pst",))
        k.stamp()

    def phaseC(self):
        k, P = self.k, self.P
        t, sc = self.V_T, self.V_SC
        poll(k, S_FL, 4, t)
        k.stamp()
        L, A, TT = 96, self.V_ACC, 192
        for o in range(1, 4):
            k.e(f"s_add_u32 s46, s{S_SPLIT}, {o}")
            k.e("s_and_b32 s46, s46, 3")
            k.e(f"s_mul_i32 s46, s46, {4*12288}")
            k.e(f"s_add_u32 s{S_T0}, s{S_PB}, s46")
            for pr in range(3):
                k.vmop(f"buffer_load_dwordx4 {vr(L + ((o-1)*3+pr)*4)}, v{V_L16}, s[16:19], s{S_T0} offen offset:{pr*1024} sc0 sc1", ("pl", o))
        for o in range(1, 4):
            k.need(vm=("pl", o))
            for d in range(12):
                src = L + (o - 1) * 12 + d
                k.e(f"v_lshlrev_b32 v{TT+2*d}, 16, v{src}")
                k.e(f"v_and_b32 v{TT+2*d+1}, 0xffff0000, v{src}")
            for d in range(12):
                k.e(f"v_pk_add_f32 {vr(A+2*d,2)}, {vr(A+2*d,2)}, {vr(TT+2*d,2)}")
        for d in range(24):
            k.e(f"v_fma_f32 v{A+d}, v{sc}, v{A+d}, v{64+d}")
        for d in range(12):
            k.e(f"v_cvt_pk_bf16_f32 v{TT+d}, v{A+2*d}, v{A+2*d+1}")
        k.e("s_nop 1")
        for pr in range(3):
            b = TT + pr * 4
            k.e(f"v_permlane32_swap_b32 v{b}, v{b+2}")
            k.e(f"v_permlane32_swap_b32 v{b+1}, v{b+3}")
        k.e("s_nop 1")
        for pr in range(3):
            k.vmop(f"buffer_store_dwordx4 {vr(TT+pr*4)}, v{t+3}, s[8:11], s{S_OA} offen offset:{pr*32}{P['oscope']}", ("ost",))
        if k.stamps_on:
            k.wait_all()
        k.stamp()


def gate_wg(k, P):
    k.c("---------------- gate rows ----------------")
    srd(k, 20, 54, 55, 1152)
    k.e("v_and_b32 v3, 7, v0")
    k.e("v_lshlrev_b32 v3, 4, v3")
    GW = 64
    for s in range(9):
        k.vmop(f"buffer_load_dwordx4 {vr(GW+4*s)}, v3, s[20:23], 0 offen offset:{s*128}", ("gw",))
    k.e(f"s_lshl_b32 s46, s{S_RB}, 1")
    k.e(f"s_add_u32 s46, s46, s{S_FG}")
    k.e(f"s_sub_u32 s49, s46, 6")
    k.e(f"s_lshl_b32 s46, s49, 2")
    k.e(f"s_add_u32 s46, s46, s{S_WAVE}")
    k.e(f"s_mul_i32 s{S_XS}, s46, {32*1152}")
    k.e(f"s_add_u32 s{S_XS+1}, s{S_XS}, {16*1152}")
    k.e("s_lshl_b32 s48, s46, 7")
    k.e(f"s_add_u32 s48, s48, {G_OFF}")
    X = 100
    for p in range(4):
        for s in range(9):
            v = V_XL if p % 2 == 0 else V_XL2
            k.vmop(f"buffer_load_dwordx4 {vr(X+(p*9+s)*4)}, v{v}, s[8:11], s{S_XS+p//2} offen offset:{s*128}", ("gx", p))
    for p in range(4):
        k.e(f"v_mov_b32 v{4+p}, 0")
    for p in range(4):
        k.need(vm=("gx", p))
        for s in range(9):
            for d in range(4):
                k.e(f"v_dot2_f32_bf16 v{4+p}, v{X+(p*9+s)*4+d}, v{GW+4*s+d}, v{4+p}")
    k.e("s_nop 3")
    for m in (1, 2, 4):
        for p in range(4):
            k.lgop(f"ds_swizzle_b32 v{8+p}, v{4+p} offset:{(m << 10) | 0x1f}", ("sw",))
        k.wait_all(vm=False)
        for p in range(4):
            k.e(f"v_add_f32 v{4+p}, v{4+p}, v{8+p}")
    for p in range(4):
        k.e(f"v_mul_f32 v{4+p}, 0x{f2u(-LOG2E):08x}, v{4+p}")
    for p in range(4):
        k.e(f"v_exp_f32 v{4+p}, v{4+p}")
    k.e("s_nop 0")
    for p in range(4):
        k.e(f"v_add_f32 v{4+p}, 1.0, v{4+p}")
    for p in range(4):
        k.e(f"v_rcp_f32 v{4+p}, v{4+p}")
    k.e("v_lshrrev_b32 v2, 3, v0")
    k.e("v_lshlrev_b32 v2, 2, v2")
    for p in range(4):
        k.vmop(f"buffer_store_dword v{4+p}, v2, s[16:19], s48 offen offset:{p*32} sc0 sc1", ("gst",))
    k.wait_all()
    k.e("s_barrier")
    k.e(f"s_cmp_lg_u32 s{S_WAVE}, 0")
    k.e("s_cbranch_scc1 L_QEND")
    k.e(f"s_mul_i32 s46, s49, 3")
    k.e("s_add_u32 s46, s46, 40")
    k.e("s_lshl_b32 s46, s46, 7")
    k.e(f"s_add_u32 s46, s46, {FLAG_OFF + 20}")
    k.e(f"v_mov_b32 v4, s{S_NONCE}")
    k.e("v_lshlrev_b32 v5, 7, v0")
    k.e("s_mov_b64 exec, 7")
    k.e("buffer_store_dword v4, v5, s[16:19], s46 offen sc0 sc1")
    k.e("s_mov_b64 exec, -1")
    k.e("s_branch L_QEND")


def gen(P):
    k = KB()
    k.stamps_on = P["stamps"]
    prologue(k, P)
    st0 = k.save()
    B = PhaseB(k, P, False)
    phaseA_mlp(k, P, B)
    B.epilogue()
    B.phaseC()
    k.dbg_mode = "mlp" if P["dbgstamps"] else None
    k.stamp_flush()
    k.e("s_branch L_END")
    k.restore(st0)
    phaseA_qkv(k, P)
    k.e(f"s_add_u32 s{S_FL}, s{S_RB}, 32")
    k.e(f"s_lshl_b32 s{S_FL}, s{S_FL}, 7")
    k.e(f"s_add_u32 s{S_FL}, s{S_FL}, {FLAG_OFF}")
    k.e(f"s_lshl_b32 s46, s{S_FG}, 2")
    k.e(f"s_add_u32 s50, s46, s{S_FL}")
    k.wait_all(vm=False)
    publish(k, 50, 2, ("st",))
    k.stamp()
    k.e(f"s_cmp_lt_u32 s{S_FG}, 6")
    k.e("s_cbranch_scc1 L_QB")
    st1 = k.save()
    k.wait_all()
    gate_wg(k, P)
    k.restore(st1)
    k.label("L_QB")
    B2 = PhaseB(k, P, True)
    for th in B2.setup_thunks(2):
        th()
    for st in range(B2.DW):
        for ii in range(3):
            B2.dma_w(st, ii)
    poll(k, S_FL, 8, B2.V_T)
    k.e("s_barrier")
    k.stamp()
    for st in range(B2.DB):
        B2.load_b(st, 0)
        B2.load_b(st, 1)
    B2.main(B2.DW - 1)
    B2.epilogue()
    k.label("L_QEND")
    k.wait_all()
    k.dbg_mode = "qkv" if P["dbgstamps"] else None
    k.stamp_flush()
    k.label("L_END")
    k.e("s_endpgm")
    k.label("L_CODE_END")
    label = NAME + "_kernel"
    s = open("cdna_kernels/" + NAME + ".s.ref").read().split("; Override")[0]
    s += "; @launch grid=(256,1,1) block=(256,1,1) lds=163840\n"
    s += '.amdgcn_target "amdgcn-amd-amdhsa--gfx950"\n.text\n'
    s += f".globl {label}\n.p2align 8\n.type {label},@function\n{label}:\n"
    s += k.text()
    s += f"""
.section .rodata,"a"
.p2align 6
.amdhsa_kernel {label}
  .amdhsa_next_free_vgpr 512
  .amdhsa_next_free_sgpr 102
  .amdhsa_accum_offset 256
  .amdhsa_group_segment_fixed_size 0
  .amdhsa_kernarg_size 88
  .amdhsa_user_sgpr_count 2
  .amdhsa_user_sgpr_kernarg_segment_ptr 1
  .amdhsa_system_sgpr_workgroup_id_x 1
.end_amdhsa_kernel
"""
    return s


def main():
    ap = argparse.ArgumentParser()
    ap.add_argument("-o", default="cdna_kernels/" + NAME + ".s")
    ap.add_argument("--delta", type=int, default=4)
    ap.add_argument("--D", type=int, default=15)
    ap.add_argument("--R", type=int, default=32)
    ap.add_argument("--ra", type=int, default=3)
    ap.add_argument("--epg", type=int, default=3)
    ap.add_argument("--nx0", type=int, default=2)
    ap.add_argument("--xlead", type=int, default=3)
    ap.add_argument("--d0", type=int, default=9)
    ap.add_argument("--spread", type=int, default=1)
    ap.add_argument("--touch2", type=int, default=1)
    ap.add_argument("--b-ring", type=int, default=10)
    ap.add_argument("--b-dw", type=int, default=8)
    ap.add_argument("--b-db", type=int, default=4)
    ap.add_argument("--stamps", action="store_true")
    ap.add_argument("--exp", default="")
    ap.add_argument("--late2", type=int, default=0)
    ap.add_argument("--early", type=int, default=0)
    ap.add_argument("--ct0", type=int, default=1)
    ap.add_argument("--sleep", type=int, default=1)
    ap.add_argument("--sc1only", type=int, default=0)
    ap.add_argument("--f2lead", type=int, default=4)
    ap.add_argument("--b-rv", type=int, default=1)
    ap.add_argument("--b-rn", type=int, default=3)
    ap.add_argument("--tbw", type=int, default=88)
    ap.add_argument("--tbs", type=int, default=4)
    ap.add_argument("--q-n0", type=int, default=2)
    ap.add_argument("--q-rate", type=float, default=10.0)
    ap.add_argument("--ochk", type=int, default=2)
    ap.add_argument("--oscope", default="nt")
    ap.add_argument("--gb", type=int, default=7)
    ap.add_argument("--b-pair", type=int, default=1)
    ap.add_argument("--cvm", type=int, default=5)
    ap.add_argument("--cdsw", type=int, default=4)
    ap.add_argument("--dbgstamps", action="store_true")
    ap.add_argument("--ctouch", type=int, default=1)
    ap.add_argument("--vidx", type=int, default=1)
    ap.add_argument("--bi", type=int, default=4)
    ap.add_argument("--bi-from", type=int, default=0)
    ap.add_argument("--bar-late", type=int, default=1)
    ap.add_argument("--b-ra", type=int, default=5)
    ap.add_argument("--b-bi", type=int, default=2)
    ap.add_argument("--ttouch", type=int, default=66)
    ap.add_argument("--tb0", type=int, default=105)
    ap.add_argument("--dfirst", type=int, default=18)
    ap.add_argument("--brate", type=float, default=9.0)
    ap.add_argument("--f2st", type=int, default=14)
    ap.add_argument("--ldscope", default="sc0 sc1")
    ap.add_argument("--rot", type=int, default=1)
    ap.add_argument("--nx1", type=int, default=0)
    ap.add_argument("--d1", type=int, default=18)
    ap.add_argument("--xper", type=int, default=4)
    ap.add_argument("--vrate", type=float, default=12.0)
    ap.add_argument("--vcap", type=float, default=40.0)
    a = ap.parse_args()
    P = vars(a)
    if P["oscope"]:
        P["oscope"] = " " + P["oscope"].replace("+", " ")
    EXP[0] = a.exp
    SLEEP[0] = a.sleep
    COST["vm"] = a.cvm
    COST["dsw"] = a.cdsw
    s = gen(P)
    if a.sc1only:
        s = s.replace(" sc0 sc1", " sc1")
    open(a.o, "w").write(s)
    print("wrote", a.o, len(s), "bytes")


if __name__ == "__main__":
    main()
```

```python
import sys, argparse, struct

NAME = "gated_mix__sliding_local_dilated__glu_gated_glu__prompt"

NKB = 324
G_OFF = 0x1500000
FLAG_OFF = 0x1510000
PART_OFF = 0x1600000
WS_BYTES = 268435456
DBG_OFF = 0x4000000
LOG2E = 1.4426950408889634
SPIN_MAX = 200000


def f2u(x):
    return struct.unpack("<I", struct.pack("<f", x))[0]


class KB:
    def __init__(self):
        self.lines = []
        self.vm = []
        self.vm_done = 0
        self.lg = []
        self.lg_done = 0
        self.n = 0
        self.stamps_on = False
        self.nstamp = 0
        self.dbg_mode = None

    def e(self, s):
        self.lines.append("    " + s)
        self.n += 1

    def c(self, s):
        self.lines.append("    ; " + s)

    def label(self, s):
        self.lines.append(s + ":")

    def vmop(self, s, tag):
        self.e(s)
        self.vm.append(tag)
        assert len(self.vm) - self.vm_done <= 63, "too many vm outstanding"

    def lgop(self, s, tag):
        self.e(s)
        self.lg.append(tag)
        assert len(self.lg) - self.lg_done <= 15, "too many lgkm outstanding"

    def vm_out(self):
        return len(self.vm) - self.vm_done

    def lg_out(self):
        return len(self.lg) - self.lg_done

    def _last(self, lst, tag):
        for i in range(len(lst) - 1, -1, -1):
            if lst[i] == tag:
                return i
        raise KeyError(tag)

    def need(self, vm=None, lg=None):
        parts = []
        if vm is not None:
            tags = vm if isinstance(vm, list) else [vm]
            i = max(self._last(self.vm, t) for t in tags)
            if i >= self.vm_done:
                n = len(self.vm) - 1 - i
                parts.append(f"vmcnt({n})")
                self.vm_done = len(self.vm) - n
        if lg is not None:
            tags = lg if isinstance(lg, list) else [lg]
            i = max(self._last(self.lg, t) for t in tags)
            if i >= self.lg_done:
                n = len(self.lg) - 1 - i
                parts.append(f"lgkmcnt({n})")
                self.lg_done = len(self.lg) - n
        if parts:
            self.e("s_waitcnt " + " ".join(parts))

    def wait_all(self, vm=True, lg=True):
        p = []
        if vm:
            p.append("vmcnt(0)")
            self.vm_done = len(self.vm)
        if lg:
            p.append("lgkmcnt(0)")
            self.lg_done = len(self.lg)
        self.e("s_waitcnt " + " ".join(p))

    def save(self):
        return (list(self.vm), self.vm_done, list(self.lg), self.lg_done, self.nstamp)

    def restore(self, st):
        self.vm, self.vm_done, self.lg, self.lg_done, self.nstamp = list(st[0]), st[1], list(st[2]), st[3], st[4]

    def stamp(self):
        if not self.stamps_on:
            return
        i = self.nstamp
        self.nstamp += 1
        assert i < 15
        self.e(f"s_memrealtime s[{70+2*i}:{71+2*i}]")
        self.e(f"s_memtime s[100:101]")
        self.e("s_waitcnt lgkmcnt(0)")
        self.e(f"s_mov_b32 s{71+2*i}, s100")
        self.e("s_waitcnt lgkmcnt(0)")
        self.lg_done = len(self.lg)

    def stamp_flush(self):
        if not self.stamps_on:
            return
        if self.dbg_mode:
            lbl = f"L_DS{self.n}"
            self.e(f"s_cmp_lg_u32 s{S_WAVE}, 0")
            self.e(f"s_cbranch_scc1 {lbl}")
            srd(self, 20, 30, 31, 256)
            self.e("s_mov_b64 exec, 1")
            self.e("v_mov_b32 v1, 0")
            self.e("s_not_b32 s100, s70")
            self.e("v_mov_b32 v2, s100")
            self.e("buffer_atomic_umax v2, v1, s[20:23], 0 offen offset:4 sc1")
            if self.dbg_mode == "mlp":
                for i in range(self.nstamp):
                    self.e(f"v_mov_b32 v{3+i}, s{70+2*i}")
                    self.e(f"buffer_atomic_umax v{3+i}, v1, s[20:23], 0 offen offset:{8+4*i} sc1")
            self.e("s_waitcnt vmcnt(0)")
            self.e("s_mov_b64 exec, -1")
            self.label(lbl)
            return
        self.e("s_lshl_b32 s100, s2, 2")
        self.e(f"s_add_u32 s100, s100, s{S_WAVE}")
        self.e("s_lshl_b32 s100, s100, 7")
        self.e(f"s_add_u32 s100, s100, {DBG_OFF}")
        self.e("v_mov_b32 v1, 0")
        for i in range(self.nstamp):
            self.e(f"v_mov_b32 v2, s{70+2*i}")
            self.e(f"buffer_store_dword v2, v1, s[16:19], s100 offen offset:{4*i}")
            self.e("s_nop 1")
            self.e(f"v_mov_b32 v2, s{71+2*i}")
            self.e(f"buffer_store_dword v2, v1, s[16:19], s100 offen offset:{64+4*i}")
            self.e("s_nop 1")
        self.e(f"v_mov_b32 v2, {self.nstamp}")
        self.e(f"buffer_store_dword v2, v1, s[16:19], s100 offen offset:60")
        self.e("s_getreg_b32 s101, hwreg(HW_REG_HW_ID)")
        self.e("s_nop 1")
        self.e("v_mov_b32 v3, s101")
        self.e(f"buffer_store_dword v3, v1, s[16:19], s100 offen offset:124")
        self.e("s_getreg_b32 s101, hwreg(HW_REG_XCC_ID)")
        self.e("s_nop 1")
        self.e("v_mov_b32 v4, s101")
        self.e(f"buffer_store_dword v4, v1, s[16:19], s100 offen offset:120")
        self.e("s_waitcnt vmcnt(0)")

    def text(self):
        return "\n".join(self.lines) + "\n"


class Paced:
    def __init__(self, rate, cap, k=None):
        self.q, self.credit, self.rate, self.cap, self.k = [], 0, rate, cap, k

    def add(self, th, cost):
        self.q.append((th, cost))

    def gap(self, scale=1.0):
        self.credit = min(self.credit + self.rate * scale, self.cap)
        while self.q and self.q[0][1] <= self.credit and self.k.vm_out() < 58:
            th, c = self.q.pop(0)
            self.credit -= c
            th()

    def force_until(self, pred):
        while not pred():
            th, c = self.q.pop(0)
            th()

    def drain(self):
        while self.q:
            self.q.pop(0)[0]()


def icost(text):
    op = text.split()[0]
    if op.startswith("buffer_") or op.startswith("global_"):
        return COST["vm"]
    if op.startswith("ds_write"):
        return COST["dsw"]
    if op.startswith("ds_read_b128"):
        return COST["dsr128"]
    if op.startswith("ds_"):
        return 1
    if op in ("v_exp_f32", "v_rcp_f32"):
        return 2
    return 1


COST = {"vm": 5, "dsw": 4, "dsr128": 2}


class Sched:
    def __init__(self, k, rate, cap):
        self.k = k
        self.vq = []
        self.fill = []
        self.epi = []
        self.open = []
        self.credit, self.rate, self.cap = 0, rate, cap
        self.ready = lambda n: True

    def record(self, th):
        k = self.k
        prims = []
        save = (k.e, k.vmop, k.lgop, k.need)
        k.e = lambda t: prims.append(("e", t, None))
        k.vmop = lambda t, tag: prims.append(("vm", t, tag))
        k.lgop = lambda t, tag: prims.append(("lg", t, tag))
        k.need = lambda vm=None, lg=None: prims.append(("need", vm, lg))
        try:
            th()
        finally:
            del k.e, k.vmop, k.lgop, k.need
        return prims

    def add_v(self, th, cost):
        self.vq.append((self.record(th), cost))

    def add_f(self, th, atomic=False):
        self.fill.append([("call", th, None)] if atomic else self.record(th))

    def _cost(self, p):
        if p[0] in ("need", "call"):
            return 1
        return icost(p[1])

    def _emit(self, p):
        k = self.k
        if p[0] == "e":
            k.e(p[1])
        elif p[0] == "vm":
            k.vmop(p[1], p[2])
        elif p[0] == "lg":
            if k.lg_out() >= 13:
                k.need(lg=k.lg[k.lg_done + 4])
            k.lgop(p[1], p[2])
        elif p[0] == "need":
            if p[1] is not None:
                tags = p[1] if isinstance(p[1], list) else [p[1]]
                assert all(t in k.vm for t in tags), p
            k.need(vm=p[1], lg=p[2])
        else:
            p[1]()

    def flush_open(self):
        while self.open:
            self._emit(self.open.pop(0))

    def force_v(self, pred):
        self.flush_open()
        while not pred():
            prims, c = self.vq.pop(0)
            for p in prims:
                self._emit(p)

    def force_f(self, pred):
        self.flush_open()
        while not pred():
            for p in self.fill.pop(0):
                self._emit(p)

    def force_epi(self, upto):
        self.flush_open()
        while self.epi and self.epi[0][0] <= upto:
            n, prims = self.epi.pop(0)
            self.ready(n, True)
            for p in prims:
                self._emit(p)

    def drain(self):
        self.flush_open()
        self.force_f(lambda: not self.fill)
        self.force_v(lambda: not self.vq)

    def gap(self, budget, full):
        k = self.k
        self.credit = min(self.credit + self.rate, self.cap)
        progress = True
        while budget > 0 and progress:
            progress = False
            if not self.open:
                if self.vq and self.vq[0][1] <= self.credit and k.vm_out() < 58:
                    prims, c = self.vq.pop(0)
                    self.credit -= c
                    self.open = list(prims)
                elif self.fill and k.lg_out() < 10:
                    self.open = list(self.fill.pop(0))
                elif self.epi and len(self.epi[0][1]) > 1 and self.ready(self.epi[0][0], False):
                    self.open = list(self.epi.pop(0)[1])
            if self.open:
                c = self._cost(self.open[0])
                if c <= budget and not (self.open[0][0] == "lg" and k.lg_out() >= 11):
                    self._emit(self.open.pop(0))
                    budget -= c
                    progress = True
                    continue
            if self.epi and len(self.epi[0][1]) == 1 and self.ready(self.epi[0][0], False):
                c = self._cost(self.epi[0][1][0])
                if c <= budget:
                    self._emit(self.epi.pop(0)[1][0])
                    budget -= c
                    progress = True


def srd(k, d, lo, hi, nbytes):
    k.e(f"s_mov_b32 s{d}, s{lo}")
    k.e(f"s_mov_b32 s{d+1}, s{hi}")
    k.e(f"s_mov_b32 s{d+2}, {nbytes}")
    k.e(f"s_mov_b32 s{d+3}, 0x00020000")


def vr(b, n=4):
    return f"v[{b}:{b+n-1}]"


def ar(b, n=4):
    return f"a[{b}:{b+n-1}]"


S_WAVE, S_RB, S_FG = 32, 33, 34
S_WBASE, S_STBASE, S_M0W, S_T0, S_T1, S_T2 = 36, 37, 39, 40, 41, 42
S_FQ, S_I3, S_I2, S_IDX = 43, 44, 45, 51
S_XS = 64
S_NONCE = 68
S_XW = 38
XB = 131072

V_XL, V_XL2 = 36, 37
V_XWE, V_XWO = 38, 31
V_XR = 32
V_L16 = 39


S_PX, S_PW = 3, 35


def advance(k, sc, targets):
    k.e(f"s_add_u32 s{sc}, s{sc}, 1")
    k.e(f"s_cmp_eq_u32 s{sc}, 9")
    k.e(f"s_cselect_b32 s{sc}, 0, s{sc}")
    steps = sorted(set(st for _, st in targets))
    for st in steps:
        k.e(f"s_mov_b32 s{S_T0}, {st}")
        k.e(f"s_cselect_b32 s{S_T0}, {(-8*st) & 0xFFFFFFFF}, s{S_T0}")
        for (r, st2) in targets:
            if st2 == st:
                k.e(f"s_lshl1_add_u32 s{r}, 0, s{r}") if False else None
        if len(steps) == 1:
            for (r, st2) in targets:
                k.e(f"s_add_u32 s{r}, s{r}, s{S_T0}")
        else:
            k.e(f"s_mov_b32 s{S_T0 + 1 + steps.index(st)}, s{S_T0}")
    if len(steps) > 1:
        for (r, st2) in targets:
            k.e(f"s_add_u32 s{r}, s{r}, s{S_T0 + 1 + steps.index(st2)}")


def x_load(k, s, p, dst):
    v = V_XL if p % 2 == 0 else V_XL2
    if p == 0 and s > 0:
        advance(k, S_PX, [(S_XS + i, 128) for i in range(4)])
    if "xdw" in EXP[0] and s > 1:
        k.vmop(f"buffer_load_dword v1, v0, s[8:11], 0 offen", ("x", s))
        return
    k.vmop(f"buffer_load_dwordx4 {dst}, v{v}, s[8:11], s{S_XS + p//2} offen", ("x", s))


EXP = [""]
SLEEP = [2]


def x_write(k, s, p, src):
    if "noxw" in EXP[0] and s > 0:
        return
    v = V_XWE if p % 2 == 0 else V_XWO
    k.lgop(f"ds_write_b128 v{v}, {src} offset:{p*1024}", ("xw", s))


def x_read(k, s, ksl, rt, dst):
    k.lgop(f"ds_read_b128 {dst}, v{V_XR+ksl} offset:{rt*4096}", ("xf", 4 * s + ksl, rt))


XD = 98304


def x_dma_g(k, s, p):
    if p == 0 and s > 0:
        advance(k, S_PX, [(S_XS + i, 128) for i in range(4)])
    k.e(f"s_add_u32 m0, s{S_XW}, {(s&1)*8192 + p*1024}")
    k.e("s_nop 0")
    k.vmop(f"buffer_load_dwordx4 v{V_XWE if p % 2 == 0 else V_XWO}, s[8:11], s{S_XS + p//2} offen lds", ("x", s))


def prologue(k, P):
    k.e("s_cmp_ge_u32 s2, 256")
    k.e("s_cbranch_scc1 L_END")
    k.stamp()
    k.e("s_load_dwordx4 s[4:7], s[0:1], 0")
    k.e("s_load_dwordx4 s[24:27], s[0:1], 32")
    k.e("s_load_dwordx4 s[52:55], s[0:1], 48")
    k.e("s_load_dwordx4 s[28:31], s[0:1], 64")
    k.e("s_load_dwordx2 s[58:59], s[0:1], 80")
    k.e("s_load_dwordx2 s[56:57], s[0:1], 16")
    k.e("v_lshrrev_b32 v1, 6, v0")
    k.e("v_and_b32 v0, 63, v0")
    k.e("v_lshrrev_b32 v2, 3, v0")
    k.e(f"v_readfirstlane_b32 s{S_WAVE}, v1")
    k.e("v_and_b32 v3, 7, v0")
    k.e("v_mul_u32_u24 v7, 1152, v2")
    k.e(f"v_lshl_add_u32 v{V_XL}, v3, 4, v7")
    k.e(f"v_add_u32 v{V_XL2}, {8*1152}, v{V_XL}")
    k.e("s_and_b32 s50, s2, 7")
    k.e(f"s_lshr_b32 s{S_IDX}, s2, 3")
    if P["vidx"]:
        k.e(f"s_lshr_b32 s46, s{S_IDX}, 2")
        k.e(f"s_and_b32 s47, s{S_IDX}, 3")
        k.e("s_mul_i32 s48, s46, 3")
        k.e("s_add_u32 s48, s48, s47")
        k.e("s_add_u32 s46, s46, 24")
        k.e("s_cmp_eq_u32 s47, 3")
        k.e(f"s_cselect_b32 s{S_IDX}, s46, s48")
    k.e("s_and_b32 s46, s50, 1")
    k.e(f"s_lshr_b32 s{S_FQ}, s50, 1")
    k.e(f"s_lshl_b32 s{S_RB}, s46, 2")
    k.e(f"s_and_b32 s{S_I3}, s{S_IDX}, 3")
    k.e(f"s_add_u32 s{S_RB}, s{S_RB}, s{S_I3}")
    k.e(f"s_lshr_b32 s{S_I2}, s{S_IDX}, 2")
    k.e(f"s_lshl_b32 s47, s{S_RB}, 2")
    k.e(f"s_add_u32 s47, s47, s{S_WAVE}")
    k.e(f"s_mul_i32 s{S_XS}, s47, {64*1152}")
    k.e(f"s_lshl_b32 s{S_PX}, s{S_I3}, 1")
    k.e(f"s_add_u32 s{S_PX}, s{S_PX}, s{S_I2}")
    if not P["rot"]:
        k.e(f"s_mov_b32 s{S_PX}, 0")
    k.e(f"s_sub_u32 s47, s{S_PX}, 9")
    k.e(f"s_cmp_ge_u32 s{S_PX}, 9")
    k.e(f"s_cselect_b32 s{S_PX}, s47, s{S_PX}")
    k.e(f"s_mov_b32 s{S_PW}, s{S_PX}")
    k.e(f"s_lshl_b32 s47, s{S_PX}, 7")
    k.e(f"s_add_u32 s{S_XS}, s{S_XS}, s47")
    for i in range(1, 4):
        k.e(f"s_add_u32 s{S_XS+i}, s{S_XS}, {i*16*1152}")
    k.e(f"s_lshl_b32 s{S_XW}, s{S_WAVE}, 14")
    k.e(f"s_add_u32 s{S_XW}, s{S_XW}, {XD}")
    k.e("v_lshrrev_b32 v4, 1, v2")
    k.e("v_xor_b32 v5, v3, v4")
    k.e(f"v_lshl_add_u32 v{V_XWE}, v5, 4, v7")
    k.e("v_xor_b32 v6, 4, v5")
    k.e(f"v_lshl_add_u32 v{V_XWO}, v6, 4, v7")
    k.e(f"v_add_u32 v{V_XWO}, {8*1152}, v{V_XWO}")
    if P["ctouch"]:
        k.e("s_getpc_b64 s[60:61]")
        k.label("L_PC")
        k.e(f"s_sub_u32 s60, s60, L_PC-{NAME}_kernel")
        k.e("s_subb_u32 s61, s61, 0")
        k.e(f"s_mov_b32 s62, L_CODE_END-{NAME}_kernel")
        k.e("s_mov_b32 s63, 0x00020000")
        k.e("s_lshr_b32 s46, s2, 3")
        k.e(f"s_lshl_b32 s47, s{S_WAVE}, 5")
        k.e("s_add_u32 s46, s46, s47")
        k.e("s_lshl_b32 s46, s46, 10")
        k.e("v_and_b32 v4, 7, v0")
        k.e("v_lshlrev_b32 v4, 7, v4")
        k.vmop("buffer_load_dword v1, v4, s[60:63], s46 offen", ("ctouch",))
    k.e("s_waitcnt lgkmcnt(0)")
    srd(k, 8, 4, 5, 2048 * 1152)
    for p in range(8):
        x_dma_g(k, 0, p)
    k.e(f"s_cmp_ge_u32 s{S_IDX}, 24")
    k.e("s_cbranch_scc1 L_QKV")


def common2(k, wr=True):
    srd(k, 16, 58, 59, WS_BYTES)
    if wr:
        common2w(k)
    common2r(k)


def common2w(k):
    k.e("v_lshrrev_b32 v2, 3, v0")
    k.e("v_and_b32 v3, 7, v0")
    k.e("v_lshrrev_b32 v4, 1, v2")
    k.e("v_xor_b32 v5, v3, v4")
    k.e("v_xor_b32 v6, 4, v5")
    k.e("v_lshlrev_b32 v7, 7, v2")
    k.e(f"v_add_u32 v7, s{S_XW}, v7")
    k.e(f"v_lshl_add_u32 v{V_XWE}, v5, 4, v7")
    k.e(f"v_lshl_add_u32 v{V_XWO}, v6, 4, v7")


def common2r(k):
    k.e("v_and_b32 v2, 31, v0")
    k.e("v_lshrrev_b32 v3, 5, v0")
    k.e("v_bfe_u32 v4, v2, 1, 3")
    k.e("v_lshlrev_b32 v5, 7, v2")
    k.e(f"v_add_u32 v5, s{S_XW}, v5")
    for ksl in range(4):
        k.e(f"v_add_u32 v6, {2*ksl}, v3")
        k.e("v_xor_b32 v6, v6, v4")
        k.e(f"v_lshl_add_u32 v{V_XR+ksl}, v6, 4, v5")
    k.e(f"v_lshlrev_b32 v{V_L16}, 4, v0")


def nonce_create(k):
    srd(k, 20, 30, 31, 256)
    k.e(f"s_or_b32 s46, s2, s{S_WAVE}")
    k.e("s_cmp_lg_u32 s46, 0")
    k.e("s_cbranch_scc1 L_NONCE_SKIP")
    k.e("s_memrealtime s[46:47]")
    k.e("s_waitcnt lgkmcnt(0)")
    k.e("s_or_b32 s46, s46, 1")
    k.e("v_mov_b32 v4, s46")
    k.e("v_mov_b32 v5, 0")
    k.e("s_mov_b64 exec, 1")
    k.e("buffer_store_dword v4, v5, s[20:23], 0 offen sc0 sc1")
    k.e("s_mov_b64 exec, -1")
    k.label("L_NONCE_SKIP")


def nonce_issue(k, vbase):
    srd(k, 20, 30, 31, 256)
    k.e(f"v_mov_b32 v{vbase+1}, 0")
    k.vmop(f"buffer_load_dword v{vbase}, v{vbase+1}, s[20:23], 0 offen sc0 sc1", ("nonce",))


def nonce_get(k, vbase):
    lbl = f"L_NG{k.n}"
    k.need(vm=("nonce",))
    k.e(f"s_mov_b32 s69, {SPIN_MAX}")
    k.label(lbl)
    k.e(f"v_readfirstlane_b32 s{S_NONCE}, v{vbase}")
    k.e("s_nop 3")
    k.e(f"s_cmp_lg_u32 s{S_NONCE}, 0")
    k.e(f"s_cbranch_scc1 {lbl}_D")
    k.e("s_sub_u32 s69, s69, 1")
    k.e("s_cmp_eq_u32 s69, 0")
    k.e(f"s_cbranch_scc1 {lbl}_D")
    k.e("s_sleep 4")
    k.e(f"buffer_load_dword v{vbase}, v{vbase+1}, s[20:23], 0 offen sc0 sc1")
    k.e("s_waitcnt vmcnt(0)")
    k.e(f"s_branch {lbl}")
    k.label(lbl + "_D")


def publish(k, s_flag_off, vt, tag):
    lbl = f"L_PUB{k.n}"
    k.need(vm=tag)
    k.e("s_barrier")
    k.e(f"s_cmp_lg_u32 s{S_WAVE}, 0")
    k.e(f"s_cbranch_scc1 {lbl}")
    k.e(f"v_mov_b32 v{vt}, s{S_NONCE}")
    k.e(f"v_mov_b32 v{vt+1}, 0")
    k.e("s_mov_b64 exec, 1")
    k.e(f"buffer_store_dword v{vt}, v{vt+1}, s[16:19], s{s_flag_off} offen sc0 sc1")
    k.e("s_mov_b64 exec, -1")
    k.label(lbl)


def poll(k, s_line_off, nflags, vt):
    lbl = f"L_POLL{k.n}"
    k.e(f"v_lshlrev_b32 v{vt}, 2, v0")
    k.e(f"s_mov_b32 s69, {SPIN_MAX}")
    k.e(f"s_mov_b64 exec, {(1 << nflags) - 1}")
    k.label(lbl)
    k.e(f"buffer_load_dword v{vt+1}, v{vt}, s[16:19], s{s_line_off} offen sc0 sc1")
    k.e("s_waitcnt vmcnt(0)")
    k.e(f"v_cmp_ne_u32 vcc, s{S_NONCE}, v{vt+1}")
    k.e("s_sub_u32 s69, s69, 1")
    k.e("s_nop 4")
    k.e(f"s_cbranch_vccz {lbl}_D")
    k.e("s_cmp_eq_u32 s69, 0")
    k.e(f"s_cbranch_scc1 {lbl}_D")
    if SLEEP[0]:
        k.e(f"s_sleep {SLEEP[0]}")
    k.e(f"s_branch {lbl}")
    k.label(lbl + "_D")
    k.e("s_mov_b64 exec, -1")
    k.vm_done = len(k.vm)


def flag_store(k, s_off, imm, vt):
    k.e(f"v_mov_b32 v{vt}, s{S_NONCE}")
    k.e(f"v_mov_b32 v{vt+1}, 0")
    k.e("s_mov_b64 exec, 1")
    k.vmop(f"buffer_store_dword v{vt}, v{vt+1}, s[16:19], s{s_off} offen offset:{imm} sc0 sc1", ("flag",))
    k.e("s_mov_b64 exec, -1")


def flag_load(k, s_line_off, imm, vt, tag):
    k.e(f"v_and_b32 v{vt}, 15, v0")
    k.e(f"v_lshlrev_b32 v{vt}, 2, v{vt}")
    k.vmop(f"buffer_load_dword v{vt+1}, v{vt}, s[16:19], s{s_line_off} offen offset:{imm} sc0 sc1", tag)


def flag_check(k, s_line_off, imm, nflags, vt, tag):
    lbl = f"L_FC{k.n}"
    k.need(vm=tag)
    k.e(f"s_mov_b32 s69, {SPIN_MAX}")
    k.e(f"s_mov_b64 exec, {(1 << nflags) - 1}")
    k.label(lbl)
    k.e(f"v_cmp_ne_u32 vcc, s{S_NONCE}, v{vt+1}")
    k.e("s_sub_u32 s69, s69, 1")
    k.e("s_nop 4")
    k.e(f"s_cbranch_vccz {lbl}_D")
    k.e("s_cmp_eq_u32 s69, 0")
    k.e(f"s_cbranch_scc1 {lbl}_D")
    k.e("s_sleep 2")
    k.e(f"buffer_load_dword v{vt+1}, v{vt}, s[16:19], s{s_line_off} offen offset:{imm} sc0 sc1")
    k.e("s_waitcnt vmcnt(0)")
    k.e(f"s_branch {lbl}")
    k.label(lbl + "_D")
    k.e("s_mov_b64 exec, -1")
    k.e("s_nop 3")


def phaseA_mlp(k, P, B):
    DELTA, D, R, NB, RA = P["delta"], P["D"], P["R"], 4, P["ra"]
    BI = P["bi"]
    V_AF = 8
    V_WA, V_WB2 = 24, 40
    V_WD = 28
    V_T = 44
    V_XF = 64
    V_ACC = 96

    def xf(ks, rt):
        if ks < 32:
            return ar((ks * 2 + rt) * 4)
        return vr(V_XF + ((ks - 32) * 2 + rt) * 4)

    def xq(s, p):
        return xf(4 * s + p // 2, p % 2)

    def acc(slot, rt):
        return V_ACC + (slot * 2 + rt) * 16

    k.c("---------------- phase A: MLP path ----------------")
    def x_dma(s, p):
        x_dma_g(k, s, p)

    k.e(f"s_mul_i32 s{S_FG}, s{S_FQ}, 6")
    k.e(f"s_add_u32 s{S_FG}, s{S_FG}, s{S_I2}")
    k.e(f"s_cmp_ge_u32 s{S_WAVE}, 2")
    k.e("s_cselect_b32 s12, s26, s24")
    k.e("s_cselect_b32 s13, s27, s25")
    k.e(f"s_mov_b32 s14, {576*9216}")
    k.e("s_mov_b32 s15, 0x00020000")
    k.e("v_lshrrev_b32 v2, 3, v0")
    k.e("v_and_b32 v3, 7, v0")
    k.e("v_bfe_u32 v4, v2, 1, 1")
    k.e(f"s_and_b32 s46, s{S_WAVE}, 2")
    k.e("v_or_b32 v4, s46, v4")
    k.e("v_lshlrev_b32 v4, 1, v4")
    k.e("v_xor_b32 v3, v3, v4")
    k.e("s_mov_b32 s47, 9216")
    k.e("v_mul_lo_u32 v2, v2, s47")
    k.e(f"v_lshl_add_u32 v{V_WD}, v3, 4, v2")
    k.e(f"s_and_b32 s46, s{S_WAVE}, 1")
    k.e(f"s_mul_i32 s{S_WBASE}, s46, {8*9216}")
    k.e(f"s_lshl_b32 s47, s{S_FG}, 7")
    k.e(f"s_add_u32 s{S_WBASE}, s{S_WBASE}, s47")
    k.e(f"s_mul_i32 s47, s{S_PW}, {64*9216}")
    k.e(f"s_add_u32 s{S_WBASE}, s{S_WBASE}, s47")
    k.e(f"s_lshl_b32 s{S_M0W}, s{S_WAVE}, 10")

    NU = 108
    tof = {}
    for j in range(4):
        for u in range(NU):
            tof[(j, u)] = -(-u * (36 + j * DELTA) // 36) if (u < 36 and P["spread"]) else u + j * DELTA
    last_use = {u: max(tof[(j, u)] for j in range(4)) for u in range(NU)}
    slot_of = {}
    slot_busy = [-1] * 40
    last_bar = [-1]
    x_done = [10 ** 9]
    deadline = [10 ** 9] * 40

    def b_slots(st):
        lo = B.LB + B.pos(st) * B.SL
        return list(range(lo // 4096, (lo + B.SL) // 4096))
    for st in range(B.DW):
        for x in b_slots(st):
            deadline[x] = min(deadline[x], P["tbw"] + P["tbs"] * st)
    for st in range(B.DW, B.DW + B.BI):
        for x in b_slots(st):
            deadline[x] = min(deadline[x], 116)

    def try_alloc(u):
        for sl in sorted(range(32), key=lambda x: (deadline[x], x)):
            if sl >= 24 and not (x_done[0] < last_bar[0]):
                continue
            if last_use[u] >= deadline[sl]:
                continue
            if slot_busy[sl] < last_bar[0] or slot_busy[sl] == -1:
                slot_of[u] = sl
                slot_busy[sl] = last_use[u]
                return True
        return False

    def dma_w(u):
        c, ks = divmod(u, 36)
        def f():
            if u > 0 and u % 4 == 0:
                advance(k, S_PW, [(S_WBASE, 64 * 9216)])
            k.e(f"s_add_u32 m0, s{S_M0W}, {slot_of[u]*4096}")
            k.e(f"s_add_u32 s{S_T1}, s{S_WBASE}, {(ks%4)*16*9216 + c*24*128}")
            k.vmop(f"buffer_load_dwordx4 v{V_WD}, s[12:15], s{S_T1} offen lds", ("w", u))
        return f

    D0 = min(P["d0"], D)
    for u in range(0, 4):
        assert try_alloc(u)
        dma_w(u)()
    for p in range(8):
        x_dma(1, p)
    for u in range(4, D0):
        assert try_alloc(u)
        dma_w(u)()
    next_w = D0
    nonce_create(k)
    common2(k, wr=False)
    k.e("v_lshrrev_b32 v2, 4, v0")
    k.e("v_bfe_u32 v3, v0, 2, 2")
    k.e("v_and_b32 v4, 3, v0")
    k.e("v_lshrrev_b32 v5, 1, v4")
    k.e("v_lshrrev_b32 v6, 1, v2")
    k.e("v_lshl_add_u32 v6, v6, 3, v3")
    k.e("v_lshlrev_b32 v6, 7, v6")
    k.e("v_lshl_add_u32 v6, v5, 11, v6")
    k.e("v_and_b32 v7, 1, v4")
    k.e("v_lshl_add_u32 v6, v7, 4, v6")
    k.e("v_and_b32 v7, 1, v2")
    k.e("v_lshl_add_u32 v6, v7, 3, v6")
    k.e("v_lshrrev_b32 v7, 1, v3")
    k.e("v_lshl_or_b32 v7, v5, 1, v7")
    for j in range(4):
        k.e(f"v_xor_b32 v5, {j}, v7")
        k.e(f"v_lshl_add_u32 v{V_WA+j}, v5, 5, v6")
        k.e(f"v_add_u32 v{V_WB2+j}, 0x10000, v{V_WA+j}")
    k.e(f"s_lshl_b32 s46, s{S_RB}, 3")
    k.e(f"s_lshl_b32 s47, s{S_WAVE}, 1")
    k.e("s_add_u32 s46, s46, s47")
    k.e(f"s_mul_i32 s46, s46, {NKB}")
    k.e(f"s_mul_i32 s47, s{S_FQ}, 72")
    k.e("s_add_u32 s46, s46, s47")
    k.e(f"s_lshl_b32 s47, s{S_I2}, 2")
    k.e("s_add_u32 s46, s46, s47")
    k.e("s_add_u32 s46, s46, 36")
    k.e(f"s_lshl_b32 s{S_STBASE}, s46, 10")

    def aread(i, j, u, half):
        off = slot_of[u] * 4096 + half * 512
        base = V_WA + j
        if off >= 65536:
            off -= 65536
            base = V_WB2 + j
        d = V_AF + (i % NB) * 4 + half * 2
        k.lgop(f"ds_read_b64_tr_b16 {vr(d,2)}, v{base} offset:{off}", ("af", i, half))

    def epilogue(n):
        c, j = divmod(n, 4)
        slot = n % 5
        ops = []
        for rt in range(2):
            a = acc(slot, rt)
            tb = V_T
            pk = V_T + 8 + rt * 4
            gi = [a + 0, a + 1, a + 2, a + 3, a + 8, a + 9, a + 10, a + 11]
            ui = [a + 4, a + 5, a + 6, a + 7, a + 12, a + 13, a + 14, a + 15]
            for h in range(8):
                ops.append(f"v_mul_f32 v{tb+h}, 0x{f2u(-LOG2E):08x}, v{gi[h]}")
            for h in range(8):
                ops.append(f"v_exp_f32 v{tb+h}, v{tb+h}")
            for h in range(8):
                ops.append(f"v_add_f32 v{tb+h}, 1.0, v{tb+h}")
            for h in range(8):
                ops.append(f"v_rcp_f32 v{tb+h}, v{tb+h}")
            for h in range(8):
                ops.append(f"v_mul_f32 v{tb+h}, v{tb+h}, v{ui[h]}")
            for h in range(4):
                ops.append(f"v_cvt_pk_bf16_f32 v{pk+h}, v{tb+2*h}, v{tb+2*h+1}")
            off = (rt * NKB + 24 * c + j) * 1024
            ops.append(("st", f"s_add_u32 s{S_T2}, s{S_STBASE}, {off}",
                        f"buffer_store_dwordx4 {vr(pk)}, v{V_L16}, s[16:19], s{S_T2} offen sc0 sc1"))
        return ops

    T_F0, T_F1 = 60, 96
    T_TOUCH = P["ttouch"]
    sched = {}
    for j in range(4):
        for u in range(NU):
            if u < 36 and P["spread"]:
                t = -(-u * (36 + j * DELTA) // 36)
            else:
                t = u + j * DELTA
            sched.setdefault(t, []).append((t, j, u))
    pairs = []
    for t in range(NU + 3 * DELTA):
        pairs.extend(sched[t])
    first_of_step, npairs_in_step = {}, {}
    for i, (t, j, u) in enumerate(pairs):
        first_of_step.setdefault(t, i)
        npairs_in_step[t] = npairs_in_step.get(t, 0) + 1

    S = Sched(k, P["vrate"], P["vcap"])
    visible = -1
    issued_reads = 0
    last_mfma_n = {}
    GB = P["gb"]

    def ready(n, force):
        gap = k.n - last_mfma_n[n]
        if gap >= 13:
            return True
        if force:
            k.e(f"s_nop {min(15, 13 - gap)}")
            return True
        return False
    S.ready = ready

    def add_epi(n_):
        for o in epilogue(n_):
            if isinstance(o, tuple):
                S.epi.append((n_, [("e", o[1], None), ("vm", o[2], ("st", n_))]))
            else:
                S.epi.append((n_, [("e", o, None)]))

    def x_convert(s):
        def wx():
            S.force_v(lambda: k.vm.count(("x", s)) == 8)
            k.need(vm=("x", s))
        S.add_f(wx, atomic=True)
        for ksl in range(4):
            for rt in range(2):
                S.add_f(lambda ksl=ksl, rt=rt: k.lgop(
                    f"ds_read_b128 {xf(4*s+ksl, rt)}, v{V_XR+ksl} offset:{(s&1)*8192 + rt*4096}", ("xf", 4 * s + ksl, rt)))

    def x_next(s):
        if s + 2 > 8:
            return
        def w():
            S.force_f(lambda: ("xf", 4 * s + 3, 1) in k.lg)
            k.need(lg=("xf", 4 * s + 3, 1))
        S.vq.append(([("call", w, None)], 0))
        for p in range(8):
            S.add_v(lambda p=p: x_dma(s + 2, p), 19)

    x_convert(0)
    S.drain()
    k.need(vm=("w", 0))
    k.e("s_barrier")
    visible = 0
    x_next(0)
    b_claimed = [0]

    def queue_dmas(t):
        nonlocal next_w
        lead = D if t >= 36 else min(D, P["dfirst"])
        cnt = 0
        while next_w <= t + lead and next_w < NU and cnt < 2 and try_alloc(next_w):
            S.add_v(dma_w(next_w), 19)
            next_w += 1
            cnt += 1
        while b_claimed[0] < B.DW and t >= P["tbw"] + P["tbs"] * b_claimed[0]:
            assert not S.fill
            st = b_claimed[0]
            sl = b_slots(st)
            if not all((slot_busy[x] < last_bar[0] or slot_busy[x] == -1) for x in sl):
                break
            for x in sl:
                slot_busy[x] = 10 ** 9
            for ii in range(3):
                S.add_v(lambda st=st, ii=ii: B.dma_w(st, ii), 19)
            b_claimed[0] += 1

    def issue_reads_upto(i_target):
        nonlocal issued_reads
        cnt = 0
        while issued_reads <= i_target and issued_reads < len(pairs):
            t, j, u = pairs[issued_reads]
            if u > visible:
                break
            if k.lg_out() >= 13:
                k.need(lg=k.lg[k.lg_done + 4])
            aread(issued_reads, j, u, 0)
            aread(issued_reads, j, u, 1)
            issued_reads += 1
            cnt += 2
        return cnt

    epi_start = {}
    for i, (t, j, u) in enumerate(pairs):
        if u % 36 == 35:
            epi_start[i + 2] = (u // 36) * 4 + j

    def do_barrier(t, upto):
        nonlocal visible
        if upto is None:
            S.force_v(lambda: k.vm.count(("bw", B.BI)) == 3)
            k.need(vm=("bw", B.BI))
            k.e("s_barrier")
            last_bar[0] = t
            return
        assert upto in slot_of, (t, upto, next_w, slot_busy, last_bar, deadline)
        if ("w", upto) not in k.vm:
            S.force_v(lambda: ("w", upto) in k.vm)
        k.need(vm=("w", upto))
        if t in (T_F0, T_F1):
            n_last = 3 if t == T_F0 else 7
            assert k.vm.count(("st", n_last)) == 2
            k.need(vm=("st", n_last))
        k.e("s_barrier")
        last_bar[0] = t
        visible = upto
        if t in (T_F0, T_F1):
            S.flush_open()
            assert not S.fill
            flag_store(k, 50, 64 if t == T_F0 else 32, 60)

    for i, (t, j, u) in enumerate(pairs):
        if first_of_step[t] == i:
            if t in ((72, 88, 100, 108) if "tr" in P["exp"] else (0, 36, 52, 72) if "fp" not in P["exp"] else (0, 12, 24, 36)):
                k.stamp()
            pending_bar = None
            bi = BI
            if t % bi == 0 and t < 116:
                pending_bar = (t, min(t + bi, NU - 1))
            if t == 116:
                pending_bar = (t, None)
            if pending_bar and visible < t and t < NU:
                do_barrier(*pending_bar)
                pending_bar = None
            if not pending_bar:
                queue_dmas(t)
            if (t + P["xlead"]) % 4 == 0 and 1 <= (t + P["xlead"]) // 4 <= 8:
                s = (t + P["xlead"]) // 4
                x_convert(s)
                if s == 8:
                    x_done[0] = 35
            if (t + P["xlead"] - 1) % 4 == 0 and 1 <= (t + P["xlead"] - 1) // 4 <= 8:
                x_next((t + P["xlead"] - 1) // 4)
            if t == 38:
                S.add_v(lambda: nonce_issue(k, 60), 10)
            if t == 62:
                for th in B.setup_thunks(2):
                    S.add_f(th)
            if t == T_F0 - 3:
                S.add_f(lambda: nonce_get(k, 60), atomic=True)
                def fl():
                    k.e(f"s_lshl_b32 s48, s{S_RB}, 2")
                    k.e(f"s_add_u32 s48, s48, s{S_FQ}")
                    k.e("s_lshl_b32 s48, s48, 7")
                    k.e(f"s_add_u32 s48, s48, {FLAG_OFF}")
                    k.e(f"s_lshl_b32 s46, s{S_I2}, 2")
                    k.e("s_add_u32 s50, s46, s48")
                S.add_f(fl)
            if t == 90:
                assert not S.fill
                S.add_v(lambda: flag_load(k, 48, 64, 62, ("fl0",)), 10)
            if t == P["tb0"]:
                S.force_v(lambda: ("fl0",) in k.vm)
                flag_check(k, 48, 64, 6, 62, ("fl0",))
                for st in range(B.DB):
                    S.add_v(lambda st=st: B.load_b(st, 0), 19)
                    S.add_v(lambda st=st: B.load_b(st, 1), 19)
        if i in epi_start:
            add_epi(epi_start[i])
        c, ks = divmod(u, 36)
        n = c * 4 + j
        slot = n % 5
        if ks == 0 and n >= 5:
            assert all(v != n - 5 or key <= i for key, v in epi_start.items())
            if S.epi and S.epi[0][0] <= n - 5:
                S.force_epi(n - 5)
        af = vr(V_AF + (i % NB) * 4)
        issue_reads_upto(i)
        assert issued_reads > i
        needs_lg = [("af", i, 1)]
        if c == 0 and j == 0:
            if ("xf", ks, 1) not in k.lg:
                S.force_f(lambda: ("xf", ks, 1) in k.lg)
            needs_lg += [("xf", ks, 0), ("xf", ks, 1)]
        k.need(lg=needs_lg)
        for rt in range(2):
            a = acc(slot, rt)
            cin = "0" if ks == 0 else vr(a, 16)
            k.e(f"v_mfma_f32_32x32x16_bf16 {vr(a,16)}, {af}, {xf(ks,rt)}, {cin}")
            last_mfma_n[n] = k.n
            budget = GB
            if rt == 0 and pending_bar:
                do_barrier(*pending_bar)
                pending_bar = None
                queue_dmas(t)
                budget -= 3
            if rt == 0:
                budget -= issue_reads_upto(i + RA)
            else:
                budget -= 1
            S.gap(budget, GB)
    S.flush_open()
    S.force_f(lambda: not S.fill)
    assert b_claimed[0] == B.DW, b_claimed
    k.stamp()
    for i in sorted(epi_start):
        if i >= len(pairs):
            add_epi(epi_start[i])
    S.force_epi(9)
    F2_ST = P["f2st"]

    def pre_bar(st):
        if st == F2_ST:
            S.force_epi(11)
            k.need(vm=("st", 11))

    def post_bar(st):
        if st == F2_ST - P["f2lead"]:
            S.force_epi(11)
        if "tr" in P["exp"] and st in (2, 6, 12):
            S.flush_open()
            k.stamp()
        if st == F2_ST:
            S.flush_open()
            flag_store(k, 50, 0, 60)
        if st == 12 - B.DB - 2:
            S.add_v(lambda: flag_load(k, 48, 32, 2, ("fl1",)), 10)
        if st == 12 - B.DB:
            S.force_v(lambda: ("fl1",) in k.vm)
            flag_check(k, 48, 32, 6, 2, ("fl1",))
        if st == 24 - B.DB - 2:
            S.add_v(lambda: flag_load(k, 48, 0, 2, ("fl2",)), 10)
        if st == 24 - B.DB:
            S.force_v(lambda: ("fl2",) in k.vm)
            flag_check(k, 48, 0, 6, 2, ("fl2",))
            k.stamp()

    B.main(B.BI, S=S, pre_bar=pre_bar, post_bar=post_bar)


def phaseA_qkv(k, P):
    k.label("L_QKV")
    k.c("---------------- phase A: QKV + attention path ----------------")
    NST = 3
    WST = 28672
    HB = NST * WST
    GB = HB + NST * 2048
    assert GB <= XD
    PITCH = 448
    V_WD = 40
    V_TA = 47
    V_HA = 54
    V_HB = 57
    V_GW = 59
    V_HW = 60
    V_HV = 63
    V_GA = 64
    V_AF = 68
    V_TA2 = 84
    V_HA2 = 91
    V_XF = 96
    V_GF = 224
    V_HAF = 232
    V_HBF = 244
    NXS = 4

    def xfr(s, ksl, rt):
        return V_XF + ((s % NXS) * 8 + ksl * 2 + rt) * 4

    def xq(s, p):
        return vr(V_XF + ((s % NXS) * 8 + p) * 4)

    k.e(f"s_lshl_b32 s{S_FG}, s{S_FQ}, 1")
    k.e(f"s_add_u32 s{S_FG}, s{S_FG}, s{S_I2}")
    k.e(f"s_sub_u32 s{S_FG}, s{S_FG}, 6")
    srd(k, 12, 6, 7, 576 * 3456)
    k.e(f"s_mul_i32 s46, s{S_WAVE}, {7*64}")
    k.e(f"s_mul_i32 s47, s{S_FG}, 144")
    k.e("s_mov_b32 s48, 3456")
    k.e(f"s_mul_i32 s{S_M0W}, s{S_WAVE}, {7*1024}")
    k.e(f"s_mul_i32 s{S_WBASE}, s{S_PW}, {64*3456}")
    k.e(f"s_lshl_b32 s{S_STBASE}, s{S_PW}, 7")

    def dma_w(s, ii):
        st = s % NST
        def f():
            if ii == 0 and s > 0:
                advance(k, S_PW, [(S_WBASE, 64 * 3456), (S_STBASE, 128)])
            k.e(f"s_add_u32 m0, s{S_M0W}, {st*WST + ii*1024}")
            k.e("s_nop 0")
            k.vmop(f"buffer_load_dwordx4 v{V_WD+ii}, s[12:15], s{S_WBASE} offen lds", ("w", s))
        return f

    for ii in range(7):
        k.e(f"v_add_u32 v2, s46, v0")
        k.e(f"v_add_u32 v2, {64*ii}, v2")
        k.e("v_mul_u32_u24 v3, 2341, v2")
        k.e("v_lshrrev_b32 v3, 16, v3")
        k.e("v_mul_u32_u24 v4, 28, v3")
        k.e("v_sub_u32 v4, v2, v4")
        k.e("v_mul_u32_u24 v5, 57, v4")
        k.e("v_lshrrev_b32 v5, 9, v5")
        k.e("v_mul_u32_u24 v6, 9, v5")
        k.e("v_sub_u32 v6, v4, v6")
        k.e("v_mul_lo_u32 v7, v3, s48")
        k.e("v_mul_u32_u24 v5, 1152, v5")
        k.e("v_add3_u32 v7, v7, v5, s47")
        k.e(f"v_lshl_add_u32 v{V_WD+ii}, v6, 4, v7")
        k.e("v_cmp_eq_u32 vcc, 27, v4")
        k.e("v_mov_b32 v4, 0x7ff00000")
        k.e("s_nop 0")
        k.e(f"v_cndmask_b32 v{V_WD+ii}, v{V_WD+ii}, v4, vcc")
        dma_w(0, ii)()
    k.e(f"s_and_b32 s46, s{S_WAVE}, 1")
    k.e("v_lshrrev_b32 v2, 3, v0")
    k.e("v_and_b32 v3, 7, v0")
    k.e("v_lshrrev_b32 v4, 1, v2")
    k.e("s_lshl_b32 s47, s46, 2")
    k.e("v_or_b32 v4, s47, v4")
    k.e("v_xor_b32 v3, v3, v4")
    k.e("v_mul_u32_u24 v7, 1152, v2")
    k.e("v_lshl_add_u32 v7, v3, 4, v7")
    k.e(f"s_lshl_b32 s47, s{S_RB}, 8")
    k.e("s_lshl_b32 s48, s46, 3")
    k.e("s_add_u32 s47, s47, s48")
    k.e("s_sub_u32 s47, s47, 16")
    k.e("s_mul_i32 s47, s47, 1152")
    k.e(f"v_add_u32 v{V_HV}, s47, v7")
    k.e("s_lshl_b32 s49, s46, 10")
    k.e(f"s_add_u32 s49, s49, {HB}")

    def dma_h(s):
        st = s % NST
        def f():
            k.e(f"s_add_u32 m0, s49, {st*2048}")
            k.e("s_nop 0")
            k.vmop(f"buffer_load_dwordx4 v{V_HV}, s[8:11], s{S_STBASE} offen lds", ("w", s))
        return f

    k.e(f"v_lshlrev_b32 v{V_L16}, 4, v0")
    dma_h(0)()
    for p in range(8):
        x_dma_g(k, 1, p)
    for ii in range(7):
        dma_w(1, ii)()
    dma_h(1)()
    common2(k, wr=False)
    k.e("v_lshrrev_b32 v2, 4, v0")
    k.e("v_bfe_u32 v3, v0, 2, 2")
    k.e("v_and_b32 v4, 3, v0")
    k.e("v_lshrrev_b32 v5, 1, v2")
    k.e("v_lshl_add_u32 v5, v5, 3, v3")
    k.e(f"v_mul_u32_u24 v5, {PITCH}, v5")
    k.e("v_and_b32 v6, 1, v2")
    k.e("v_lshl_add_u32 v5, v6, 5, v5")
    k.e(f"v_lshl_add_u32 v{V_TA}, v4, 3, v5")
    k.e(f"v_add_u32 v{V_TA2}, {2*WST}, v{V_TA}")
    k.e("v_lshl_add_u32 v5, v2, 3, v3")
    k.e(f"v_mul_u32_u24 v5, {PITCH}, v5")
    k.e("v_lshl_add_u32 v5, v4, 3, v5")
    k.e("v_and_b32 v10, 15, v0")
    k.e("v_mul_u32_u24 v10, 592, v10")
    k.e("v_lshl_add_u32 v10, v2, 4, v10")
    for i in range(3):
        k.e(f"s_mul_i32 s46, s{S_WAVE}, 3")
        k.e(f"s_add_u32 s46, s46, {i}")
        k.e("s_min_u32 s46, s46, 8")
        k.e("s_lshl_b32 s47, s46, 5")
        k.e("s_add_u32 s47, s47, 144")
        k.e(f"v_add_u32 v{V_HA+i}, s47, v5")
        k.e(f"v_add_u32 v{V_HA2+i}, {2*WST}, v{V_HA+i}")
        k.e("s_lshl_b32 s47, s46, 6")
        k.e(f"v_add_u32 v{V_HW+i}, s47, v10")
    k.e("v_and_b32 v5, 15, v0")
    k.e("v_bfe_u32 v6, v5, 1, 3")
    for k32 in range(2):
        k.e(f"v_add_u32 v7, {4*k32}, v2")
        k.e("v_xor_b32 v7, v7, v6")
        k.e("v_lshlrev_b32 v7, 4, v7")
        k.e("v_lshl_add_u32 v7, v5, 7, v7")
        k.e(f"v_add_u32 v{V_HB+k32}, {HB}, v7")

    def aread(i, s, ksl, T, half):
        st = s % NST
        off = (ksl * 16 + half * 4) * PITCH + (st % 2) * WST + 64 * T
        base = (V_TA2 if st >= 2 else V_TA)
        d = V_AF + (i % 4) * 4 + half * 2
        k.lgop(f"ds_read_b64_tr_b16 {vr(d,2)}, v{base} offset:{off}", ("af", i, half))

    def haread(s, k32, i, half):
        st = s % NST
        off = (k32 * 32 + half * 4) * PITCH + (st % 2) * WST
        base = (V_HA2 if st >= 2 else V_HA) + i
        d = V_HAF + i * 4 + half * 2
        k.lgop(f"ds_read_b64_tr_b16 {vr(d,2)}, v{base} offset:{off}", ("haf", s, k32, i, half))

    def accq(T, rt):
        return (T * 2 + rt) * 16
    A_H = 224

    S = Sched(k, P["q_rate"], 130)
    GB = P["gb"]

    def x_convert(s):
        def wx():
            S.force_v(lambda: k.vm.count(("x", s)) == 8)
            k.need(vm=("x", s))
        S.add_f(wx, atomic=True)
        for ksl in range(4):
            for rt in range(2):
                S.add_f(lambda ksl=ksl, rt=rt: k.lgop(
                    f"ds_read_b128 {vr(xfr(s, ksl, rt))}, v{V_XR+ksl} offset:{(s&1)*8192 + rt*4096}", ("xf", 4 * s + ksl, rt)))

    def guard():
        if k.lg_out() >= 13:
            k.need(lg=k.lg[k.lg_done + 4])

    def queue_stage(sw, sx):
        if sx is not None and sx <= 8:
            def w():
                k.need(lg=("xf", 4 * (sx - 2) + 3, 1))
            S.vq.append(([("call", w, None)], 0))
        for ii in range(8):
            if sx is not None and sx <= 8:
                S.add_v(lambda p=ii: x_dma_g(k, sx, p), 19)
            if sw is not None and sw <= 8:
                S.add_v(dma_w(sw, ii) if ii < 7 else dma_h(sw), 33 if ii < 7 else 19)

    x_convert(0)
    S.drain()
    k.need(vm=("w", 0))
    k.e("s_barrier")

    pairs = [(s, ksl, T) for s in range(9) for ksl in range(4) for T in range(7)]
    issued = 0
    visible = 0

    def issue_upto(it):
        nonlocal issued
        cnt = 0
        while issued <= it and issued < len(pairs):
            s, ksl, T = pairs[issued]
            if s > visible:
                break
            guard()
            aread(issued, s, ksl, T, 0)
            aread(issued, s, ksl, T, 1)
            issued += 1
            cnt += 2
        return cnt

    state = {"t0": False}

    def touches():
        def t0():
            k.e("v_mul_u32_u24 v2, 7282, v0")
            k.e("v_lshrrev_b32 v2, 16, v2")
            k.e("v_mul_u32_u24 v3, 9, v2")
            k.e("v_sub_u32 v3, v0, v3")
            k.e("v_min_u32 v2, 5, v2")
            k.e("v_mul_u32_u24 v2, 1152, v2")
            k.e("v_lshl_add_u32 v2, v3, 7, v2")
            srd(k, 60, 52, 53, 4608 * 1152)
            k.e(f"s_sub_u32 s48, s{S_IDX}, 24")
            k.e("s_lshl_b32 s48, s48, 2")
            k.e(f"s_add_u32 s48, s48, s{S_WAVE}")
            k.e(f"s_lshr_b32 s46, s{S_RB}, 2")
            k.e("s_lshl_b32 s46, s46, 5")
            k.e("s_add_u32 s48, s48, s46")
            k.e(f"s_lshl_b32 s47, s{S_FQ}, 6")
            k.e("s_add_u32 s48, s48, s47")
            k.e(f"s_mul_i32 s50, s48, {6*1152}")
        S.add_f(t0)
        S.add_f(lambda: state.update(t0=True), atomic=True)
        return

    def touches2():
        for c in range(3):
            def tc(c=c):
                k.e(f"s_add_u32 s47, s50, {c*1536*1152}")
                k.vmop("buffer_load_dword v1, v2, s[60:63], s47 offen", ("touch",))
            S.add_v(tc, 127)
        def tw():
            srd(k, 60, 56, 57, 576 * 1152)
            k.vmop("buffer_load_dword v1, v2, s[60:63], s50 offen", ("touch",))
        S.add_v(tw, 127)

    for i, (s, ksl, T) in enumerate(pairs):
        ks = 4 * s + ksl
        pend = False
        if ksl == 0 and T == 0 and s in (0, 2):
            k.stamp()
        if ksl == 3 and T == 0 and s + 1 <= 8:
            pend = True
        pend0 = (ksl == 0 and T == 0 and s + 2 <= 8)
        if ksl == 2 and T == 3 and s + 1 <= 8:
            x_convert(s + 1)
        if P["touch2"] and s == 7 and ksl == 0 and T == 1:
            touches()
        if P["touch2"] and s == 7 and ksl == 1 and T == 1:
            S.force_f(lambda: state["t0"])
            touches2()
        if s == 6 and ksl == 1 and T == 1:
            S.add_v(lambda: nonce_issue(k, 252), 10)
        if T == 0 and ksl % 2 == 0:
            guard()
            k32 = ksl // 2
            k.lgop(f"ds_read_b128 {vr(V_HBF + k32*4)}, v{V_HB+k32} offset:{(s%NST)*2048}", ("hbf", s, k32))
        issue_upto(i)
        assert issued > i
        need = [("af", i, 1)]
        if T == 0:
            if ("xf", ks, 1) not in k.lg:
                S.force_f(lambda: ("xf", ks, 1) in k.lg)
            need += [("xf", ks, 0), ("xf", ks, 1)]
        k.need(lg=need)
        af = vr(V_AF + (i % 4) * 4)
        for rt in range(2):
            a = accq(T, rt)
            cin = "0" if ks == 0 else ar(a, 16)
            k.e(f"v_mfma_f32_32x32x16_bf16 {ar(a,16)}, {af}, {vr(xfr(s,ksl,rt))}, {cin}")
            budget = GB
            if rt == 0 and pend:
                if k.vm.count(("w", s + 1)) != 8:
                    S.force_v(lambda: k.vm.count(("w", s + 1)) == 8)
                k.need(vm=("w", s + 1))
                k.e("s_barrier")
                visible = s + 1
                budget -= 3
            if rt == 0 and pend0:
                if s >= 1:
                    k.e("s_barrier")
                    budget -= 2
                queue_stage(s + 2, s + 2)
            if rt == 0:
                budget -= issue_upto(i + 3)
                if ksl % 2 == 0 and T in (1, 2, 3):
                    guard()
                    haread(s, ksl // 2, T - 1, 0)
                    haread(s, ksl // 2, T - 1, 1)
                    budget -= 2
            else:
                budget -= 1
            S.gap(budget, GB)
        if ksl % 2 == 0 and T in (4, 5, 6):
            k32 = ksl // 2
            hi = T - 4
            k.need(lg=[("haf", s, k32, hi, 1), ("hbf", s, k32)])
            a = A_H + hi * 4
            cin = "0" if ks == 0 else ar(a, 4)
            k.e(f"v_mfma_f32_16x16x32_bf16 {ar(a,4)}, {vr(V_HAF+hi*4)}, {vr(V_HBF+k32*4)}, {cin}")
    S.drain()
    k.wait_all(vm=False)
    k.e("s_nop 7")
    k.e("s_nop 7")
    k.e("s_barrier")
    k.stamp()
    k.e("v_and_b32 v2, 31, v0")
    k.e("v_lshrrev_b32 v3, 5, v0")
    k.e(f"s_lshl_b32 s46, s{S_WAVE}, 6")
    k.e("s_add_u32 s46, s46, 16")
    k.e("v_add_u32 v4, s46, v2")
    k.e("v_mul_u32_u24 v4, 592, v4")
    k.e("v_lshl_add_u32 v8, v3, 4, v4")
    k.e("v_mul_u32_u24 v5, 144, v3")
    k.e("v_add_u32 v4, v4, v5")
    V_Q = 84
    combos = [(T, qq) for T in range(7) for qq in range(4)]
    for rt in range(2):
        for (T, qq) in combos:
            g2 = 8 * T + 2 * qq
            if g2 < 18:
                guard()
                k.lgop(f"ds_write_b128 v8, {ar(accq(T, rt) + qq*4)} offset:{rt*18944 + g2*16}", ("qw",))
    for rt in range(2):
        for g9 in range(9):
            guard()
            k.lgop(f"ds_read_b128 {vr(V_Q + rt*36 + g9*4)}, v4 offset:{rt*18944 + g9*16}", ("qr",))
    for rt in range(2):
        for (T, qq) in combos:
            g2 = 8 * T + 2 * qq
            if 18 <= g2 < 54:
                guard()
                k.lgop(f"ds_write_b128 v8, {ar(accq(T, rt) + qq*4)} offset:{rt*18944 + (g2-18)*16}", ("kvw",))
    for hi in range(3):
        guard()
        k.lgop(f"ds_write_b128 v{V_HW+hi}, {ar(A_H+hi*4)}", ("kvw",))
    sc = (18 ** -0.5) * LOG2E
    k.e(f"s_mov_b32 s48, 0x{f2u(sc):08x}")
    k.wait_all(vm=False)
    nonce_get(k, 252)
    k.e("s_barrier")
    k.stamp()
    k.e(f"s_lshl_b32 s46, s{S_RB}, 2")
    k.e(f"s_add_u32 s46, s46, s{S_WAVE}")
    k.e("s_lshl_b32 s46, s46, 6")
    k.e("v_add_u32 v5, s46, v2")
    k.e(f"v_subrev_u32 v9, {14*592}, v4")
    V_K = 160
    V_L = 232
    V_P = 10
    V_O = 40
    V_SA = 240
    k.e(f"s_mul_i32 s47, s{S_FG}, {9*512}")
    k.e(f"v_mul_u32_u24 v6, {5*512}, v3")
    k.e("v_lshl_add_u32 v7, v2, 4, s47")
    k.e(f"v_add_u32 v{V_SA}, v6, v7")
    k.e(f"v_mul_u32_u24 v6, {NKB*1024}, v3")
    k.e(f"v_add3_u32 v{V_SA+1}, v6, v7, 0")
    k.e(f"v_add_u32 v{V_SA+1}, {4*512}, v{V_SA+1}")
    k.e(f"s_lshl_b32 s46, s{S_RB}, 3")
    k.e(f"s_lshl_b32 s47, s{S_WAVE}, 1")
    k.e("s_add_u32 s46, s46, s47")
    k.e(f"s_mul_i32 s{S_STBASE}, s46, {NKB*1024}")

    def kvread(rt, w, isv, buf):
        off = rt * 18944 + (14 - 2 * w) * 592 + isv * 288
        for g in range(9):
            k.lgop(f"ds_read_b128 {vr(V_K + buf*36 + g*4)}, v9 offset:{off + g*16}", ("kv", rt, w, isv))

    for rt in range(2):
        q = V_Q + rt * 36
        kvread(rt, 0, 0, 0)
        for w in range(8):
            buf = w & 1
            k.need(lg=("kv", rt, w, 0))
            if w + 1 < 8:
                kvread(rt, w + 1, 0, buf ^ 1)
            else:
                kvread(rt, 0, 1, buf ^ 1)
            kb = V_K + buf * 36
            for d in range(9):
                for e in range(2):
                    a = q + e * 18 + 2 * d
                    b = kb + e * 18 + 2 * d
                    l = V_L + e * 4 + (d & 1) * 2
                    if d < 2:
                        k.e(f"v_pk_mul_f32 {vr(l,2)}, {vr(a,2)}, {vr(b,2)}")
                    else:
                        k.e(f"v_pk_fma_f32 {vr(l,2)}, {vr(a,2)}, {vr(b,2)}, {vr(l,2)}")
            for e in range(2):
                k.e(f"v_pk_add_f32 {vr(V_L+e*4,2)}, {vr(V_L+e*4,2)}, {vr(V_L+e*4+2,2)}")
            for e in range(2):
                k.e(f"v_add_f32 v{V_P + e*8 + w}, v{V_L+e*4}, v{V_L+e*4+1}")
        k.e(f"v_add_u32 v26, {32*rt}, v5")
        k.e("v_mov_b32 v27, 0xff7fffff")
        for w in range(1, 8):
            k.e(f"v_cmp_le_u32 vcc, {2*w}, v26")
            k.e("s_nop 1")
            for e in range(2):
                k.e(f"v_cndmask_b32 v{V_P+e*8+w}, v27, v{V_P+e*8+w}, vcc")
        for e in range(2):
            p = V_P + e * 8
            m = 28 + e
            k.e(f"v_max3_f32 v{m}, v{p}, v{p+1}, v{p+2}")
            k.e(f"v_max3_f32 v{m}, v{m}, v{p+3}, v{p+4}")
            k.e(f"v_max3_f32 v{m}, v{m}, v{p+5}, v{p+6}")
            k.e(f"v_max_f32 v{m}, v{m}, v{p+7}")
        for e in range(2):
            p = V_P + e * 8
            for w in range(8):
                k.e(f"v_sub_f32 v{p+w}, v{p+w}, v{28+e}")
            for w in range(8):
                k.e(f"v_mul_f32 v{p+w}, s48, v{p+w}")
        for e in range(2):
            p = V_P + e * 8
            for w in range(8):
                k.e(f"v_exp_f32 v{p+w}, v{p+w}")
        k.e("s_nop 0")
        for e in range(2):
            p = V_P + e * 8
            k.e(f"v_add_f32 v{28+e}, v{p}, v{p+1}")
        for w in range(2, 8):
            for e in range(2):
                p = V_P + e * 8
                k.e(f"v_add_f32 v{28+e}, v{28+e}, v{p+w}")
        for e in range(2):
            k.e(f"v_rcp_f32 v{28+e}, v{28+e}")
        k.e("s_nop 0")
        for e in range(2):
            p = V_P + e * 8
            for w in range(8):
                k.e(f"v_mul_f32 v{p+w}, v{p+w}, v{28+e}")
        for w in range(8):
            buf = (w & 1)
            k.need(lg=("kv", rt, w, 1))
            if w + 1 < 8:
                kvread(rt, w + 1, 1, buf ^ 1)
            vb = V_K + buf * 36
            for e in range(2):
                p = V_P + e * 8 + w
                pe = p & ~1
                sel = p & 1
                for d in range(9):
                    o = V_O + e * 18 + 2 * d
                    b = vb + e * 18 + 2 * d
                    if w == 0:
                        k.e(f"v_pk_mul_f32 {vr(o,2)}, {vr(pe,2)}, {vr(b,2)} op_sel:[{sel},0] op_sel_hi:[{sel},1]")
                    else:
                        k.e(f"v_pk_fma_f32 {vr(o,2)}, {vr(pe,2)}, {vr(b,2)}, {vr(o,2)} op_sel:[{sel},0,0] op_sel_hi:[{sel},1,1]")
        for a in range(9):
            d = q + a * 2
            k.e(f"v_cvt_pk_bf16_f32 v{d}, v{V_O+4*a}, v{V_O+4*a+1}")
            k.e(f"v_cvt_pk_bf16_f32 v{d+1}, v{V_O+4*a+2}, v{V_O+4*a+3}")
        k.e("v_cmp_ne_u32 vcc, 0, v3")
        k.e(f"s_add_u32 s{S_T2}, s{S_STBASE}, {rt*NKB*1024}")
        k.e("s_nop 0")
        for i in range(16):
            k.e(f"v_cndmask_b32 v{q+20+i}, v{q+i}, v{q+i+2}, vcc")
        for i in range(2):
            k.e(f"v_cndmask_b32 v{V_SA+4+2*rt+i}, v{q+16+i}, v{q+i}, vcc")
        for m in range(4):
            k.vmop(f"buffer_store_dwordx4 {vr(q+20+4*m)}, v{V_SA}, s[16:19], s{S_T2} offen offset:{m*512} sc0 sc1", ("st",))
    k.e("s_nop 1")
    k.e(f"v_permlane32_swap_b32 v{V_SA+4}, v{V_SA+6}")
    k.e(f"v_permlane32_swap_b32 v{V_SA+5}, v{V_SA+7}")
    k.e("s_nop 1")
    k.vmop(f"buffer_store_dwordx4 {vr(V_SA+4)}, v{V_SA+1}, s[16:19], s{S_STBASE} offen sc0 sc1", ("st",))
    k.stamp()


S_RT, S_NT, S_SPLIT = 65, 66, 49
S_SEG = 64
S_M0B = 38
S_PB, S_GA, S_OA, S_LATE = 36, 39, 3, 37
S_SG = 24
S_BB = 67
S_FL = 35


class PhaseB:
    LB = 49152

    def __init__(self, k, P, is_o):
        self.k, self.P, self.is_o = k, P, is_o
        self.NS = 18 if is_o else 36
        self.RS = 9
        self.DW = 8 - P["b_bi"]
        self.DB = P["b_db"]
        self.SL = 12288
        self.V_WD = [32, 33, 34]
        self.V_AE = [35, 36, 37, 38, 31, 30]
        self.V_SC = 8
        self.V_T = 10
        self.V_AF = 64
        self.NAF = 8
        self.RA = P["b_ra"]
        self.BI = P["b_bi"]
        self.V_ACC = 160
        self.NBB = self.DB + 1
        self.in_main = False

    def pos(self, st):
        return (8 - st) % 9

    def setup_thunks(self, t):
        k, P = self.k, self.P
        th = []

        def f0():
            if self.is_o:
                k.e(f"s_and_b32 s46, s{S_FG}, 1")
                k.e(f"s_lshr_b32 s{S_NT}, s{S_FG}, 1")
                k.e(f"s_mov_b32 s{S_SPLIT}, 4")
                srd(k, 60, 56, 57, 576 * 1152)
            else:
                k.e(f"s_and_b32 s46, s{S_I2}, 1")
                k.e(f"s_lshr_b32 s{S_NT}, s{S_I2}, 1")
                k.e(f"s_mov_b32 s{S_SPLIT}, s{S_FQ}")
                srd(k, 60, 52, 53, 4608 * 1152)
            k.e(f"s_lshl_b32 s{S_RT}, s{S_RB}, 1")
            k.e(f"s_add_u32 s{S_RT}, s{S_RT}, s46")
        th.append(f0)

        def f1():
            k.e(f"s_mul_i32 s{S_SEG}, s{S_WAVE}, {8*1152}")
            k.e(f"s_mul_i32 s46, s{S_NT}, 384")
            k.e(f"s_add_u32 s{S_SEG}, s{S_SEG}, s46")
            if not self.is_o:
                k.e(f"s_mul_i32 s46, s{S_SPLIT}, {384*1152}")
                k.e(f"s_add_u32 s{S_SEG}, s{S_SEG}, s46")
            k.e(f"s_mul_i32 s{S_M0B}, s{S_WAVE}, 3072")
        th.append(f1)

        def f2():
            k.e(f"s_lshl_b32 s46, s{S_RT}, 2")
            k.e(f"s_add_u32 s46, s46, s{S_WAVE}")
            k.e(f"s_mul_i32 s46, s46, {NKB}")
            if not self.is_o:
                k.e(f"s_mul_i32 s{S_BB}, s{S_SPLIT}, 72")
                k.e(f"s_add_u32 s46, s46, s{S_BB}")
                k.e("s_add_u32 s46, s46, 36")
            k.e(f"s_lshl_b32 s{S_BB}, s46, 10")
        th.append(f2)
        for i in range(3):
            def g0(i=i):
                k.e(f"v_add_u32 v{t}, {64*i}, v0")
                k.e(f"v_mul_u32_u24 v{t+1}, 2731, v{t}")
                k.e(f"v_lshrrev_b32 v{t+1}, 16, v{t+1}")
                k.e(f"v_mul_u32_u24 v{t+2}, 24, v{t+1}")
                k.e(f"v_sub_u32 v{t+2}, v{t}, v{t+2}")
            def g1(i=i):
                k.e(f"v_bfe_u32 v{t+3}, v{t+1}, 1, 1")
                k.e(f"v_lshlrev_b32 v{t+3}, 2, v{t+3}")
                k.e(f"v_xor_b32 v{t+2}, v{t+2}, v{t+3}")
                if not self.is_o:
                    k.e(f"s_mul_i32 s46, s{S_SPLIT}, 6")
                    k.e(f"v_add_u32 v{t+2}, s46, v{t+2}")
                    k.e(f"v_subrev_u32 v{t+3}, 24, v{t+2}")
                    k.e(f"v_min_u32 v{t+2}, v{t+2}, v{t+3}")
                k.e(f"v_mul_u32_u24 v{t+1}, 1152, v{t+1}")
                k.e(f"v_lshl_add_u32 v{self.V_WD[i]}, v{t+2}, 4, v{t+1}")
                if i:
                    k.e(f"v_subrev_u32 v{self.V_WD[i]}, {i*1024}, v{self.V_WD[i]}")
            th += [g0, g1]

        def h0():
            k.e(f"v_lshrrev_b32 v{t}, 4, v0")
            k.e(f"v_bfe_u32 v{t+1}, v0, 2, 2")
            k.e(f"v_and_b32 v{t+2}, 3, v0")
            k.e(f"v_lshrrev_b32 v{t+3}, 1, v{t}")
            k.e(f"v_lshl_add_u32 v{t+3}, v{t+3}, 3, v{t+1}")
        def h1():
            k.e(f"v_mul_u32_u24 v{t+3}, 384, v{t+3}")
            k.e(f"v_and_b32 v{t+4}, 1, v{t}")
            k.e(f"v_lshl_add_u32 v{t+3}, v{t+4}, 5, v{t+3}")
            k.e(f"v_lshl_add_u32 v{t+3}, v{t+2}, 3, v{t+3}")
            k.e(f"v_lshrrev_b32 v{t+4}, 1, v{t+1}")
        def h2():
            ae = self.V_AE
            k.e(f"v_lshlrev_b32 v{t+4}, 6, v{t+4}")
            k.e(f"v_add_u32 v{t+3}, {self.LB}, v{t+3}")
            k.e(f"v_add_u32 v{ae[0]}, v{t+3}, v{t+4}")
            k.e(f"v_sub_u32 v{ae[1]}, v{t+3}, v{t+4}")
            k.e(f"v_add_u32 v{ae[1]}, 64, v{ae[1]}")
        def h3():
            ae = self.V_AE
            for z in (1, 2):
                k.e(f"v_add_u32 v{ae[2*z]}, {z*4*self.SL}, v{ae[0]}")
                k.e(f"v_add_u32 v{ae[2*z+1]}, {z*4*self.SL}, v{ae[1]}")
        th += [h0, h1, h2, h3]
        return th

    def dma_w(self, st, i):
        k = self.k
        seg, r = divmod(st, 12)
        segstride = 384 if self.is_o else 1536
        if i == 0 or not self.in_main:
            k.e(f"s_add_u32 m0, s{S_M0B}, {self.LB + self.pos(st)*self.SL}")
            k.e(f"s_add_u32 s{S_T1}, s{S_SEG}, {(seg*segstride + r*32)*1152}")
        k.vmop(f"buffer_load_dwordx4 v{self.V_WD[i]}, s[60:63], s{S_T1} offen offset:{i*1024} lds", ("bw", st))

    def bfr(self, st, kh):
        return ((st % self.NBB) * 2 + kh) * 4

    def load_b(self, st, kh):
        k = self.k
        if kh == 0 or not self.in_main:
            k.e(f"s_add_u32 s{S_T0}, s{S_BB}, {st*2048}")
        k.vmop(f"buffer_load_dwordx4 {ar(self.bfr(st,kh))}, v{V_L16}, s[16:19], s{S_T0} offen offset:{kh*1024} {self.P['ldscope']}", ("b", st, kh))

    def aread(self, i, st, kh, a, half):
        k = self.k
        z, sl = divmod(self.pos(st), 4)
        off = sl * self.SL + (16 * kh + 4 * half) * 384
        be, bo = self.V_AE[2 * z], self.V_AE[2 * z + 1]
        if a % 2 == 0:
            base, off = be, off + a * 64
        else:
            base, off = bo, off + (a - 1) * 64
        assert 0 <= off < 65536
        d = self.V_AF + (i % self.NAF) * 4 + half * 2
        k.lgop(f"ds_read_b64_tr_b16 {vr(d,2)}, v{base} offset:{off}", ("baf", i, half))

    def main(self, visible, S=None, pre_bar=None, post_bar=None):
        k, P = self.k, self.P
        NS, DW, DB = self.NS, self.DW, self.DB
        if S is None:
            S = Sched(k, P["brate"], P["vcap"])
        S.rate = P["brate"]
        self.in_main = True
        GB = P["gb"]
        ops = [(st, kh, a) for st in range(NS - 1) for kh in range(2) for a in range(6)]
        ops += [(NS - 1, kh, a) for a in (2, 3, 4, 5, 1, 0) for kh in range(2)]
        issued = 0
        lastn = {}
        prev_ready = S.ready

        def ready(n, force):
            if n < 100:
                return prev_ready(n, force)
            gap = k.n - lastn[n]
            if gap >= 13:
                return True
            if force:
                k.e(f"s_nop {min(15, 13 - gap)}")
                return True
            return False
        S.ready = ready

        hissued = 0

        def issue_h(nmax, it):
            nonlocal issued, hissued
            cnt = 0
            while cnt < nmax and hissued // 2 <= it and hissued // 2 < len(ops):
                i_, half = divmod(hissued, 2)
                st, kh, a = ops[i_]
                if st > visible or k.lg_out() >= 15:
                    break
                self.aread(i_, st, kh, a, half)
                hissued += 1
                issued = hissued // 2
                cnt += 1
            return cnt

        def issue_upto(it):
            return issue_h(1000, it)

        BI = self.BI

        def boundary(st):
            nonlocal visible
            if st >= 1 and st % BI == 0:
                upto = min(st + BI, NS - 1)
                if upto > visible:
                    if k.vm.count(("bw", upto)) != 3:
                        S.force_v(lambda: k.vm.count(("bw", upto)) == 3)
                    k.need(vm=("bw", upto))
                    visible = upto
                if pre_bar:
                    pre_bar(st)
                k.e("s_barrier")
            if post_bar and st >= 1:
                post_bar(st)
            if st + DB < NS:
                S.add_v(lambda st=st: self.load_b(st + DB, 0), 19)
                S.add_v(lambda st=st: self.load_b(st + DB, 1), 19)
            if st + DW < NS:
                for ii in range(3):
                    S.add_v(lambda st=st, ii=ii: self.dma_w(st + DW, ii), 19)
            if st == NS - 7:
                for th in self.epi_setup():
                    S.add_f(th)
            if not self.is_o:
                if st == NS - P["ochk"] - 2:
                    S.force_f(lambda: not S.fill)
                    S.add_v(lambda: flag_load(k, S_FL, 16, 2, ("flo",)), 10)
                if st == NS - P["ochk"]:
                    S.force_v(lambda: ("flo",) in k.vm)
                    flag_check(k, S_FL, 16, 2, 2, ("flo",))
                    S.add_v(lambda: k.vmop(f"buffer_load_dword v{self.V_SC}, v{self.V_T+2}, s[16:19], s{S_GA} offen sc0 sc1", ("g",)), 10)
                    for pr in range(3):
                        def ld4(pr=pr):
                            k.e(f"s_add_u32 s{S_T2}, s{S_PB}, {4*4*12288}")
                            k.vmop(f"buffer_load_dwordx4 {vr(144+pr*4)}, v{V_L16}, s[16:19], s{S_T2} offen offset:{pr*1024} sc0 sc1", ("pl4",))
                        S.add_v(ld4, 19)

        first_in_step = {}
        for i, (st, kh, a) in enumerate(ops):
            first_in_step.setdefault(st, i)
        for i, (st, kh, a) in enumerate(ops):
            issue_upto(i)
            assert issued > i
            if ("b", st, kh) not in k.vm:
                S.force_v(lambda: ("b", st, kh) in k.vm)
            k.need(vm=("b", st, kh))
            if P["b_pair"] == 1 and i % 2 == 0:
                k.need(lg=("baf", max(i, min(i + 1, issued - 1)), 1))
            else:
                k.need(lg=("baf", i, 1))
            ac = self.V_ACC + a * 16
            cin = "0" if (st == 0 and kh == 0) else vr(ac, 16)
            k.e(f"v_mfma_f32_32x32x16_bf16 {vr(ac,16)}, {vr(self.V_AF+(i%self.NAF)*4)}, {ar(self.bfr(st,kh))}, {cin}")
            budget = GB
            if st == NS - 1 and kh == 1:
                assert not S.fill
                lastn[100 + a] = k.n
                for pr in (2 * a, 2 * a + 1):
                    if pr < 3 and not self.is_o:
                        continue
                    a0 = self.V_ACC + pr * 8
                    pk = 96 + pr * 4
                    for r in range(4):
                        S.epi.append((100 + a, [("e", f"v_cvt_pk_bf16_f32 v{pk+r}, v{a0+2*r}, v{a0+2*r+1}", None)]))
                    g_, r_ = divmod(pr, 3)
                    S.epi.append((100 + a, [("e", "s_nop 0", None),
                                            ("vm", f"buffer_store_dwordx4 {vr(pk)}, v{V_L16}, s[16:19], s{S_SG+g_} offen offset:{r_*1024} sc0 sc1", ("pst",))]))
            if first_in_step[st] == i:
                n0 = k.n
                boundary(st)
                budget -= (k.n - n0)
            if P["b_pair"] == 1:
                if i % 2 == 0:
                    budget -= issue_upto(i + self.RA)
                else:
                    budget -= 1
            elif P["b_pair"] == 2:
                vm_next = bool(S.open) and S.open[0][0] == "vm"
                if vm_next:
                    S._emit(S.open.pop(0))
                    issue_h(P["b_rv"], i + self.RA)
                    budget = 1
                else:
                    budget -= issue_h(P["b_rn"], i + self.RA) + 1
                    budget = min(budget, COST["vm"] - 1)
            else:
                budget -= issue_upto(i + self.RA) + 1
            S.gap(budget, GB)
        S.drain()
        k.stamp()
        S.force_epi(1000)

    def epi_setup(self):
        k = self.k
        t = self.V_T
        th = []

        def f0():
            k.e(f"s_mul_i32 s46, s{S_RT}, 3")
            k.e(f"s_add_u32 s46, s46, s{S_NT}")
            k.e(f"s_add_u32 s{S_FL}, s46, 40")
            k.e(f"s_lshl_b32 s{S_FL}, s{S_FL}, 7")
            k.e(f"s_add_u32 s{S_FL}, s{S_FL}, {FLAG_OFF}")
            k.e("s_mul_i32 s46, s46, 20")
            k.e(f"s_add_u32 s46, s46, s{S_WAVE}")
            k.e(f"s_mul_i32 s{S_PB}, s46, 12288")
            k.e(f"s_add_u32 s{S_PB}, s{S_PB}, {PART_OFF}")
            k.e(f"s_mul_i32 s46, s{S_SPLIT}, {4*12288}")
            k.e(f"s_add_u32 s47, s{S_PB}, s46")
            for g in range(4):
                if self.is_o:
                    k.e(f"s_add_u32 s{S_SG+g}, s47, {g*3072}")
                else:
                    k.e(f"s_add_u32 s46, s{S_SPLIT}, {g}")
                    k.e("s_and_b32 s46, s46, 3")
                    k.e("s_mul_i32 s46, s46, 3072")
                    k.e(f"s_add_u32 s{S_SG+g}, s47, s46")
            k.e(f"s_lshl_b32 s46, s{S_SPLIT}, 2")
            k.e(f"s_add_u32 s50, s46, s{S_FL}")
        th.append(f0)
        if not self.is_o:
            def f1():
                k.e(f"s_mul_i32 s46, s{S_SPLIT}, 3072")
                k.e(f"s_add_u32 s{S_PB}, s{S_PB}, s46")
                k.e(f"s_lshl_b32 s46, s{S_RT}, 2")
                k.e(f"s_add_u32 s46, s46, s{S_WAVE}")
                k.e(f"s_lshl_b32 s{S_GA}, s46, 7")
                k.e(f"s_add_u32 s{S_GA}, s{S_GA}, {G_OFF}")
                k.e(f"s_mul_i32 s{S_OA}, s46, {32*1152}")
                k.e(f"s_mul_i32 s46, s{S_NT}, 384")
                k.e(f"s_add_u32 s{S_OA}, s{S_OA}, s46")
                k.e(f"s_mul_i32 s46, s{S_SPLIT}, 96")
                k.e(f"s_add_u32 s{S_OA}, s{S_OA}, s46")
                srd(k, 8, 28, 29, 2048 * 576 * 2)
            def f2():
                k.e(f"v_and_b32 v{t+2}, 31, v0")
                k.e(f"v_mul_u32_u24 v{t+3}, 1152, v{t+2}")
                k.e(f"v_lshlrev_b32 v{t+2}, 2, v{t+2}")
                k.e(f"v_lshrrev_b32 v{t+4}, 5, v0")
                k.e(f"v_lshl_add_u32 v{t+3}, v{t+4}, 4, v{t+3}")
            th += [f1, f2]
        return th

    def t4(self):
        k, sc = self.k, self.V_SC
        for d in range(12):
            k.e(f"v_lshlrev_b32 v{64+2*d}, 16, v{144+d}")
            k.e(f"v_and_b32 v{64+2*d+1}, 0xffff0000, v{144+d}")
        for d in range(24):
            k.e(f"v_mul_f32 v{64+d}, v{sc}, v{64+d}")
        k.e(f"v_sub_f32 v{sc}, 1.0, v{sc}")

    def epilogue(self):
        k = self.k
        k.stamp()
        if not self.is_o:
            k.need(vm=("pl4",))
            self.t4()
        publish(k, 50, self.V_T, ("pst",))
        k.stamp()

    def phaseC(self):
        k, P = self.k, self.P
        t, sc = self.V_T, self.V_SC
        poll(k, S_FL, 4, t)
        k.stamp()
        L, A, TT = 96, self.V_ACC, 192
        for o in range(1, 4):
            k.e(f"s_add_u32 s46, s{S_SPLIT}, {o}")
            k.e("s_and_b32 s46, s46, 3")
            k.e(f"s_mul_i32 s46, s46, {4*12288}")
            k.e(f"s_add_u32 s{S_T0}, s{S_PB}, s46")
            for pr in range(3):
                k.vmop(f"buffer_load_dwordx4 {vr(L + ((o-1)*3+pr)*4)}, v{V_L16}, s[16:19], s{S_T0} offen offset:{pr*1024} sc0 sc1", ("pl", o))
        for o in range(1, 4):
            k.need(vm=("pl", o))
            for d in range(12):
                src = L + (o - 1) * 12 + d
                k.e(f"v_lshlrev_b32 v{TT+2*d}, 16, v{src}")
                k.e(f"v_and_b32 v{TT+2*d+1}, 0xffff0000, v{src}")
            for d in range(12):
                k.e(f"v_pk_add_f32 {vr(A+2*d,2)}, {vr(A+2*d,2)}, {vr(TT+2*d,2)}")
        for d in range(24):
            k.e(f"v_fma_f32 v{A+d}, v{sc}, v{A+d}, v{64+d}")
        for d in range(12):
            k.e(f"v_cvt_pk_bf16_f32 v{TT+d}, v{A+2*d}, v{A+2*d+1}")
        k.e("s_nop 1")
        for pr in range(3):
            b = TT + pr * 4
            k.e(f"v_permlane32_swap_b32 v{b}, v{b+2}")
            k.e(f"v_permlane32_swap_b32 v{b+1}, v{b+3}")
        k.e("s_nop 1")
        for pr in range(3):
            k.vmop(f"buffer_store_dwordx4 {vr(TT+pr*4)}, v{t+3}, s[8:11], s{S_OA} offen offset:{pr*32}{P['oscope']}", ("ost",))
        if k.stamps_on:
            k.wait_all()
        k.stamp()


def gate_wg(k, P):
    k.c("---------------- gate rows ----------------")
    srd(k, 20, 54, 55, 1152)
    k.e("v_and_b32 v3, 7, v0")
    k.e("v_lshlrev_b32 v3, 4, v3")
    GW = 64
    for s in range(9):
        k.vmop(f"buffer_load_dwordx4 {vr(GW+4*s)}, v3, s[20:23], 0 offen offset:{s*128}", ("gw",))
    k.e(f"s_lshl_b32 s46, s{S_RB}, 1")
    k.e(f"s_add_u32 s46, s46, s{S_FG}")
    k.e(f"s_sub_u32 s49, s46, 6")
    k.e(f"s_lshl_b32 s46, s49, 2")
    k.e(f"s_add_u32 s46, s46, s{S_WAVE}")
    k.e(f"s_mul_i32 s{S_XS}, s46, {32*1152}")
    k.e(f"s_add_u32 s{S_XS+1}, s{S_XS}, {16*1152}")
    k.e("s_lshl_b32 s48, s46, 7")
    k.e(f"s_add_u32 s48, s48, {G_OFF}")
    X = 100
    for p in range(4):
        for s in range(9):
            v = V_XL if p % 2 == 0 else V_XL2
            k.vmop(f"buffer_load_dwordx4 {vr(X+(p*9+s)*4)}, v{v}, s[8:11], s{S_XS+p//2} offen offset:{s*128}", ("gx", p))
    for p in range(4):
        k.e(f"v_mov_b32 v{4+p}, 0")
    for p in range(4):
        k.need(vm=("gx", p))
        for s in range(9):
            for d in range(4):
                k.e(f"v_dot2_f32_bf16 v{4+p}, v{X+(p*9+s)*4+d}, v{GW+4*s+d}, v{4+p}")
    k.e("s_nop 3")
    for m in (1, 2, 4):
        for p in range(4):
            k.lgop(f"ds_swizzle_b32 v{8+p}, v{4+p} offset:{(m << 10) | 0x1f}", ("sw",))
        k.wait_all(vm=False)
        for p in range(4):
            k.e(f"v_add_f32 v{4+p}, v{4+p}, v{8+p}")
    for p in range(4):
        k.e(f"v_mul_f32 v{4+p}, 0x{f2u(-LOG2E):08x}, v{4+p}")
    for p in range(4):
        k.e(f"v_exp_f32 v{4+p}, v{4+p}")
    k.e("s_nop 0")
    for p in range(4):
        k.e(f"v_add_f32 v{4+p}, 1.0, v{4+p}")
    for p in range(4):
        k.e(f"v_rcp_f32 v{4+p}, v{4+p}")
    k.e("v_lshrrev_b32 v2, 3, v0")
    k.e("v_lshlrev_b32 v2, 2, v2")
    for p in range(4):
        k.vmop(f"buffer_store_dword v{4+p}, v2, s[16:19], s48 offen offset:{p*32} sc0 sc1", ("gst",))
    k.wait_all()
    k.e("s_barrier")
    k.e(f"s_cmp_lg_u32 s{S_WAVE}, 0")
    k.e("s_cbranch_scc1 L_QEND")
    k.e(f"s_mul_i32 s46, s49, 3")
    k.e("s_add_u32 s46, s46, 40")
    k.e("s_lshl_b32 s46, s46, 7")
    k.e(f"s_add_u32 s46, s46, {FLAG_OFF + 20}")
    k.e(f"v_mov_b32 v4, s{S_NONCE}")
    k.e("v_lshlrev_b32 v5, 7, v0")
    k.e("s_mov_b64 exec, 7")
    k.e("buffer_store_dword v4, v5, s[16:19], s46 offen sc0 sc1")
    k.e("s_mov_b64 exec, -1")
    k.e("s_branch L_QEND")


def gen(P):
    k = KB()
    k.stamps_on = P["stamps"]
    prologue(k, P)
    st0 = k.save()
    B = PhaseB(k, P, False)
    phaseA_mlp(k, P, B)
    B.epilogue()
    B.phaseC()
    k.dbg_mode = "mlp" if P["dbgstamps"] else None
    k.stamp_flush()
    k.e("s_branch L_END")
    k.restore(st0)
    phaseA_qkv(k, P)
    k.e(f"s_add_u32 s{S_FL}, s{S_RB}, 32")
    k.e(f"s_lshl_b32 s{S_FL}, s{S_FL}, 7")
    k.e(f"s_add_u32 s{S_FL}, s{S_FL}, {FLAG_OFF}")
    k.e(f"s_lshl_b32 s46, s{S_FG}, 2")
    k.e(f"s_add_u32 s50, s46, s{S_FL}")
    k.wait_all(vm=False)
    publish(k, 50, 2, ("st",))
    k.stamp()
    k.e(f"s_cmp_lt_u32 s{S_FG}, 6")
    k.e("s_cbranch_scc1 L_QB")
    st1 = k.save()
    k.wait_all()
    gate_wg(k, P)
    k.restore(st1)
    k.label("L_QB")
    B2 = PhaseB(k, P, True)
    for th in B2.setup_thunks(2):
        th()
    for st in range(B2.DW):
        for ii in range(3):
            B2.dma_w(st, ii)
    poll(k, S_FL, 8, B2.V_T)
    k.e("s_barrier")
    k.stamp()
    for st in range(B2.DB):
        B2.load_b(st, 0)
        B2.load_b(st, 1)
    B2.main(B2.DW - 1)
    B2.epilogue()
    k.label("L_QEND")
    k.wait_all()
    k.dbg_mode = "qkv" if P["dbgstamps"] else None
    k.stamp_flush()
    k.label("L_END")
    k.e("s_endpgm")
    k.label("L_CODE_END")
    label = NAME + "_kernel"
    s = open("cdna_kernels/" + NAME + ".s.ref").read().split("; Override")[0]
    s += "; @launch grid=(256,1,1) block=(256,1,1) lds=163840\n"
    s += '.amdgcn_target "amdgcn-amd-amdhsa--gfx950"\n.text\n'
    s += f".globl {label}\n.p2align 8\n.type {label},@function\n{label}:\n"
    s += k.text()
    s += f"""
.section .rodata,"a"
.p2align 6
.amdhsa_kernel {label}
  .amdhsa_next_free_vgpr 512
  .amdhsa_next_free_sgpr 102
  .amdhsa_accum_offset 256
  .amdhsa_group_segment_fixed_size 0
  .amdhsa_kernarg_size 88
  .amdhsa_user_sgpr_count 2
  .amdhsa_user_sgpr_kernarg_segment_ptr 1
  .amdhsa_system_sgpr_workgroup_id_x 1
.end_amdhsa_kernel
"""
    return s


def main():
    ap = argparse.ArgumentParser()
    ap.add_argument("-o", default="cdna_kernels/" + NAME + ".s")
    ap.add_argument("--delta", type=int, default=4)
    ap.add_argument("--D", type=int, default=15)
    ap.add_argument("--R", type=int, default=32)
    ap.add_argument("--ra", type=int, default=3)
    ap.add_argument("--epg", type=int, default=3)
    ap.add_argument("--nx0", type=int, default=2)
    ap.add_argument("--xlead", type=int, default=3)
    ap.add_argument("--d0", type=int, default=9)
    ap.add_argument("--spread", type=int, default=1)
    ap.add_argument("--touch2", type=int, default=1)
    ap.add_argument("--b-ring", type=int, default=10)
    ap.add_argument("--b-dw", type=int, default=8)
    ap.add_argument("--b-db", type=int, default=4)
    ap.add_argument("--stamps", action="store_true")
    ap.add_argument("--exp", default="")
    ap.add_argument("--sleep", type=int, default=2)
    ap.add_argument("--sc1only", type=int, default=0)
    ap.add_argument("--f2lead", type=int, default=4)
    ap.add_argument("--b-rv", type=int, default=1)
    ap.add_argument("--b-rn", type=int, default=3)
    ap.add_argument("--tbw", type=int, default=88)
    ap.add_argument("--tbs", type=int, default=4)
    ap.add_argument("--q-n0", type=int, default=2)
    ap.add_argument("--q-rate", type=float, default=10.0)
    ap.add_argument("--ochk", type=int, default=2)
    ap.add_argument("--oscope", default="nt")
    ap.add_argument("--gb", type=int, default=7)
    ap.add_argument("--b-pair", type=int, default=1)
    ap.add_argument("--cvm", type=int, default=5)
    ap.add_argument("--cdsw", type=int, default=4)
    ap.add_argument("--dbgstamps", action="store_true")
    ap.add_argument("--ctouch", type=int, default=1)
    ap.add_argument("--vidx", type=int, default=1)
    ap.add_argument("--bi", type=int, default=4)
    ap.add_argument("--bi-from", type=int, default=0)
    ap.add_argument("--bar-late", type=int, default=1)
    ap.add_argument("--b-ra", type=int, default=5)
    ap.add_argument("--b-bi", type=int, default=2)
    ap.add_argument("--ttouch", type=int, default=66)
    ap.add_argument("--tb0", type=int, default=105)
    ap.add_argument("--dfirst", type=int, default=18)
    ap.add_argument("--brate", type=float, default=9.0)
    ap.add_argument("--f2st", type=int, default=14)
    ap.add_argument("--ldscope", default="sc0 sc1")
    ap.add_argument("--rot", type=int, default=1)
    ap.add_argument("--nx1", type=int, default=0)
    ap.add_argument("--d1", type=int, default=18)
    ap.add_argument("--xper", type=int, default=4)
    ap.add_argument("--vrate", type=float, default=12.0)
    ap.add_argument("--vcap", type=float, default=40.0)
    a = ap.parse_args()
    P = vars(a)
    if P["oscope"]:
        P["oscope"] = " " + P["oscope"].replace("+", " ")
    EXP[0] = a.exp
    SLEEP[0] = a.sleep
    COST["vm"] = a.cvm
    COST["dsw"] = a.cdsw
    s = gen(P)
    if a.sc1only:
        s = s.replace(" sc0 sc1", " sc1")
    open(a.o, "w").write(s)
    print("wrote", a.o, len(s), "bytes")


if __name__ == "__main__":
    main()
```

```python
import sys, argparse, struct

NAME = "gated_mix__sliding_local_dilated__glu_gated_glu__prompt"

NKB = 324
G_OFF = 0x1500000
FLAG_OFF = 0x1510000
PART_OFF = 0x1600000
WS_BYTES = 268435456
DBG_OFF = 0x4000000
LOG2E = 1.4426950408889634
SPIN_MAX = 200000


def f2u(x):
    return struct.unpack("<I", struct.pack("<f", x))[0]


class KB:
    def __init__(self):
        self.lines = []
        self.vm = []
        self.vm_done = 0
        self.lg = []
        self.lg_done = 0
        self.n = 0
        self.stamps_on = False
        self.nstamp = 0
        self.dbg_mode = None

    def e(self, s):
        self.lines.append("    " + s)
        self.n += 1

    def c(self, s):
        self.lines.append("    ; " + s)

    def label(self, s):
        self.lines.append(s + ":")

    def vmop(self, s, tag):
        self.e(s)
        self.vm.append(tag)
        assert len(self.vm) - self.vm_done <= 63, "too many vm outstanding"

    def lgop(self, s, tag):
        self.e(s)
        self.lg.append(tag)
        assert len(self.lg) - self.lg_done <= 15, "too many lgkm outstanding"

    def vm_out(self):
        return len(self.vm) - self.vm_done

    def lg_out(self):
        return len(self.lg) - self.lg_done

    def _last(self, lst, tag):
        for i in range(len(lst) - 1, -1, -1):
            if lst[i] == tag:
                return i
        raise KeyError(tag)

    def need(self, vm=None, lg=None):
        parts = []
        if vm is not None:
            tags = vm if isinstance(vm, list) else [vm]
            i = max(self._last(self.vm, t) for t in tags)
            if i >= self.vm_done:
                n = len(self.vm) - 1 - i
                parts.append(f"vmcnt({n})")
                self.vm_done = len(self.vm) - n
        if lg is not None:
            tags = lg if isinstance(lg, list) else [lg]
            i = max(self._last(self.lg, t) for t in tags)
            if i >= self.lg_done:
                n = len(self.lg) - 1 - i
                parts.append(f"lgkmcnt({n})")
                self.lg_done = len(self.lg) - n
        if parts:
            self.e("s_waitcnt " + " ".join(parts))

    def wait_all(self, vm=True, lg=True):
        p = []
        if vm:
            p.append("vmcnt(0)")
            self.vm_done = len(self.vm)
        if lg:
            p.append("lgkmcnt(0)")
            self.lg_done = len(self.lg)
        self.e("s_waitcnt " + " ".join(p))

    def save(self):
        return (list(self.vm), self.vm_done, list(self.lg), self.lg_done, self.nstamp)

    def restore(self, st):
        self.vm, self.vm_done, self.lg, self.lg_done, self.nstamp = list(st[0]), st[1], list(st[2]), st[3], st[4]

    def stamp(self):
        if not self.stamps_on:
            return
        i = self.nstamp
        self.nstamp += 1
        assert i < 15
        self.e(f"s_memrealtime s[{70+2*i}:{71+2*i}]")
        self.e(f"s_memtime s[100:101]")
        self.e("s_waitcnt lgkmcnt(0)")
        self.e(f"s_mov_b32 s{71+2*i}, s100")
        self.e("s_waitcnt lgkmcnt(0)")
        self.lg_done = len(self.lg)

    def stamp_flush(self):
        if not self.stamps_on:
            return
        if self.dbg_mode:
            lbl = f"L_DS{self.n}"
            self.e(f"s_cmp_lg_u32 s{S_WAVE}, 0")
            self.e(f"s_cbranch_scc1 {lbl}")
            srd(self, 20, 30, 31, 256)
            self.e("s_mov_b64 exec, 1")
            self.e("v_mov_b32 v1, 0")
            self.e("s_not_b32 s100, s70")
            self.e("v_mov_b32 v2, s100")
            self.e("buffer_atomic_umax v2, v1, s[20:23], 0 offen offset:4 sc1")
            if self.dbg_mode == "mlp":
                for i in range(self.nstamp):
                    self.e(f"v_mov_b32 v{3+i}, s{70+2*i}")
                    self.e(f"buffer_atomic_umax v{3+i}, v1, s[20:23], 0 offen offset:{8+4*i} sc1")
            self.e("s_waitcnt vmcnt(0)")
            self.e("s_mov_b64 exec, -1")
            self.label(lbl)
            return
        self.e("s_lshl_b32 s100, s2, 2")
        self.e(f"s_add_u32 s100, s100, s{S_WAVE}")
        self.e("s_lshl_b32 s100, s100, 7")
        self.e(f"s_add_u32 s100, s100, {DBG_OFF}")
        self.e("v_mov_b32 v1, 0")
        for i in range(self.nstamp):
            self.e(f"v_mov_b32 v2, s{70+2*i}")
            self.e(f"buffer_store_dword v2, v1, s[16:19], s100 offen offset:{4*i}")
            self.e("s_nop 1")
            self.e(f"v_mov_b32 v2, s{71+2*i}")
            self.e(f"buffer_store_dword v2, v1, s[16:19], s100 offen offset:{64+4*i}")
            self.e("s_nop 1")
        self.e(f"v_mov_b32 v2, {self.nstamp}")
        self.e(f"buffer_store_dword v2, v1, s[16:19], s100 offen offset:60")
        self.e("s_getreg_b32 s101, hwreg(HW_REG_HW_ID)")
        self.e("s_nop 1")
        self.e("v_mov_b32 v3, s101")
        self.e(f"buffer_store_dword v3, v1, s[16:19], s100 offen offset:124")
        self.e("s_getreg_b32 s101, hwreg(HW_REG_XCC_ID)")
        self.e("s_nop 1")
        self.e("v_mov_b32 v4, s101")
        self.e(f"buffer_store_dword v4, v1, s[16:19], s100 offen offset:120")
        self.e("s_waitcnt vmcnt(0)")

    def text(self):
        return "\n".join(self.lines) + "\n"


class Paced:
    def __init__(self, rate, cap, k=None):
        self.q, self.credit, self.rate, self.cap, self.k = [], 0, rate, cap, k

    def add(self, th, cost):
        self.q.append((th, cost))

    def gap(self, scale=1.0):
        self.credit = min(self.credit + self.rate * scale, self.cap)
        while self.q and self.q[0][1] <= self.credit and self.k.vm_out() < 58:
            th, c = self.q.pop(0)
            self.credit -= c
            th()

    def force_until(self, pred):
        while not pred():
            th, c = self.q.pop(0)
            th()

    def drain(self):
        while self.q:
            self.q.pop(0)[0]()


def icost(text):
    op = text.split()[0]
    if op.startswith("buffer_") or op.startswith("global_"):
        return COST["vm"]
    if op.startswith("ds_write"):
        return COST["dsw"]
    if op.startswith("ds_read_b128"):
        return COST["dsr128"]
    if op.startswith("ds_"):
        return 1
    if op in ("v_exp_f32", "v_rcp_f32"):
        return 2
    return 1


COST = {"vm": 5, "dsw": 4, "dsr128": 2}


class Sched:
    def __init__(self, k, rate, cap):
        self.k = k
        self.vq = []
        self.fill = []
        self.epi = []
        self.open = []
        self.credit, self.rate, self.cap = 0, rate, cap
        self.ready = lambda n: True

    def record(self, th):
        k = self.k
        prims = []
        save = (k.e, k.vmop, k.lgop, k.need)
        k.e = lambda t: prims.append(("e", t, None))
        k.vmop = lambda t, tag: prims.append(("vm", t, tag))
        k.lgop = lambda t, tag: prims.append(("lg", t, tag))
        k.need = lambda vm=None, lg=None: prims.append(("need", vm, lg))
        try:
            th()
        finally:
            del k.e, k.vmop, k.lgop, k.need
        return prims

    def add_v(self, th, cost):
        self.vq.append((self.record(th), cost))

    def add_f(self, th, atomic=False):
        self.fill.append([("call", th, None)] if atomic else self.record(th))

    def _cost(self, p):
        if p[0] in ("need", "call"):
            return 1
        return icost(p[1])

    def _emit(self, p):
        k = self.k
        if p[0] == "e":
            k.e(p[1])
        elif p[0] == "vm":
            k.vmop(p[1], p[2])
        elif p[0] == "lg":
            if k.lg_out() >= 13:
                k.need(lg=k.lg[k.lg_done + 4])
            k.lgop(p[1], p[2])
        elif p[0] == "need":
            if p[1] is not None:
                tags = p[1] if isinstance(p[1], list) else [p[1]]
                assert all(t in k.vm for t in tags), p
            k.need(vm=p[1], lg=p[2])
        else:
            p[1]()

    def flush_open(self):
        while self.open:
            self._emit(self.open.pop(0))

    def force_v(self, pred):
        self.flush_open()
        while not pred():
            prims, c = self.vq.pop(0)
            for p in prims:
                self._emit(p)

    def force_f(self, pred):
        self.flush_open()
        while not pred():
            for p in self.fill.pop(0):
                self._emit(p)

    def force_epi(self, upto):
        self.flush_open()
        while self.epi and self.epi[0][0] <= upto:
            n, prims = self.epi.pop(0)
            self.ready(n, True)
            for p in prims:
                self._emit(p)

    def drain(self):
        self.flush_open()
        self.force_f(lambda: not self.fill)
        self.force_v(lambda: not self.vq)

    def gap(self, budget, full):
        k = self.k
        self.credit = min(self.credit + self.rate, self.cap)
        progress = True
        while budget > 0 and progress:
            progress = False
            if not self.open:
                if self.vq and self.vq[0][1] <= self.credit and k.vm_out() < 58:
                    prims, c = self.vq.pop(0)
                    self.credit -= c
                    self.open = list(prims)
                elif self.fill and k.lg_out() < 10:
                    self.open = list(self.fill.pop(0))
                elif self.epi and len(self.epi[0][1]) > 1 and self.ready(self.epi[0][0], False):
                    self.open = list(self.epi.pop(0)[1])
            if self.open:
                c = self._cost(self.open[0])
                if c <= budget and not (self.open[0][0] == "lg" and k.lg_out() >= 11):
                    self._emit(self.open.pop(0))
                    budget -= c
                    progress = True
                    continue
            if self.epi and len(self.epi[0][1]) == 1 and self.ready(self.epi[0][0], False):
                c = self._cost(self.epi[0][1][0])
                if c <= budget:
                    self._emit(self.epi.pop(0)[1][0])
                    budget -= c
                    progress = True


def srd(k, d, lo, hi, nbytes):
    k.e(f"s_mov_b32 s{d}, s{lo}")
    k.e(f"s_mov_b32 s{d+1}, s{hi}")
    k.e(f"s_mov_b32 s{d+2}, {nbytes}")
    k.e(f"s_mov_b32 s{d+3}, 0x00020000")


def vr(b, n=4):
    return f"v[{b}:{b+n-1}]"


def ar(b, n=4):
    return f"a[{b}:{b+n-1}]"


S_WAVE, S_RB, S_FG = 32, 33, 34
S_WBASE, S_STBASE, S_M0W, S_T0, S_T1, S_T2 = 36, 37, 39, 40, 41, 42
S_FQ, S_I3, S_I2, S_IDX = 43, 44, 45, 51
S_XS = 64
S_NONCE = 68
S_XW = 38
XB = 131072

V_XL, V_XL2 = 36, 37
V_XWE, V_XWO = 38, 31
V_XR = 32
V_L16 = 39


S_PX, S_PW = 3, 35


def advance(k, sc, targets):
    k.e(f"s_add_u32 s{sc}, s{sc}, 1")
    k.e(f"s_cmp_eq_u32 s{sc}, 9")
    k.e(f"s_cselect_b32 s{sc}, 0, s{sc}")
    steps = sorted(set(st for _, st in targets))
    for st in steps:
        k.e(f"s_mov_b32 s{S_T0}, {st}")
        k.e(f"s_cselect_b32 s{S_T0}, {(-8*st) & 0xFFFFFFFF}, s{S_T0}")
        for (r, st2) in targets:
            if st2 == st:
                k.e(f"s_lshl1_add_u32 s{r}, 0, s{r}") if False else None
        if len(steps) == 1:
            for (r, st2) in targets:
                k.e(f"s_add_u32 s{r}, s{r}, s{S_T0}")
        else:
            k.e(f"s_mov_b32 s{S_T0 + 1 + steps.index(st)}, s{S_T0}")
    if len(steps) > 1:
        for (r, st2) in targets:
            k.e(f"s_add_u32 s{r}, s{r}, s{S_T0 + 1 + steps.index(st2)}")


def x_load(k, s, p, dst):
    v = V_XL if p % 2 == 0 else V_XL2
    if p == 0 and s > 0:
        advance(k, S_PX, [(S_XS + i, 128) for i in range(4)])
    if "xdw" in EXP[0] and s > 1:
        k.vmop(f"buffer_load_dword v1, v0, s[8:11], 0 offen", ("x", s))
        return
    k.vmop(f"buffer_load_dwordx4 {dst}, v{v}, s[8:11], s{S_XS + p//2} offen", ("x", s))


EXP = [""]
SLEEP = [2]


def x_write(k, s, p, src):
    if "noxw" in EXP[0] and s > 0:
        return
    v = V_XWE if p % 2 == 0 else V_XWO
    k.lgop(f"ds_write_b128 v{v}, {src} offset:{p*1024}", ("xw", s))


def x_read(k, s, ksl, rt, dst):
    k.lgop(f"ds_read_b128 {dst}, v{V_XR+ksl} offset:{rt*4096}", ("xf", 4 * s + ksl, rt))


XD = 98304


def x_dma_g(k, s, p):
    if p == 0 and s > 0:
        advance(k, S_PX, [(S_XS + i, 128) for i in range(4)])
    k.e(f"s_add_u32 m0, s{S_XW}, {(s&1)*8192 + p*1024}")
    k.e("s_nop 0")
    k.vmop(f"buffer_load_dwordx4 v{V_XWE if p % 2 == 0 else V_XWO}, s[8:11], s{S_XS + p//2} offen lds", ("x", s))


def prologue(k, P):
    k.e("s_cmp_ge_u32 s2, 256")
    k.e("s_cbranch_scc1 L_END")
    k.stamp()
    k.e("s_load_dwordx4 s[4:7], s[0:1], 0")
    k.e("s_load_dwordx4 s[24:27], s[0:1], 32")
    k.e("s_load_dwordx4 s[52:55], s[0:1], 48")
    k.e("s_load_dwordx4 s[28:31], s[0:1], 64")
    k.e("s_load_dwordx2 s[58:59], s[0:1], 80")
    k.e("s_load_dwordx2 s[56:57], s[0:1], 16")
    k.e("v_lshrrev_b32 v1, 6, v0")
    k.e("v_and_b32 v0, 63, v0")
    if P["ct0"]:
        k.e("s_getpc_b64 s[60:61]")
        k.label("L_PC0")
        k.e(f"s_mov_b32 s62, L_CODE_END-L_PC0")
        k.e("s_mov_b32 s63, 0x00020000")
        k.e("v_lshlrev_b32 v8, 7, v0")
        k.vmop("buffer_load_dword v9, v8, s[60:63], 0 offen", ("ct0",))
    k.e("v_lshrrev_b32 v2, 3, v0")
    k.e(f"v_readfirstlane_b32 s{S_WAVE}, v1")
    k.e("v_and_b32 v3, 7, v0")
    k.e("v_mul_u32_u24 v7, 1152, v2")
    k.e(f"v_lshl_add_u32 v{V_XL}, v3, 4, v7")
    k.e(f"v_add_u32 v{V_XL2}, {8*1152}, v{V_XL}")
    k.e("s_and_b32 s50, s2, 7")
    k.e(f"s_lshr_b32 s{S_IDX}, s2, 3")
    if P["vidx"]:
        k.e(f"s_lshr_b32 s46, s{S_IDX}, 2")
        k.e(f"s_and_b32 s47, s{S_IDX}, 3")
        k.e("s_mul_i32 s48, s46, 3")
        k.e("s_add_u32 s48, s48, s47")
        k.e("s_add_u32 s46, s46, 24")
        k.e("s_cmp_eq_u32 s47, 3")
        k.e(f"s_cselect_b32 s{S_IDX}, s46, s48")
    k.e("s_and_b32 s46, s50, 1")
    k.e(f"s_lshr_b32 s{S_FQ}, s50, 1")
    k.e(f"s_lshl_b32 s{S_RB}, s46, 2")
    k.e(f"s_and_b32 s{S_I3}, s{S_IDX}, 3")
    k.e(f"s_add_u32 s{S_RB}, s{S_RB}, s{S_I3}")
    k.e(f"s_lshr_b32 s{S_I2}, s{S_IDX}, 2")
    k.e(f"s_lshl_b32 s47, s{S_RB}, 2")
    k.e(f"s_add_u32 s47, s47, s{S_WAVE}")
    k.e(f"s_mul_i32 s{S_XS}, s47, {64*1152}")
    k.e(f"s_lshl_b32 s{S_PX}, s{S_I3}, 1")
    k.e(f"s_add_u32 s{S_PX}, s{S_PX}, s{S_I2}")
    if P["rot"] == 2:
        k.e(f"s_add_u32 s{S_PX}, s{S_I3}, s{S_I2}")
        k.e(f"s_mul_i32 s47, s{S_PX}, 86")
        k.e("s_lshr_b32 s47, s47, 8")
        k.e("s_mul_i32 s47, s47, 3")
        k.e(f"s_sub_u32 s{S_PX}, s{S_PX}, s47")
        k.e(f"s_mul_i32 s{S_PX}, s{S_PX}, 3")
    if not P["rot"]:
        k.e(f"s_mov_b32 s{S_PX}, 0")
    k.e(f"s_sub_u32 s47, s{S_PX}, 9")
    k.e(f"s_cmp_ge_u32 s{S_PX}, 9")
    k.e(f"s_cselect_b32 s{S_PX}, s47, s{S_PX}")
    k.e(f"s_mov_b32 s{S_PW}, s{S_PX}")
    k.e(f"s_lshl_b32 s47, s{S_PX}, 7")
    k.e(f"s_add_u32 s{S_XS}, s{S_XS}, s47")
    for i in range(1, 4):
        k.e(f"s_add_u32 s{S_XS+i}, s{S_XS}, {i*16*1152}")
    k.e(f"s_lshl_b32 s{S_XW}, s{S_WAVE}, 14")
    k.e(f"s_add_u32 s{S_XW}, s{S_XW}, {XD}")
    k.e("v_lshrrev_b32 v4, 1, v2")
    k.e("v_xor_b32 v5, v3, v4")
    k.e(f"v_lshl_add_u32 v{V_XWE}, v5, 4, v7")
    k.e("v_xor_b32 v6, 4, v5")
    k.e(f"v_lshl_add_u32 v{V_XWO}, v6, 4, v7")
    k.e(f"v_add_u32 v{V_XWO}, {8*1152}, v{V_XWO}")
    if P["ctouch"]:
        k.e("s_getpc_b64 s[60:61]")
        k.label("L_PC")
        k.e(f"s_sub_u32 s60, s60, L_PC-{NAME}_kernel")
        k.e("s_subb_u32 s61, s61, 0")
        k.e(f"s_mov_b32 s62, L_CODE_END-{NAME}_kernel")
        k.e("s_mov_b32 s63, 0x00020000")
        k.e("s_lshr_b32 s46, s2, 3")
        k.e(f"s_lshl_b32 s47, s{S_WAVE}, 5")
        k.e("s_add_u32 s46, s46, s47")
        k.e("s_lshl_b32 s46, s46, 10")
        k.e("v_and_b32 v4, 7, v0")
        k.e("v_lshlrev_b32 v4, 7, v4")
        k.vmop("buffer_load_dword v1, v4, s[60:63], s46 offen", ("ctouch",))
    if not P["early"]:
        k.e("s_waitcnt lgkmcnt(0)")
        if "su" in P["exp"]:
            k.stamp()
        srd(k, 8, 4, 5, 2048 * 1152)
        for p in range(8):
            x_dma_g(k, 0, p)
    k.e(f"s_cmp_ge_u32 s{S_IDX}, 24")
    k.e("s_cbranch_scc1 L_QKV")


def common2(k, wr=True):
    srd(k, 16, 58, 59, WS_BYTES)
    if wr:
        common2w(k)
    common2r(k)


def common2w(k):
    k.e("v_lshrrev_b32 v2, 3, v0")
    k.e("v_and_b32 v3, 7, v0")
    k.e("v_lshrrev_b32 v4, 1, v2")
    k.e("v_xor_b32 v5, v3, v4")
    k.e("v_xor_b32 v6, 4, v5")
    k.e("v_lshlrev_b32 v7, 7, v2")
    k.e(f"v_add_u32 v7, s{S_XW}, v7")
    k.e(f"v_lshl_add_u32 v{V_XWE}, v5, 4, v7")
    k.e(f"v_lshl_add_u32 v{V_XWO}, v6, 4, v7")


def common2r(k):
    k.e("v_and_b32 v2, 31, v0")
    k.e("v_lshrrev_b32 v3, 5, v0")
    k.e("v_bfe_u32 v4, v2, 1, 3")
    k.e("v_lshlrev_b32 v5, 7, v2")
    k.e(f"v_add_u32 v5, s{S_XW}, v5")
    for ksl in range(4):
        k.e(f"v_add_u32 v6, {2*ksl}, v3")
        k.e("v_xor_b32 v6, v6, v4")
        k.e(f"v_lshl_add_u32 v{V_XR+ksl}, v6, 4, v5")
    k.e(f"v_lshlrev_b32 v{V_L16}, 4, v0")


def nonce_create(k):
    srd(k, 20, 30, 31, 256)
    k.e(f"s_or_b32 s46, s2, s{S_WAVE}")
    k.e("s_cmp_lg_u32 s46, 0")
    k.e("s_cbranch_scc1 L_NONCE_SKIP")
    k.e("s_memrealtime s[46:47]")
    k.e("s_waitcnt lgkmcnt(0)")
    k.e("s_or_b32 s46, s46, 1")
    k.e("v_mov_b32 v4, s46")
    k.e("v_mov_b32 v5, 0")
    k.e("s_mov_b64 exec, 1")
    k.e("buffer_store_dword v4, v5, s[20:23], 0 offen sc0 sc1")
    k.e("s_mov_b64 exec, -1")
    k.label("L_NONCE_SKIP")


def nonce_issue(k, vbase):
    srd(k, 20, 30, 31, 256)
    k.e(f"v_mov_b32 v{vbase+1}, 0")
    k.vmop(f"buffer_load_dword v{vbase}, v{vbase+1}, s[20:23], 0 offen sc0 sc1", ("nonce",))


def nonce_get(k, vbase):
    lbl = f"L_NG{k.n}"
    k.need(vm=("nonce",))
    k.e(f"s_mov_b32 s69, {SPIN_MAX}")
    k.label(lbl)
    k.e(f"v_readfirstlane_b32 s{S_NONCE}, v{vbase}")
    k.e("s_nop 3")
    k.e(f"s_cmp_lg_u32 s{S_NONCE}, 0")
    k.e(f"s_cbranch_scc1 {lbl}_D")
    k.e("s_sub_u32 s69, s69, 1")
    k.e("s_cmp_eq_u32 s69, 0")
    k.e(f"s_cbranch_scc1 {lbl}_D")
    k.e("s_sleep 4")
    k.e(f"buffer_load_dword v{vbase}, v{vbase+1}, s[20:23], 0 offen sc0 sc1")
    k.e("s_waitcnt vmcnt(0)")
    k.e(f"s_branch {lbl}")
    k.label(lbl + "_D")


def publish(k, s_flag_off, vt, tag):
    lbl = f"L_PUB{k.n}"
    k.need(vm=tag)
    k.e("s_barrier")
    k.e(f"s_cmp_lg_u32 s{S_WAVE}, 0")
    k.e(f"s_cbranch_scc1 {lbl}")
    k.e(f"v_mov_b32 v{vt}, s{S_NONCE}")
    k.e(f"v_mov_b32 v{vt+1}, 0")
    k.e("s_mov_b64 exec, 1")
    k.e(f"buffer_store_dword v{vt}, v{vt+1}, s[16:19], s{s_flag_off} offen sc0 sc1")
    k.e("s_mov_b64 exec, -1")
    k.label(lbl)


def poll(k, s_line_off, nflags, vt):
    lbl = f"L_POLL{k.n}"
    k.e(f"v_lshlrev_b32 v{vt}, 2, v0")
    k.e(f"s_mov_b32 s69, {SPIN_MAX}")
    k.e(f"s_mov_b64 exec, {(1 << nflags) - 1}")
    k.label(lbl)
    k.e(f"buffer_load_dword v{vt+1}, v{vt}, s[16:19], s{s_line_off} offen sc0 sc1")
    k.e("s_waitcnt vmcnt(0)")
    k.e(f"v_cmp_ne_u32 vcc, s{S_NONCE}, v{vt+1}")
    k.e("s_sub_u32 s69, s69, 1")
    k.e("s_nop 4")
    k.e(f"s_cbranch_vccz {lbl}_D")
    k.e("s_cmp_eq_u32 s69, 0")
    k.e(f"s_cbranch_scc1 {lbl}_D")
    if SLEEP[0]:
        k.e(f"s_sleep {SLEEP[0]}")
    k.e(f"s_branch {lbl}")
    k.label(lbl + "_D")
    k.e("s_mov_b64 exec, -1")
    k.vm_done = len(k.vm)


def flag_store(k, s_off, imm, vt):
    k.e(f"v_mov_b32 v{vt}, s{S_NONCE}")
    k.e(f"v_mov_b32 v{vt+1}, 0")
    k.e("s_mov_b64 exec, 1")
    k.vmop(f"buffer_store_dword v{vt}, v{vt+1}, s[16:19], s{s_off} offen offset:{imm} sc0 sc1", ("flag",))
    k.e("s_mov_b64 exec, -1")


def flag_load(k, s_line_off, imm, vt, tag):
    k.e(f"v_and_b32 v{vt}, 15, v0")
    k.e(f"v_lshlrev_b32 v{vt}, 2, v{vt}")
    k.vmop(f"buffer_load_dword v{vt+1}, v{vt}, s[16:19], s{s_line_off} offen offset:{imm} sc0 sc1", tag)


def flag_check(k, s_line_off, imm, nflags, vt, tag):
    lbl = f"L_FC{k.n}"
    k.need(vm=tag)
    k.e(f"s_mov_b32 s69, {SPIN_MAX}")
    k.e(f"s_mov_b64 exec, {(1 << nflags) - 1}")
    k.label(lbl)
    k.e(f"v_cmp_ne_u32 vcc, s{S_NONCE}, v{vt+1}")
    k.e("s_sub_u32 s69, s69, 1")
    k.e("s_nop 4")
    k.e(f"s_cbranch_vccz {lbl}_D")
    k.e("s_cmp_eq_u32 s69, 0")
    k.e(f"s_cbranch_scc1 {lbl}_D")
    k.e("s_sleep 2")
    k.e(f"buffer_load_dword v{vt+1}, v{vt}, s[16:19], s{s_line_off} offen offset:{imm} sc0 sc1")
    k.e("s_waitcnt vmcnt(0)")
    k.e(f"s_branch {lbl}")
    k.label(lbl + "_D")
    k.e("s_mov_b64 exec, -1")
    k.e("s_nop 3")


def phaseA_mlp(k, P, B):
    DELTA, D, R, NB, RA = P["delta"], P["D"], P["R"], 4, P["ra"]
    BI = P["bi"]
    V_AF = 8
    V_WA, V_WB2 = 24, 40
    V_WD = 28
    V_T = 44
    V_XF = 64
    V_ACC = 96

    def xf(ks, rt):
        if ks < 32:
            return ar((ks * 2 + rt) * 4)
        return vr(V_XF + ((ks - 32) * 2 + rt) * 4)

    def xq(s, p):
        return xf(4 * s + p // 2, p % 2)

    def acc(slot, rt):
        return V_ACC + (slot * 2 + rt) * 16

    k.c("---------------- phase A: MLP path ----------------")
    def x_dma(s, p):
        x_dma_g(k, s, p)

    k.e(f"s_mul_i32 s{S_FG}, s{S_FQ}, 6")
    k.e(f"s_add_u32 s{S_FG}, s{S_FG}, s{S_I2}")
    def wsrd():
        k.e(f"s_cmp_ge_u32 s{S_WAVE}, 2")
        k.e("s_cselect_b32 s12, s26, s24")
        k.e("s_cselect_b32 s13, s27, s25")
        k.e(f"s_mov_b32 s14, {576*9216}")
        k.e("s_mov_b32 s15, 0x00020000")
    if not P["early"]:
        wsrd()
    k.e("v_lshrrev_b32 v2, 3, v0")
    k.e("v_and_b32 v3, 7, v0")
    k.e("v_bfe_u32 v4, v2, 1, 1")
    k.e(f"s_and_b32 s46, s{S_WAVE}, 2")
    k.e("v_or_b32 v4, s46, v4")
    k.e("v_lshlrev_b32 v4, 1, v4")
    k.e("v_xor_b32 v3, v3, v4")
    k.e("s_mov_b32 s47, 9216")
    k.e("v_mul_lo_u32 v2, v2, s47")
    k.e(f"v_lshl_add_u32 v{V_WD}, v3, 4, v2")
    k.e(f"s_and_b32 s46, s{S_WAVE}, 1")
    k.e(f"s_mul_i32 s{S_WBASE}, s46, {8*9216}")
    k.e(f"s_lshl_b32 s47, s{S_FG}, 7")
    k.e(f"s_add_u32 s{S_WBASE}, s{S_WBASE}, s47")
    k.e(f"s_mul_i32 s47, s{S_PW}, {64*9216}")
    k.e(f"s_add_u32 s{S_WBASE}, s{S_WBASE}, s47")
    k.e(f"s_lshl_b32 s{S_M0W}, s{S_WAVE}, 10")

    NU = 108
    T_BVIS = NU + 3 * DELTA - 4
    tof = {}
    for j in range(4):
        for u in range(NU):
            tof[(j, u)] = -(-u * (36 + j * DELTA) // 36) if (u < 36 and P["spread"]) else u + j * DELTA
    last_use = {u: max(tof[(j, u)] for j in range(4)) for u in range(NU)}
    slot_of = {}
    slot_busy = [-1] * 40
    last_bar = [-1]
    x_done = [10 ** 9]
    deadline = [10 ** 9] * 40

    def b_slots(st):
        lo = B.LB + B.pos(st) * B.SL
        return list(range(lo // 4096, (lo + B.SL) // 4096))
    for st in range(B.DW):
        for x in b_slots(st):
            deadline[x] = min(deadline[x], P["tbw"] + P["tbs"] * st)
    for st in range(B.DW, B.DW + B.BI):
        for x in b_slots(st):
            deadline[x] = min(deadline[x], T_BVIS)

    def try_alloc(u):
        for sl in sorted(range(32), key=lambda x: (deadline[x], x)):
            if sl >= 24 and not (x_done[0] < last_bar[0]):
                continue
            if last_use[u] >= deadline[sl]:
                continue
            if slot_busy[sl] < last_bar[0] or slot_busy[sl] == -1:
                slot_of[u] = sl
                slot_busy[sl] = last_use[u]
                return True
        return False

    def dma_w(u):
        c, ks = divmod(u, 36)
        def f():
            if u > 0 and u % 4 == 0:
                advance(k, S_PW, [(S_WBASE, 64 * 9216)])
            k.e(f"s_add_u32 m0, s{S_M0W}, {slot_of[u]*4096}")
            k.e(f"s_add_u32 s{S_T1}, s{S_WBASE}, {(ks%4)*16*9216 + c*24*128}")
            k.vmop(f"buffer_load_dwordx4 v{V_WD}, s[12:15], s{S_T1} offen lds", ("w", u))
        return f

    D0 = min(P["d0"], D)
    if P["early"]:
        k.e("s_waitcnt lgkmcnt(0)")
        if "su" in P["exp"]:
            k.stamp()
        srd(k, 8, 4, 5, 2048 * 1152)
        x_dma(0, 0)
        wsrd()
        for u in range(0, 4):
            assert try_alloc(u)
        dma_w(0)()
        for p in range(1, 8):
            x_dma(0, p)
            if p in (2, 4, 6):
                dma_w(p // 2)()
    else:
        for u in range(0, 4):
            assert try_alloc(u)
            dma_w(u)()
    def second():
        for p in range(8):
            x_dma(1, p)
        for u in range(4, D0):
            assert try_alloc(u)
            dma_w(u)()
    if not P["late2"]:
        second()
    next_w = D0
    nonce_create(k)
    common2(k, wr=False)
    k.e("v_lshrrev_b32 v2, 4, v0")
    k.e("v_bfe_u32 v3, v0, 2, 2")
    k.e("v_and_b32 v4, 3, v0")
    k.e("v_lshrrev_b32 v5, 1, v4")
    k.e("v_lshrrev_b32 v6, 1, v2")
    k.e("v_lshl_add_u32 v6, v6, 3, v3")
    k.e("v_lshlrev_b32 v6, 7, v6")
    k.e("v_lshl_add_u32 v6, v5, 11, v6")
    k.e("v_and_b32 v7, 1, v4")
    k.e("v_lshl_add_u32 v6, v7, 4, v6")
    k.e("v_and_b32 v7, 1, v2")
    k.e("v_lshl_add_u32 v6, v7, 3, v6")
    k.e("v_lshrrev_b32 v7, 1, v3")
    k.e("v_lshl_or_b32 v7, v5, 1, v7")
    for j in range(4):
        k.e(f"v_xor_b32 v5, {j}, v7")
        k.e(f"v_lshl_add_u32 v{V_WA+j}, v5, 5, v6")
        k.e(f"v_add_u32 v{V_WB2+j}, 0x10000, v{V_WA+j}")
    k.e(f"s_lshl_b32 s46, s{S_RB}, 3")
    k.e(f"s_lshl_b32 s47, s{S_WAVE}, 1")
    k.e("s_add_u32 s46, s46, s47")
    k.e(f"s_mul_i32 s46, s46, {NKB}")
    k.e(f"s_mul_i32 s47, s{S_FQ}, 72")
    k.e("s_add_u32 s46, s46, s47")
    k.e(f"s_lshl_b32 s47, s{S_I2}, 2")
    k.e("s_add_u32 s46, s46, s47")
    k.e("s_add_u32 s46, s46, 36")
    k.e(f"s_lshl_b32 s{S_STBASE}, s46, 10")

    def aread(i, j, u, half):
        off = slot_of[u] * 4096 + half * 512
        base = V_WA + j
        if off >= 65536:
            off -= 65536
            base = V_WB2 + j
        d = V_AF + (i % NB) * 4 + half * 2
        k.lgop(f"ds_read_b64_tr_b16 {vr(d,2)}, v{base} offset:{off}", ("af", i, half))

    def epilogue(n):
        c, j = divmod(n, 4)
        slot = n % 5
        ops = []
        for rt in range(2):
            a = acc(slot, rt)
            tb = V_T
            pk = V_T + 8 + rt * 4
            gi = [a + 0, a + 1, a + 2, a + 3, a + 8, a + 9, a + 10, a + 11]
            ui = [a + 4, a + 5, a + 6, a + 7, a + 12, a + 13, a + 14, a + 15]
            for h in range(8):
                ops.append(f"v_mul_f32 v{tb+h}, 0x{f2u(-LOG2E):08x}, v{gi[h]}")
            for h in range(8):
                ops.append(f"v_exp_f32 v{tb+h}, v{tb+h}")
            for h in range(8):
                ops.append(f"v_add_f32 v{tb+h}, 1.0, v{tb+h}")
            for h in range(8):
                ops.append(f"v_rcp_f32 v{tb+h}, v{tb+h}")
            for h in range(8):
                ops.append(f"v_mul_f32 v{tb+h}, v{tb+h}, v{ui[h]}")
            for h in range(4):
                ops.append(f"v_cvt_pk_bf16_f32 v{pk+h}, v{tb+2*h}, v{tb+2*h+1}")
            off = (rt * NKB + 24 * c + j) * 1024
            ops.append(("st", f"s_add_u32 s{S_T2}, s{S_STBASE}, {off}",
                        f"buffer_store_dwordx4 {vr(pk)}, v{V_L16}, s[16:19], s{S_T2} offen sc0 sc1"))
        return ops

    T_F0, T_F1 = P["tf0"], P["tf0"] + 36
    T_TOUCH = P["ttouch"]
    sched = {}
    for j in range(4):
        for u in range(NU):
            if u < 36 and P["spread"]:
                t = -(-u * (36 + j * DELTA) // 36)
            else:
                t = u + j * DELTA
            sched.setdefault(t, []).append((t, j, u))
    pairs = []
    for t in range(NU + 3 * DELTA):
        pairs.extend(sched[t])
    first_of_step, npairs_in_step = {}, {}
    for i, (t, j, u) in enumerate(pairs):
        first_of_step.setdefault(t, i)
        npairs_in_step[t] = npairs_in_step.get(t, 0) + 1

    S = Sched(k, P["vrate"], P["vcap"])
    visible = -1
    issued_reads = 0
    last_mfma_n = {}
    GB = P["gb"]

    def ready(n, force):
        gap = k.n - last_mfma_n[n]
        if gap >= 13:
            return True
        if force:
            k.e(f"s_nop {min(15, 13 - gap)}")
            return True
        return False
    S.ready = ready

    def add_epi(n_):
        for o in epilogue(n_):
            if isinstance(o, tuple):
                S.epi.append((n_, [("e", o[1], None), ("vm", o[2], ("st", n_))]))
            else:
                S.epi.append((n_, [("e", o, None)]))

    def x_convert(s):
        def wx():
            S.force_v(lambda: k.vm.count(("x", s)) == 8)
            k.need(vm=("x", s))
        S.add_f(wx, atomic=True)
        for ksl in range(4):
            for rt in range(2):
                S.add_f(lambda ksl=ksl, rt=rt: k.lgop(
                    f"ds_read_b128 {xf(4*s+ksl, rt)}, v{V_XR+ksl} offset:{(s&1)*8192 + rt*4096}", ("xf", 4 * s + ksl, rt)))

    def x_next(s):
        if s + 2 > 8:
            return
        def w():
            S.force_f(lambda: ("xf", 4 * s + 3, 1) in k.lg)
            k.need(lg=("xf", 4 * s + 3, 1))
        S.vq.append(([("call", w, None)], 0))
        for p in range(8):
            S.add_v(lambda p=p: x_dma(s + 2, p), 19)

    if P["late2"] == 1:
        second()
    if P["late2"] == 2:
        k.need(vm=("x", 0))
        second()
    if "su" in P["exp"]:
        k.stamp()
        k.need(vm=("ctouch",))
        k.stamp()
        k.need(vm=("x", 0))
        k.stamp()
    x_convert(0)
    S.drain()
    k.need(vm=("w", 0))
    k.e("s_barrier")
    visible = 0
    x_next(0)
    b_claimed = [0]

    def queue_dmas(t):
        nonlocal next_w
        lead = D if t >= 36 else min(D, P["dfirst"])
        cnt = 0
        while next_w <= t + lead and next_w < NU and cnt < 2 and try_alloc(next_w):
            S.add_v(dma_w(next_w), 19)
            next_w += 1
            cnt += 1
        while b_claimed[0] < B.DW and t >= P["tbw"] + P["tbs"] * b_claimed[0]:
            assert not S.fill
            st = b_claimed[0]
            sl = b_slots(st)
            if not all((slot_busy[x] < last_bar[0] or slot_busy[x] == -1) for x in sl):
                break
            for x in sl:
                slot_busy[x] = 10 ** 9
            for ii in range(3):
                S.add_v(lambda st=st, ii=ii: B.dma_w(st, ii), 19)
            b_claimed[0] += 1

    def issue_reads_upto(i_target):
        nonlocal issued_reads
        cnt = 0
        while issued_reads <= i_target and issued_reads < len(pairs):
            t, j, u = pairs[issued_reads]
            if u > visible:
                break
            if k.lg_out() >= 13:
                k.need(lg=k.lg[k.lg_done + 4])
            aread(issued_reads, j, u, 0)
            aread(issued_reads, j, u, 1)
            issued_reads += 1
            cnt += 2
        return cnt

    epi_start = {}
    for i, (t, j, u) in enumerate(pairs):
        if u % 36 == 35:
            epi_start[i + 2] = (u // 36) * 4 + j

    def do_barrier(t, upto):
        nonlocal visible
        if upto is None:
            S.force_v(lambda: k.vm.count(("bw", B.BI)) == 3)
            k.need(vm=("bw", B.BI))
            k.e("s_barrier")
            last_bar[0] = t
            return
        assert upto in slot_of, (t, upto, next_w, slot_busy, last_bar, deadline)
        if ("w", upto) not in k.vm:
            S.force_v(lambda: ("w", upto) in k.vm)
        k.need(vm=("w", upto))
        if t in (T_F0, T_F1):
            n_last = 3 if t == T_F0 else 7
            assert k.vm.count(("st", n_last)) == 2
            k.need(vm=("st", n_last))
        k.e("s_barrier")
        last_bar[0] = t
        visible = upto
        if t in (T_F0, T_F1):
            S.flush_open()
            assert not S.fill
            flag_store(k, 50, 64 if t == T_F0 else 32, 60)

    for i, (t, j, u) in enumerate(pairs):
        if first_of_step[t] == i:
            if t in ((0, 1, 4) if "su" in P["exp"] else (72, 88, 100, 108) if "tr" in P["exp"] else (0, 36, 52, 72) if "fp" not in P["exp"] else (0, 12, 24, 36)):
                k.stamp()
            pending_bar = None
            bi = BI
            if t % bi == 0 and t < T_BVIS:
                pending_bar = (t, min(t + bi, NU - 1))
            if t == T_BVIS:
                pending_bar = (t, None)
            if pending_bar and visible < t and t < NU:
                do_barrier(*pending_bar)
                pending_bar = None
            if not pending_bar:
                queue_dmas(t)
            if (t + P["xlead"]) % 4 == 0 and 1 <= (t + P["xlead"]) // 4 <= 8:
                s = (t + P["xlead"]) // 4
                x_convert(s)
                if s == 8:
                    x_done[0] = 35
            if (t + P["xlead"] - 1) % 4 == 0 and 1 <= (t + P["xlead"] - 1) // 4 <= 8:
                x_next((t + P["xlead"] - 1) // 4)
            if t == 38:
                S.add_v(lambda: nonce_issue(k, 60), 10)
            if t == T_F0 + 2:
                for th in B.setup_thunks(2):
                    S.add_f(th)
            if t == T_F0 - 3:
                S.add_f(lambda: nonce_get(k, 60), atomic=True)
                def fl():
                    k.e(f"s_lshl_b32 s48, s{S_RB}, 2")
                    k.e(f"s_add_u32 s48, s48, s{S_FQ}")
                    k.e("s_lshl_b32 s48, s48, 7")
                    k.e(f"s_add_u32 s48, s48, {FLAG_OFF}")
                    k.e(f"s_lshl_b32 s46, s{S_I2}, 2")
                    k.e("s_add_u32 s50, s46, s48")
                S.add_f(fl)
            if t == 90:
                assert not S.fill
                S.add_v(lambda: flag_load(k, 48, 64, 62, ("fl0",)), 10)
            if t == P["tb0"]:
                S.force_v(lambda: ("fl0",) in k.vm)
                flag_check(k, 48, 64, 6, 62, ("fl0",))
                for st in range(B.DB):
                    S.add_v(lambda st=st: B.load_b(st, 0), 19)
                    S.add_v(lambda st=st: B.load_b(st, 1), 19)
        if i in epi_start:
            add_epi(epi_start[i])
        c, ks = divmod(u, 36)
        n = c * 4 + j
        slot = n % 5
        if ks == 0 and n >= 5:
            assert all(v != n - 5 or key <= i for key, v in epi_start.items())
            if S.epi and S.epi[0][0] <= n - 5:
                S.force_epi(n - 5)
        af = vr(V_AF + (i % NB) * 4)
        issue_reads_upto(i)
        assert issued_reads > i
        needs_lg = [("af", i, 1)]
        if c == 0 and j == 0:
            if ("xf", ks, 1) not in k.lg:
                S.force_f(lambda: ("xf", ks, 1) in k.lg)
            needs_lg += [("xf", ks, 0), ("xf", ks, 1)]
        k.need(lg=needs_lg)
        for rt in range(2):
            a = acc(slot, rt)
            cin = "0" if ks == 0 else vr(a, 16)
            k.e(f"v_mfma_f32_32x32x16_bf16 {vr(a,16)}, {af}, {xf(ks,rt)}, {cin}")
            last_mfma_n[n] = k.n
            budget = GB
            if rt == 0 and pending_bar:
                do_barrier(*pending_bar)
                pending_bar = None
                queue_dmas(t)
                budget -= 3
            if rt == 0:
                budget -= issue_reads_upto(i + RA)
            else:
                budget -= 1
            S.gap(budget, GB)
    S.flush_open()
    S.force_f(lambda: not S.fill)
    assert b_claimed[0] == B.DW, b_claimed
    k.stamp()
    for i in sorted(epi_start):
        if i >= len(pairs):
            add_epi(epi_start[i])
    S.force_epi(9)
    F2_ST = P["f2st"]

    def pre_bar(st):
        if st == F2_ST:
            S.force_epi(11)
            k.need(vm=("st", 11))

    def post_bar(st):
        if st == F2_ST - P["f2lead"]:
            S.force_epi(11)
        if "tr" in P["exp"] and st in (2, 6, 12):
            S.flush_open()
            k.stamp()
        if st == F2_ST:
            S.flush_open()
            flag_store(k, 50, 0, 60)
        if st == 12 - B.DB - 2:
            S.add_v(lambda: flag_load(k, 48, 32, 2, ("fl1",)), 10)
        if st == 12 - B.DB:
            S.force_v(lambda: ("fl1",) in k.vm)
            flag_check(k, 48, 32, 6, 2, ("fl1",))
        if st == 24 - B.DB - 2:
            S.add_v(lambda: flag_load(k, 48, 0, 2, ("fl2",)), 10)
        if st == 24 - B.DB:
            S.force_v(lambda: ("fl2",) in k.vm)
            flag_check(k, 48, 0, 6, 2, ("fl2",))
            k.stamp()

    B.main(B.BI, S=S, pre_bar=pre_bar, post_bar=post_bar)


def phaseA_qkv(k, P):
    k.label("L_QKV")
    k.c("---------------- phase A: QKV + attention path ----------------")
    NST = 3
    WST = 28672
    HB = NST * WST
    GB = HB + NST * 2048
    assert GB <= XD
    PITCH = 448
    V_WD = 40
    V_TA = 47
    V_HA = 54
    V_HB = 57
    V_GW = 59
    V_HW = 60
    V_HV = 63
    V_GA = 64
    V_AF = 68
    V_TA2 = 84
    V_HA2 = 91
    V_XF = 96
    V_GF = 224
    V_HAF = 232
    V_HBF = 244
    NXS = 4

    def xfr(s, ksl, rt):
        return V_XF + ((s % NXS) * 8 + ksl * 2 + rt) * 4

    def xq(s, p):
        return vr(V_XF + ((s % NXS) * 8 + p) * 4)

    if P["early"]:
        k.e("s_waitcnt lgkmcnt(0)")
        if "su" in P["exp"]:
            k.stamp()
        srd(k, 8, 4, 5, 2048 * 1152)
        for p in range(8):
            x_dma_g(k, 0, p)
    k.e(f"s_lshl_b32 s{S_FG}, s{S_FQ}, 1")
    k.e(f"s_add_u32 s{S_FG}, s{S_FG}, s{S_I2}")
    k.e(f"s_sub_u32 s{S_FG}, s{S_FG}, 6")
    srd(k, 12, 6, 7, 576 * 3456)
    k.e(f"s_mul_i32 s46, s{S_WAVE}, {7*64}")
    k.e(f"s_mul_i32 s47, s{S_FG}, 144")
    k.e("s_mov_b32 s48, 3456")
    k.e(f"s_mul_i32 s{S_M0W}, s{S_WAVE}, {7*1024}")
    k.e(f"s_mul_i32 s{S_WBASE}, s{S_PW}, {64*3456}")
    k.e(f"s_lshl_b32 s{S_STBASE}, s{S_PW}, 7")

    def dma_w(s, ii):
        st = s % NST
        def f():
            if ii == 0 and s > 0:
                advance(k, S_PW, [(S_WBASE, 64 * 3456), (S_STBASE, 128)])
            k.e(f"s_add_u32 m0, s{S_M0W}, {st*WST + ii*1024}")
            k.e("s_nop 0")
            k.vmop(f"buffer_load_dwordx4 v{V_WD+ii}, s[12:15], s{S_WBASE} offen lds", ("w", s))
        return f

    for ii in range(7):
        k.e(f"v_add_u32 v2, s46, v0")
        k.e(f"v_add_u32 v2, {64*ii}, v2")
        k.e("v_mul_u32_u24 v3, 2341, v2")
        k.e("v_lshrrev_b32 v3, 16, v3")
        k.e("v_mul_u32_u24 v4, 28, v3")
        k.e("v_sub_u32 v4, v2, v4")
        k.e("v_mul_u32_u24 v5, 57, v4")
        k.e("v_lshrrev_b32 v5, 9, v5")
        k.e("v_mul_u32_u24 v6, 9, v5")
        k.e("v_sub_u32 v6, v4, v6")
        k.e("v_mul_lo_u32 v7, v3, s48")
        k.e("v_mul_u32_u24 v5, 1152, v5")
        k.e("v_add3_u32 v7, v7, v5, s47")
        k.e(f"v_lshl_add_u32 v{V_WD+ii}, v6, 4, v7")
        k.e("v_cmp_eq_u32 vcc, 27, v4")
        k.e("v_mov_b32 v4, 0x7ff00000")
        k.e("s_nop 0")
        k.e(f"v_cndmask_b32 v{V_WD+ii}, v{V_WD+ii}, v4, vcc")
        dma_w(0, ii)()
    k.e(f"s_and_b32 s46, s{S_WAVE}, 1")
    k.e("v_lshrrev_b32 v2, 3, v0")
    k.e("v_and_b32 v3, 7, v0")
    k.e("v_lshrrev_b32 v4, 1, v2")
    k.e("s_lshl_b32 s47, s46, 2")
    k.e("v_or_b32 v4, s47, v4")
    k.e("v_xor_b32 v3, v3, v4")
    k.e("v_mul_u32_u24 v7, 1152, v2")
    k.e("v_lshl_add_u32 v7, v3, 4, v7")
    k.e(f"s_lshl_b32 s47, s{S_RB}, 8")
    k.e("s_lshl_b32 s48, s46, 3")
    k.e("s_add_u32 s47, s47, s48")
    k.e("s_sub_u32 s47, s47, 16")
    k.e("s_mul_i32 s47, s47, 1152")
    k.e(f"v_add_u32 v{V_HV}, s47, v7")
    k.e("s_lshl_b32 s49, s46, 10")
    k.e(f"s_add_u32 s49, s49, {HB}")

    def dma_h(s):
        st = s % NST
        def f():
            k.e(f"s_add_u32 m0, s49, {st*2048}")
            k.e("s_nop 0")
            k.vmop(f"buffer_load_dwordx4 v{V_HV}, s[8:11], s{S_STBASE} offen lds", ("w", s))
        return f

    k.e(f"v_lshlrev_b32 v{V_L16}, 4, v0")
    dma_h(0)()
    for p in range(8):
        x_dma_g(k, 1, p)
    for ii in range(7):
        dma_w(1, ii)()
    dma_h(1)()
    common2(k, wr=False)
    k.e("v_lshrrev_b32 v2, 4, v0")
    k.e("v_bfe_u32 v3, v0, 2, 2")
    k.e("v_and_b32 v4, 3, v0")
    k.e("v_lshrrev_b32 v5, 1, v2")
    k.e("v_lshl_add_u32 v5, v5, 3, v3")
    k.e(f"v_mul_u32_u24 v5, {PITCH}, v5")
    k.e("v_and_b32 v6, 1, v2")
    k.e("v_lshl_add_u32 v5, v6, 5, v5")
    k.e(f"v_lshl_add_u32 v{V_TA}, v4, 3, v5")
    k.e(f"v_add_u32 v{V_TA2}, {2*WST}, v{V_TA}")
    k.e("v_lshl_add_u32 v5, v2, 3, v3")
    k.e(f"v_mul_u32_u24 v5, {PITCH}, v5")
    k.e("v_lshl_add_u32 v5, v4, 3, v5")
    k.e("v_and_b32 v10, 15, v0")
    k.e("v_mul_u32_u24 v10, 592, v10")
    k.e("v_lshl_add_u32 v10, v2, 4, v10")
    for i in range(3):
        k.e(f"s_mul_i32 s46, s{S_WAVE}, 3")
        k.e(f"s_add_u32 s46, s46, {i}")
        k.e("s_min_u32 s46, s46, 8")
        k.e("s_lshl_b32 s47, s46, 5")
        k.e("s_add_u32 s47, s47, 144")
        k.e(f"v_add_u32 v{V_HA+i}, s47, v5")
        k.e(f"v_add_u32 v{V_HA2+i}, {2*WST}, v{V_HA+i}")
        k.e("s_lshl_b32 s47, s46, 6")
        k.e(f"v_add_u32 v{V_HW+i}, s47, v10")
    k.e("v_and_b32 v5, 15, v0")
    k.e("v_bfe_u32 v6, v5, 1, 3")
    for k32 in range(2):
        k.e(f"v_add_u32 v7, {4*k32}, v2")
        k.e("v_xor_b32 v7, v7, v6")
        k.e("v_lshlrev_b32 v7, 4, v7")
        k.e("v_lshl_add_u32 v7, v5, 7, v7")
        k.e(f"v_add_u32 v{V_HB+k32}, {HB}, v7")

    def aread(i, s, ksl, T, half):
        st = s % NST
        off = (ksl * 16 + half * 4) * PITCH + (st % 2) * WST + 64 * T
        base = (V_TA2 if st >= 2 else V_TA)
        d = V_AF + (i % 4) * 4 + half * 2
        k.lgop(f"ds_read_b64_tr_b16 {vr(d,2)}, v{base} offset:{off}", ("af", i, half))

    def haread(s, k32, i, half):
        st = s % NST
        off = (k32 * 32 + half * 4) * PITCH + (st % 2) * WST
        base = (V_HA2 if st >= 2 else V_HA) + i
        d = V_HAF + i * 4 + half * 2
        k.lgop(f"ds_read_b64_tr_b16 {vr(d,2)}, v{base} offset:{off}", ("haf", s, k32, i, half))

    def accq(T, rt):
        return (T * 2 + rt) * 16
    A_H = 224

    S = Sched(k, P["q_rate"], 130)
    GB = P["gb"]

    def x_convert(s):
        def wx():
            S.force_v(lambda: k.vm.count(("x", s)) == 8)
            k.need(vm=("x", s))
        S.add_f(wx, atomic=True)
        for ksl in range(4):
            for rt in range(2):
                S.add_f(lambda ksl=ksl, rt=rt: k.lgop(
                    f"ds_read_b128 {vr(xfr(s, ksl, rt))}, v{V_XR+ksl} offset:{(s&1)*8192 + rt*4096}", ("xf", 4 * s + ksl, rt)))

    def guard():
        if k.lg_out() >= 13:
            k.need(lg=k.lg[k.lg_done + 4])

    def queue_stage(sw, sx):
        if sx is not None and sx <= 8:
            def w():
                k.need(lg=("xf", 4 * (sx - 2) + 3, 1))
            S.vq.append(([("call", w, None)], 0))
        for ii in range(8):
            if sx is not None and sx <= 8:
                S.add_v(lambda p=ii: x_dma_g(k, sx, p), 19)
            if sw is not None and sw <= 8:
                S.add_v(dma_w(sw, ii) if ii < 7 else dma_h(sw), 33 if ii < 7 else 19)

    x_convert(0)
    S.drain()
    k.need(vm=("w", 0))
    k.e("s_barrier")

    pairs = [(s, ksl, T) for s in range(9) for ksl in range(4) for T in range(7)]
    issued = 0
    visible = 0

    def issue_upto(it):
        nonlocal issued
        cnt = 0
        while issued <= it and issued < len(pairs):
            s, ksl, T = pairs[issued]
            if s > visible:
                break
            guard()
            aread(issued, s, ksl, T, 0)
            aread(issued, s, ksl, T, 1)
            issued += 1
            cnt += 2
        return cnt

    state = {"t0": False}

    def touches():
        def t0():
            k.e("v_mul_u32_u24 v2, 7282, v0")
            k.e("v_lshrrev_b32 v2, 16, v2")
            k.e("v_mul_u32_u24 v3, 9, v2")
            k.e("v_sub_u32 v3, v0, v3")
            k.e("v_min_u32 v2, 5, v2")
            k.e("v_mul_u32_u24 v2, 1152, v2")
            k.e("v_lshl_add_u32 v2, v3, 7, v2")
            srd(k, 60, 52, 53, 4608 * 1152)
            k.e(f"s_sub_u32 s48, s{S_IDX}, 24")
            k.e("s_lshl_b32 s48, s48, 2")
            k.e(f"s_add_u32 s48, s48, s{S_WAVE}")
            k.e(f"s_lshr_b32 s46, s{S_RB}, 2")
            k.e("s_lshl_b32 s46, s46, 5")
            k.e("s_add_u32 s48, s48, s46")
            k.e(f"s_lshl_b32 s47, s{S_FQ}, 6")
            k.e("s_add_u32 s48, s48, s47")
            k.e(f"s_mul_i32 s50, s48, {6*1152}")
        S.add_f(t0)
        S.add_f(lambda: state.update(t0=True), atomic=True)
        return

    def touches2():
        for c in range(3):
            def tc(c=c):
                k.e(f"s_add_u32 s47, s50, {c*1536*1152}")
                k.vmop("buffer_load_dword v1, v2, s[60:63], s47 offen", ("touch",))
            S.add_v(tc, 127)
        def tw():
            srd(k, 60, 56, 57, 576 * 1152)
            k.vmop("buffer_load_dword v1, v2, s[60:63], s50 offen", ("touch",))
        S.add_v(tw, 127)

    for i, (s, ksl, T) in enumerate(pairs):
        ks = 4 * s + ksl
        pend = False
        if ksl == 0 and T == 0 and s in (0, 2):
            k.stamp()
        if ksl == 3 and T == 0 and s + 1 <= 8:
            pend = True
        pend0 = (ksl == 0 and T == 0 and s + 2 <= 8)
        if ksl == 2 and T == 3 and s + 1 <= 8:
            x_convert(s + 1)
        if P["touch2"] and s == 7 and ksl == 0 and T == 1:
            touches()
        if P["touch2"] and s == 7 and ksl == 1 and T == 1:
            S.force_f(lambda: state["t0"])
            touches2()
        if s == 6 and ksl == 1 and T == 1:
            S.add_v(lambda: nonce_issue(k, 252), 10)
        if T == 0 and ksl % 2 == 0:
            guard()
            k32 = ksl // 2
            k.lgop(f"ds_read_b128 {vr(V_HBF + k32*4)}, v{V_HB+k32} offset:{(s%NST)*2048}", ("hbf", s, k32))
        issue_upto(i)
        assert issued > i
        need = [("af", i, 1)]
        if T == 0:
            if ("xf", ks, 1) not in k.lg:
                S.force_f(lambda: ("xf", ks, 1) in k.lg)
            need += [("xf", ks, 0), ("xf", ks, 1)]
        k.need(lg=need)
        af = vr(V_AF + (i % 4) * 4)
        for rt in range(2):
            a = accq(T, rt)
            cin = "0" if ks == 0 else ar(a, 16)
            k.e(f"v_mfma_f32_32x32x16_bf16 {ar(a,16)}, {af}, {vr(xfr(s,ksl,rt))}, {cin}")
            budget = GB
            if rt == 0 and pend:
                if k.vm.count(("w", s + 1)) != 8:
                    S.force_v(lambda: k.vm.count(("w", s + 1)) == 8)
                k.need(vm=("w", s + 1))
                k.e("s_barrier")
                visible = s + 1
                budget -= 3
            if rt == 0 and pend0:
                if s >= 1:
                    k.e("s_barrier")
                    budget -= 2
                queue_stage(s + 2, s + 2)
            if rt == 0:
                budget -= issue_upto(i + 3)
                if ksl % 2 == 0 and T in (1, 2, 3):
                    guard()
                    haread(s, ksl // 2, T - 1, 0)
                    haread(s, ksl // 2, T - 1, 1)
                    budget -= 2
            else:
                budget -= 1
            S.gap(budget, GB)
        if ksl % 2 == 0 and T in (4, 5, 6):
            k32 = ksl // 2
            hi = T - 4
            k.need(lg=[("haf", s, k32, hi, 1), ("hbf", s, k32)])
            a = A_H + hi * 4
            cin = "0" if ks == 0 else ar(a, 4)
            k.e(f"v_mfma_f32_16x16x32_bf16 {ar(a,4)}, {vr(V_HAF+hi*4)}, {vr(V_HBF+k32*4)}, {cin}")
    S.drain()
    k.wait_all(vm=False)
    k.e("s_nop 7")
    k.e("s_nop 7")
    k.e("s_barrier")
    k.stamp()
    k.e("v_and_b32 v2, 31, v0")
    k.e("v_lshrrev_b32 v3, 5, v0")
    k.e(f"s_lshl_b32 s46, s{S_WAVE}, 6")
    k.e("s_add_u32 s46, s46, 16")
    k.e("v_add_u32 v4, s46, v2")
    k.e("v_mul_u32_u24 v4, 592, v4")
    k.e("v_lshl_add_u32 v8, v3, 4, v4")
    k.e("v_mul_u32_u24 v5, 144, v3")
    k.e("v_add_u32 v4, v4, v5")
    V_Q = 84
    combos = [(T, qq) for T in range(7) for qq in range(4)]
    for rt in range(2):
        for (T, qq) in combos:
            g2 = 8 * T + 2 * qq
            if g2 < 18:
                guard()
                k.lgop(f"ds_write_b128 v8, {ar(accq(T, rt) + qq*4)} offset:{rt*18944 + g2*16}", ("qw",))
    for rt in range(2):
        for g9 in range(9):
            guard()
            k.lgop(f"ds_read_b128 {vr(V_Q + rt*36 + g9*4)}, v4 offset:{rt*18944 + g9*16}", ("qr",))
    for rt in range(2):
        for (T, qq) in combos:
            g2 = 8 * T + 2 * qq
            if 18 <= g2 < 54:
                guard()
                k.lgop(f"ds_write_b128 v8, {ar(accq(T, rt) + qq*4)} offset:{rt*18944 + (g2-18)*16}", ("kvw",))
    for hi in range(3):
        guard()
        k.lgop(f"ds_write_b128 v{V_HW+hi}, {ar(A_H+hi*4)}", ("kvw",))
    sc = (18 ** -0.5) * LOG2E
    k.e(f"s_mov_b32 s48, 0x{f2u(sc):08x}")
    k.wait_all(vm=False)
    nonce_get(k, 252)
    k.e("s_barrier")
    k.stamp()
    k.e(f"s_lshl_b32 s46, s{S_RB}, 2")
    k.e(f"s_add_u32 s46, s46, s{S_WAVE}")
    k.e("s_lshl_b32 s46, s46, 6")
    k.e("v_add_u32 v5, s46, v2")
    k.e(f"v_subrev_u32 v9, {14*592}, v4")
    V_K = 160
    V_L = 232
    V_P = 10
    V_O = 40
    V_SA = 240
    k.e(f"s_mul_i32 s47, s{S_FG}, {9*512}")
    k.e(f"v_mul_u32_u24 v6, {5*512}, v3")
    k.e("v_lshl_add_u32 v7, v2, 4, s47")
    k.e(f"v_add_u32 v{V_SA}, v6, v7")
    k.e(f"v_mul_u32_u24 v6, {NKB*1024}, v3")
    k.e(f"v_add3_u32 v{V_SA+1}, v6, v7, 0")
    k.e(f"v_add_u32 v{V_SA+1}, {4*512}, v{V_SA+1}")
    k.e(f"s_lshl_b32 s46, s{S_RB}, 3")
    k.e(f"s_lshl_b32 s47, s{S_WAVE}, 1")
    k.e("s_add_u32 s46, s46, s47")
    k.e(f"s_mul_i32 s{S_STBASE}, s46, {NKB*1024}")

    def kvread(rt, w, isv, buf):
        off = rt * 18944 + (14 - 2 * w) * 592 + isv * 288
        for g in range(9):
            k.lgop(f"ds_read_b128 {vr(V_K + buf*36 + g*4)}, v9 offset:{off + g*16}", ("kv", rt, w, isv))

    for rt in range(2):
        q = V_Q + rt * 36
        kvread(rt, 0, 0, 0)
        for w in range(8):
            buf = w & 1
            k.need(lg=("kv", rt, w, 0))
            if w + 1 < 8:
                kvread(rt, w + 1, 0, buf ^ 1)
            else:
                kvread(rt, 0, 1, buf ^ 1)
            kb = V_K + buf * 36
            for d in range(9):
                for e in range(2):
                    a = q + e * 18 + 2 * d
                    b = kb + e * 18 + 2 * d
                    l = V_L + e * 4 + (d & 1) * 2
                    if d < 2:
                        k.e(f"v_pk_mul_f32 {vr(l,2)}, {vr(a,2)}, {vr(b,2)}")
                    else:
                        k.e(f"v_pk_fma_f32 {vr(l,2)}, {vr(a,2)}, {vr(b,2)}, {vr(l,2)}")
            for e in range(2):
                k.e(f"v_pk_add_f32 {vr(V_L+e*4,2)}, {vr(V_L+e*4,2)}, {vr(V_L+e*4+2,2)}")
            for e in range(2):
                k.e(f"v_add_f32 v{V_P + e*8 + w}, v{V_L+e*4}, v{V_L+e*4+1}")
        k.e(f"v_add_u32 v26, {32*rt}, v5")
        k.e("v_mov_b32 v27, 0xff7fffff")
        for w in range(1, 8):
            k.e(f"v_cmp_le_u32 vcc, {2*w}, v26")
            k.e("s_nop 1")
            for e in range(2):
                k.e(f"v_cndmask_b32 v{V_P+e*8+w}, v27, v{V_P+e*8+w}, vcc")
        for e in range(2):
            p = V_P + e * 8
            m = 28 + e
            k.e(f"v_max3_f32 v{m}, v{p}, v{p+1}, v{p+2}")
            k.e(f"v_max3_f32 v{m}, v{m}, v{p+3}, v{p+4}")
            k.e(f"v_max3_f32 v{m}, v{m}, v{p+5}, v{p+6}")
            k.e(f"v_max_f32 v{m}, v{m}, v{p+7}")
        for e in range(2):
            p = V_P + e * 8
            for w in range(8):
                k.e(f"v_sub_f32 v{p+w}, v{p+w}, v{28+e}")
            for w in range(8):
                k.e(f"v_mul_f32 v{p+w}, s48, v{p+w}")
        for e in range(2):
            p = V_P + e * 8
            for w in range(8):
                k.e(f"v_exp_f32 v{p+w}, v{p+w}")
        k.e("s_nop 0")
        for e in range(2):
            p = V_P + e * 8
            k.e(f"v_add_f32 v{28+e}, v{p}, v{p+1}")
        for w in range(2, 8):
            for e in range(2):
                p = V_P + e * 8
                k.e(f"v_add_f32 v{28+e}, v{28+e}, v{p+w}")
        for e in range(2):
            k.e(f"v_rcp_f32 v{28+e}, v{28+e}")
        k.e("s_nop 0")
        for e in range(2):
            p = V_P + e * 8
            for w in range(8):
                k.e(f"v_mul_f32 v{p+w}, v{p+w}, v{28+e}")
        for w in range(8):
            buf = (w & 1)
            k.need(lg=("kv", rt, w, 1))
            if w + 1 < 8:
                kvread(rt, w + 1, 1, buf ^ 1)
            vb = V_K + buf * 36
            for e in range(2):
                p = V_P + e * 8 + w
                pe = p & ~1
                sel = p & 1
                for d in range(9):
                    o = V_O + e * 18 + 2 * d
                    b = vb + e * 18 + 2 * d
                    if w == 0:
                        k.e(f"v_pk_mul_f32 {vr(o,2)}, {vr(pe,2)}, {vr(b,2)} op_sel:[{sel},0] op_sel_hi:[{sel},1]")
                    else:
                        k.e(f"v_pk_fma_f32 {vr(o,2)}, {vr(pe,2)}, {vr(b,2)}, {vr(o,2)} op_sel:[{sel},0,0] op_sel_hi:[{sel},1,1]")
        for a in range(9):
            d = q + a * 2
            k.e(f"v_cvt_pk_bf16_f32 v{d}, v{V_O+4*a}, v{V_O+4*a+1}")
            k.e(f"v_cvt_pk_bf16_f32 v{d+1}, v{V_O+4*a+2}, v{V_O+4*a+3}")
        k.e("v_cmp_ne_u32 vcc, 0, v3")
        k.e(f"s_add_u32 s{S_T2}, s{S_STBASE}, {rt*NKB*1024}")
        k.e("s_nop 0")
        for i in range(16):
            k.e(f"v_cndmask_b32 v{q+20+i}, v{q+i}, v{q+i+2}, vcc")
        for i in range(2):
            k.e(f"v_cndmask_b32 v{V_SA+4+2*rt+i}, v{q+16+i}, v{q+i}, vcc")
        for m in range(4):
            k.vmop(f"buffer_store_dwordx4 {vr(q+20+4*m)}, v{V_SA}, s[16:19], s{S_T2} offen offset:{m*512} sc0 sc1", ("st",))
    k.e("s_nop 1")
    k.e(f"v_permlane32_swap_b32 v{V_SA+4}, v{V_SA+6}")
    k.e(f"v_permlane32_swap_b32 v{V_SA+5}, v{V_SA+7}")
    k.e("s_nop 1")
    k.vmop(f"buffer_store_dwordx4 {vr(V_SA+4)}, v{V_SA+1}, s[16:19], s{S_STBASE} offen sc0 sc1", ("st",))
    k.stamp()


S_RT, S_NT, S_SPLIT = 65, 66, 49
S_SEG = 64
S_M0B = 38
S_PB, S_GA, S_OA, S_LATE = 36, 39, 3, 37
S_SG = 24
S_BB = 67
S_FL = 35


class PhaseB:
    LB = 49152

    def __init__(self, k, P, is_o):
        self.k, self.P, self.is_o = k, P, is_o
        self.NS = 18 if is_o else 36
        self.RS = 9
        self.DW = 8 - P["b_bi"]
        self.DB = P["b_db"]
        self.SL = 12288
        self.V_WD = [32, 33, 34]
        self.V_AE = [35, 36, 37, 38, 31, 30]
        self.V_SC = 8
        self.V_T = 10
        self.V_AF = 64
        self.NAF = 8
        self.RA = P["b_ra"]
        self.BI = P["b_bi"]
        self.V_ACC = 160
        self.NBB = self.DB + 1
        self.in_main = False

    def pos(self, st):
        return (8 - st) % 9

    def setup_thunks(self, t):
        k, P = self.k, self.P
        th = []

        def f0():
            if self.is_o:
                k.e(f"s_and_b32 s46, s{S_FG}, 1")
                k.e(f"s_lshr_b32 s{S_NT}, s{S_FG}, 1")
                k.e(f"s_mov_b32 s{S_SPLIT}, 4")
                srd(k, 60, 56, 57, 576 * 1152)
            else:
                k.e(f"s_and_b32 s46, s{S_I2}, 1")
                k.e(f"s_lshr_b32 s{S_NT}, s{S_I2}, 1")
                k.e(f"s_mov_b32 s{S_SPLIT}, s{S_FQ}")
                srd(k, 60, 52, 53, 4608 * 1152)
            k.e(f"s_lshl_b32 s{S_RT}, s{S_RB}, 1")
            k.e(f"s_add_u32 s{S_RT}, s{S_RT}, s46")
        th.append(f0)

        def f1():
            k.e(f"s_mul_i32 s{S_SEG}, s{S_WAVE}, {8*1152}")
            k.e(f"s_mul_i32 s46, s{S_NT}, 384")
            k.e(f"s_add_u32 s{S_SEG}, s{S_SEG}, s46")
            if not self.is_o:
                k.e(f"s_mul_i32 s46, s{S_SPLIT}, {384*1152}")
                k.e(f"s_add_u32 s{S_SEG}, s{S_SEG}, s46")
            k.e(f"s_mul_i32 s{S_M0B}, s{S_WAVE}, 3072")
        th.append(f1)

        def f2():
            k.e(f"s_lshl_b32 s46, s{S_RT}, 2")
            k.e(f"s_add_u32 s46, s46, s{S_WAVE}")
            k.e(f"s_mul_i32 s46, s46, {NKB}")
            if not self.is_o:
                k.e(f"s_mul_i32 s{S_BB}, s{S_SPLIT}, 72")
                k.e(f"s_add_u32 s46, s46, s{S_BB}")
                k.e("s_add_u32 s46, s46, 36")
            k.e(f"s_lshl_b32 s{S_BB}, s46, 10")
        th.append(f2)
        for i in range(3):
            def g0(i=i):
                k.e(f"v_add_u32 v{t}, {64*i}, v0")
                k.e(f"v_mul_u32_u24 v{t+1}, 2731, v{t}")
                k.e(f"v_lshrrev_b32 v{t+1}, 16, v{t+1}")
                k.e(f"v_mul_u32_u24 v{t+2}, 24, v{t+1}")
                k.e(f"v_sub_u32 v{t+2}, v{t}, v{t+2}")
            def g1(i=i):
                k.e(f"v_bfe_u32 v{t+3}, v{t+1}, 1, 1")
                k.e(f"v_lshlrev_b32 v{t+3}, 2, v{t+3}")
                k.e(f"v_xor_b32 v{t+2}, v{t+2}, v{t+3}")
                if not self.is_o:
                    k.e(f"s_mul_i32 s46, s{S_SPLIT}, 6")
                    k.e(f"v_add_u32 v{t+2}, s46, v{t+2}")
                    k.e(f"v_subrev_u32 v{t+3}, 24, v{t+2}")
                    k.e(f"v_min_u32 v{t+2}, v{t+2}, v{t+3}")
                k.e(f"v_mul_u32_u24 v{t+1}, 1152, v{t+1}")
                k.e(f"v_lshl_add_u32 v{self.V_WD[i]}, v{t+2}, 4, v{t+1}")
                if i:
                    k.e(f"v_subrev_u32 v{self.V_WD[i]}, {i*1024}, v{self.V_WD[i]}")
            th += [g0, g1]

        def h0():
            k.e(f"v_lshrrev_b32 v{t}, 4, v0")
            k.e(f"v_bfe_u32 v{t+1}, v0, 2, 2")
            k.e(f"v_and_b32 v{t+2}, 3, v0")
            k.e(f"v_lshrrev_b32 v{t+3}, 1, v{t}")
            k.e(f"v_lshl_add_u32 v{t+3}, v{t+3}, 3, v{t+1}")
        def h1():
            k.e(f"v_mul_u32_u24 v{t+3}, 384, v{t+3}")
            k.e(f"v_and_b32 v{t+4}, 1, v{t}")
            k.e(f"v_lshl_add_u32 v{t+3}, v{t+4}, 5, v{t+3}")
            k.e(f"v_lshl_add_u32 v{t+3}, v{t+2}, 3, v{t+3}")
            k.e(f"v_lshrrev_b32 v{t+4}, 1, v{t+1}")
        def h2():
            ae = self.V_AE
            k.e(f"v_lshlrev_b32 v{t+4}, 6, v{t+4}")
            k.e(f"v_add_u32 v{t+3}, {self.LB}, v{t+3}")
            k.e(f"v_add_u32 v{ae[0]}, v{t+3}, v{t+4}")
            k.e(f"v_sub_u32 v{ae[1]}, v{t+3}, v{t+4}")
            k.e(f"v_add_u32 v{ae[1]}, 64, v{ae[1]}")
        def h3():
            ae = self.V_AE
            for z in (1, 2):
                k.e(f"v_add_u32 v{ae[2*z]}, {z*4*self.SL}, v{ae[0]}")
                k.e(f"v_add_u32 v{ae[2*z+1]}, {z*4*self.SL}, v{ae[1]}")
        th += [h0, h1, h2, h3]
        return th

    def dma_w(self, st, i):
        k = self.k
        seg, r = divmod(st, 12)
        segstride = 384 if self.is_o else 1536
        if i == 0 or not self.in_main:
            k.e(f"s_add_u32 m0, s{S_M0B}, {self.LB + self.pos(st)*self.SL}")
            k.e(f"s_add_u32 s{S_T1}, s{S_SEG}, {(seg*segstride + r*32)*1152}")
        k.vmop(f"buffer_load_dwordx4 v{self.V_WD[i]}, s[60:63], s{S_T1} offen offset:{i*1024} lds", ("bw", st))

    def bfr(self, st, kh):
        return ((st % self.NBB) * 2 + kh) * 4

    def load_b(self, st, kh):
        k = self.k
        if kh == 0 or not self.in_main:
            k.e(f"s_add_u32 s{S_T0}, s{S_BB}, {st*2048}")
        k.vmop(f"buffer_load_dwordx4 {ar(self.bfr(st,kh))}, v{V_L16}, s[16:19], s{S_T0} offen offset:{kh*1024} {self.P['ldscope']}", ("b", st, kh))

    def aread(self, i, st, kh, a, half):
        k = self.k
        z, sl = divmod(self.pos(st), 4)
        off = sl * self.SL + (16 * kh + 4 * half) * 384
        be, bo = self.V_AE[2 * z], self.V_AE[2 * z + 1]
        if a % 2 == 0:
            base, off = be, off + a * 64
        else:
            base, off = bo, off + (a - 1) * 64
        assert 0 <= off < 65536
        d = self.V_AF + (i % self.NAF) * 4 + half * 2
        k.lgop(f"ds_read_b64_tr_b16 {vr(d,2)}, v{base} offset:{off}", ("baf", i, half))

    def main(self, visible, S=None, pre_bar=None, post_bar=None):
        k, P = self.k, self.P
        NS, DW, DB = self.NS, self.DW, self.DB
        if S is None:
            S = Sched(k, P["brate"], P["vcap"])
        S.rate = P["brate"]
        self.in_main = True
        GB = P["gb"]
        ops = [(st, kh, a) for st in range(NS - 1) for kh in range(2) for a in range(6)]
        ops += [(NS - 1, kh, a) for a in (2, 3, 4, 5, 1, 0) for kh in range(2)]
        issued = 0
        lastn = {}
        prev_ready = S.ready

        def ready(n, force):
            if n < 100:
                return prev_ready(n, force)
            gap = k.n - lastn[n]
            if gap >= 13:
                return True
            if force:
                k.e(f"s_nop {min(15, 13 - gap)}")
                return True
            return False
        S.ready = ready

        hissued = 0

        def issue_h(nmax, it):
            nonlocal issued, hissued
            cnt = 0
            while cnt < nmax and hissued // 2 <= it and hissued // 2 < len(ops):
                i_, half = divmod(hissued, 2)
                st, kh, a = ops[i_]
                if st > visible or k.lg_out() >= 15:
                    break
                self.aread(i_, st, kh, a, half)
                hissued += 1
                issued = hissued // 2
                cnt += 1
            return cnt

        def issue_upto(it):
            return issue_h(1000, it)

        BI = self.BI

        def boundary(st):
            nonlocal visible
            if st >= 1 and st % BI == 0:
                upto = min(st + BI, NS - 1)
                if upto > visible:
                    if k.vm.count(("bw", upto)) != 3:
                        S.force_v(lambda: k.vm.count(("bw", upto)) == 3)
                    k.need(vm=("bw", upto))
                    visible = upto
                if pre_bar:
                    pre_bar(st)
                k.e("s_barrier")
            if post_bar and st >= 1:
                post_bar(st)
            if st + DB < NS:
                S.add_v(lambda st=st: self.load_b(st + DB, 0), 19)
                S.add_v(lambda st=st: self.load_b(st + DB, 1), 19)
            if st + DW < NS:
                for ii in range(3):
                    S.add_v(lambda st=st, ii=ii: self.dma_w(st + DW, ii), 19)
            if st == NS - 7:
                for th in self.epi_setup():
                    S.add_f(th)
            if not self.is_o:
                if st == NS - P["ochk"] - 2:
                    S.force_f(lambda: not S.fill)
                    S.add_v(lambda: flag_load(k, S_FL, 16, 2, ("flo",)), 10)
                if st == NS - P["ochk"]:
                    S.force_v(lambda: ("flo",) in k.vm)
                    flag_check(k, S_FL, 16, 2, 2, ("flo",))
                    S.add_v(lambda: k.vmop(f"buffer_load_dword v{self.V_SC}, v{self.V_T+2}, s[16:19], s{S_GA} offen sc0 sc1", ("g",)), 10)
                    for pr in range(3):
                        def ld4(pr=pr):
                            k.e(f"s_add_u32 s{S_T2}, s{S_PB}, {4*4*12288}")
                            k.vmop(f"buffer_load_dwordx4 {vr(144+pr*4)}, v{V_L16}, s[16:19], s{S_T2} offen offset:{pr*1024} sc0 sc1", ("pl4",))
                        S.add_v(ld4, 19)

        first_in_step = {}
        for i, (st, kh, a) in enumerate(ops):
            first_in_step.setdefault(st, i)
        for i, (st, kh, a) in enumerate(ops):
            issue_upto(i)
            assert issued > i
            if ("b", st, kh) not in k.vm:
                S.force_v(lambda: ("b", st, kh) in k.vm)
            k.need(vm=("b", st, kh))
            if P["b_pair"] == 1 and i % 2 == 0:
                k.need(lg=("baf", max(i, min(i + 1, issued - 1)), 1))
            else:
                k.need(lg=("baf", i, 1))
            ac = self.V_ACC + a * 16
            cin = "0" if (st == 0 and kh == 0) else vr(ac, 16)
            k.e(f"v_mfma_f32_32x32x16_bf16 {vr(ac,16)}, {vr(self.V_AF+(i%self.NAF)*4)}, {ar(self.bfr(st,kh))}, {cin}")
            budget = GB
            if st == NS - 1 and kh == 1:
                assert not S.fill
                lastn[100 + a] = k.n
                for pr in (2 * a, 2 * a + 1):
                    if pr < 3 and not self.is_o:
                        continue
                    a0 = self.V_ACC + pr * 8
                    pk = 96 + pr * 4
                    for r in range(4):
                        S.epi.append((100 + a, [("e", f"v_cvt_pk_bf16_f32 v{pk+r}, v{a0+2*r}, v{a0+2*r+1}", None)]))
                    g_, r_ = divmod(pr, 3)
                    S.epi.append((100 + a, [("e", "s_nop 0", None),
                                            ("vm", f"buffer_store_dwordx4 {vr(pk)}, v{V_L16}, s[16:19], s{S_SG+g_} offen offset:{r_*1024} sc0 sc1", ("pst",))]))
            if first_in_step[st] == i:
                n0 = k.n
                boundary(st)
                budget -= (k.n - n0)
            if P["b_pair"] == 1:
                if i % 2 == 0:
                    budget -= issue_upto(i + self.RA)
                else:
                    budget -= 1
            elif P["b_pair"] == 2:
                vm_next = bool(S.open) and S.open[0][0] == "vm"
                if vm_next:
                    S._emit(S.open.pop(0))
                    issue_h(P["b_rv"], i + self.RA)
                    budget = 1
                else:
                    budget -= issue_h(P["b_rn"], i + self.RA) + 1
                    budget = min(budget, COST["vm"] - 1)
            else:
                budget -= issue_upto(i + self.RA) + 1
            S.gap(budget, GB)
        S.drain()
        k.stamp()
        S.force_epi(1000)

    def epi_setup(self):
        k = self.k
        t = self.V_T
        th = []

        def f0():
            k.e(f"s_mul_i32 s46, s{S_RT}, 3")
            k.e(f"s_add_u32 s46, s46, s{S_NT}")
            k.e(f"s_add_u32 s{S_FL}, s46, 40")
            k.e(f"s_lshl_b32 s{S_FL}, s{S_FL}, 7")
            k.e(f"s_add_u32 s{S_FL}, s{S_FL}, {FLAG_OFF}")
            k.e("s_mul_i32 s46, s46, 20")
            k.e(f"s_add_u32 s46, s46, s{S_WAVE}")
            k.e(f"s_mul_i32 s{S_PB}, s46, 12288")
            k.e(f"s_add_u32 s{S_PB}, s{S_PB}, {PART_OFF}")
            k.e(f"s_mul_i32 s46, s{S_SPLIT}, {4*12288}")
            k.e(f"s_add_u32 s47, s{S_PB}, s46")
            for g in range(4):
                if self.is_o:
                    k.e(f"s_add_u32 s{S_SG+g}, s47, {g*3072}")
                else:
                    k.e(f"s_add_u32 s46, s{S_SPLIT}, {g}")
                    k.e("s_and_b32 s46, s46, 3")
                    k.e("s_mul_i32 s46, s46, 3072")
                    k.e(f"s_add_u32 s{S_SG+g}, s47, s46")
            k.e(f"s_lshl_b32 s46, s{S_SPLIT}, 2")
            k.e(f"s_add_u32 s50, s46, s{S_FL}")
        th.append(f0)
        if not self.is_o:
            def f1():
                k.e(f"s_mul_i32 s46, s{S_SPLIT}, 3072")
                k.e(f"s_add_u32 s{S_PB}, s{S_PB}, s46")
                k.e(f"s_lshl_b32 s46, s{S_RT}, 2")
                k.e(f"s_add_u32 s46, s46, s{S_WAVE}")
                k.e(f"s_lshl_b32 s{S_GA}, s46, 7")
                k.e(f"s_add_u32 s{S_GA}, s{S_GA}, {G_OFF}")
                k.e(f"s_mul_i32 s{S_OA}, s46, {32*1152}")
                k.e(f"s_mul_i32 s46, s{S_NT}, 384")
                k.e(f"s_add_u32 s{S_OA}, s{S_OA}, s46")
                k.e(f"s_mul_i32 s46, s{S_SPLIT}, 96")
                k.e(f"s_add_u32 s{S_OA}, s{S_OA}, s46")
                srd(k, 8, 28, 29, 2048 * 576 * 2)
            def f2():
                k.e(f"v_and_b32 v{t+2}, 31, v0")
                k.e(f"v_mul_u32_u24 v{t+3}, 1152, v{t+2}")
                k.e(f"v_lshlrev_b32 v{t+2}, 2, v{t+2}")
                k.e(f"v_lshrrev_b32 v{t+4}, 5, v0")
                k.e(f"v_lshl_add_u32 v{t+3}, v{t+4}, 4, v{t+3}")
            th += [f1, f2]
        return th

    def t4(self):
        k, sc = self.k, self.V_SC
        for d in range(12):
            k.e(f"v_lshlrev_b32 v{64+2*d}, 16, v{144+d}")
            k.e(f"v_and_b32 v{64+2*d+1}, 0xffff0000, v{144+d}")
        for d in range(24):
            k.e(f"v_mul_f32 v{64+d}, v{sc}, v{64+d}")
        k.e(f"v_sub_f32 v{sc}, 1.0, v{sc}")

    def epilogue(self):
        k = self.k
        k.stamp()
        if not self.is_o:
            k.need(vm=("pl4",))
            self.t4()
        publish(k, 50, self.V_T, ("pst",))
        k.stamp()

    def phaseC(self):
        k, P = self.k, self.P
        t, sc = self.V_T, self.V_SC
        poll(k, S_FL, 4, t)
        k.stamp()
        L, A, TT = 96, self.V_ACC, 192
        for o in range(1, 4):
            k.e(f"s_add_u32 s46, s{S_SPLIT}, {o}")
            k.e("s_and_b32 s46, s46, 3")
            k.e(f"s_mul_i32 s46, s46, {4*12288}")
            k.e(f"s_add_u32 s{S_T0}, s{S_PB}, s46")
            for pr in range(3):
                k.vmop(f"buffer_load_dwordx4 {vr(L + ((o-1)*3+pr)*4)}, v{V_L16}, s[16:19], s{S_T0} offen offset:{pr*1024} sc0 sc1", ("pl", o))
        for o in range(1, 4):
            k.need(vm=("pl", o))
            for d in range(12):
                src = L + (o - 1) * 12 + d
                k.e(f"v_lshlrev_b32 v{TT+2*d}, 16, v{src}")
                k.e(f"v_and_b32 v{TT+2*d+1}, 0xffff0000, v{src}")
            for d in range(12):
                k.e(f"v_pk_add_f32 {vr(A+2*d,2)}, {vr(A+2*d,2)}, {vr(TT+2*d,2)}")
        for d in range(24):
            k.e(f"v_fma_f32 v{A+d}, v{sc}, v{A+d}, v{64+d}")
        for d in range(12):
            k.e(f"v_cvt_pk_bf16_f32 v{TT+d}, v{A+2*d}, v{A+2*d+1}")
        k.e("s_nop 1")
        for pr in range(3):
            b = TT + pr * 4
            k.e(f"v_permlane32_swap_b32 v{b}, v{b+2}")
            k.e(f"v_permlane32_swap_b32 v{b+1}, v{b+3}")
        k.e("s_nop 1")
        for pr in range(3):
            k.vmop(f"buffer_store_dwordx4 {vr(TT+pr*4)}, v{t+3}, s[8:11], s{S_OA} offen offset:{pr*32}{P['oscope']}", ("ost",))
        if k.stamps_on:
            k.wait_all()
        k.stamp()


def gate_wg(k, P):
    k.c("---------------- gate rows ----------------")
    srd(k, 20, 54, 55, 1152)
    k.e("v_and_b32 v3, 7, v0")
    k.e("v_lshlrev_b32 v3, 4, v3")
    GW = 64
    for s in range(9):
        k.vmop(f"buffer_load_dwordx4 {vr(GW+4*s)}, v3, s[20:23], 0 offen offset:{s*128}", ("gw",))
    k.e(f"s_lshl_b32 s46, s{S_RB}, 1")
    k.e(f"s_add_u32 s46, s46, s{S_FG}")
    k.e(f"s_sub_u32 s49, s46, 6")
    k.e(f"s_lshl_b32 s46, s49, 2")
    k.e(f"s_add_u32 s46, s46, s{S_WAVE}")
    k.e(f"s_mul_i32 s{S_XS}, s46, {32*1152}")
    k.e(f"s_add_u32 s{S_XS+1}, s{S_XS}, {16*1152}")
    k.e("s_lshl_b32 s48, s46, 7")
    k.e(f"s_add_u32 s48, s48, {G_OFF}")
    X = 100
    for p in range(4):
        for s in range(9):
            v = V_XL if p % 2 == 0 else V_XL2
            k.vmop(f"buffer_load_dwordx4 {vr(X+(p*9+s)*4)}, v{v}, s[8:11], s{S_XS+p//2} offen offset:{s*128}", ("gx", p))
    for p in range(4):
        k.e(f"v_mov_b32 v{4+p}, 0")
    for p in range(4):
        k.need(vm=("gx", p))
        for s in range(9):
            for d in range(4):
                k.e(f"v_dot2_f32_bf16 v{4+p}, v{X+(p*9+s)*4+d}, v{GW+4*s+d}, v{4+p}")
    k.e("s_nop 3")
    for m in (1, 2, 4):
        for p in range(4):
            k.lgop(f"ds_swizzle_b32 v{8+p}, v{4+p} offset:{(m << 10) | 0x1f}", ("sw",))
        k.wait_all(vm=False)
        for p in range(4):
            k.e(f"v_add_f32 v{4+p}, v{4+p}, v{8+p}")
    for p in range(4):
        k.e(f"v_mul_f32 v{4+p}, 0x{f2u(-LOG2E):08x}, v{4+p}")
    for p in range(4):
        k.e(f"v_exp_f32 v{4+p}, v{4+p}")
    k.e("s_nop 0")
    for p in range(4):
        k.e(f"v_add_f32 v{4+p}, 1.0, v{4+p}")
    for p in range(4):
        k.e(f"v_rcp_f32 v{4+p}, v{4+p}")
    k.e("v_lshrrev_b32 v2, 3, v0")
    k.e("v_lshlrev_b32 v2, 2, v2")
    for p in range(4):
        k.vmop(f"buffer_store_dword v{4+p}, v2, s[16:19], s48 offen offset:{p*32} sc0 sc1", ("gst",))
    k.wait_all()
    k.e("s_barrier")
    k.e(f"s_cmp_lg_u32 s{S_WAVE}, 0")
    k.e("s_cbranch_scc1 L_QEND")
    k.e(f"s_mul_i32 s46, s49, 3")
    k.e("s_add_u32 s46, s46, 40")
    k.e("s_lshl_b32 s46, s46, 7")
    k.e(f"s_add_u32 s46, s46, {FLAG_OFF + 20}")
    k.e(f"v_mov_b32 v4, s{S_NONCE}")
    k.e("v_lshlrev_b32 v5, 7, v0")
    k.e("s_mov_b64 exec, 7")
    k.e("buffer_store_dword v4, v5, s[16:19], s46 offen sc0 sc1")
    k.e("s_mov_b64 exec, -1")
    k.e("s_branch L_QEND")


def gen(P):
    k = KB()
    k.stamps_on = P["stamps"]
    prologue(k, P)
    st0 = k.save()
    B = PhaseB(k, P, False)
    phaseA_mlp(k, P, B)
    B.epilogue()
    B.phaseC()
    k.dbg_mode = "mlp" if P["dbgstamps"] else None
    k.stamp_flush()
    k.e("s_branch L_END")
    k.restore(st0)
    phaseA_qkv(k, P)
    k.e(f"s_add_u32 s{S_FL}, s{S_RB}, 32")
    k.e(f"s_lshl_b32 s{S_FL}, s{S_FL}, 7")
    k.e(f"s_add_u32 s{S_FL}, s{S_FL}, {FLAG_OFF}")
    k.e(f"s_lshl_b32 s46, s{S_FG}, 2")
    k.e(f"s_add_u32 s50, s46, s{S_FL}")
    k.wait_all(vm=False)
    publish(k, 50, 2, ("st",))
    k.stamp()
    k.e(f"s_cmp_lt_u32 s{S_FG}, 6")
    k.e("s_cbranch_scc1 L_QB")
    st1 = k.save()
    k.wait_all()
    gate_wg(k, P)
    k.restore(st1)
    k.label("L_QB")
    B2 = PhaseB(k, P, True)
    for th in B2.setup_thunks(2):
        th()
    for st in range(B2.DW):
        for ii in range(3):
            B2.dma_w(st, ii)
    poll(k, S_FL, 8, B2.V_T)
    k.e("s_barrier")
    k.stamp()
    for st in range(B2.DB):
        B2.load_b(st, 0)
        B2.load_b(st, 1)
    B2.main(B2.DW - 1)
    B2.epilogue()
    k.label("L_QEND")
    k.wait_all()
    k.dbg_mode = "qkv" if P["dbgstamps"] else None
    k.stamp_flush()
    k.label("L_END")
    k.e("s_endpgm")
    k.label("L_CODE_END")
    label = NAME + "_kernel"
    s = open("cdna_kernels/" + NAME + ".s.ref").read().split("; Override")[0]
    s += "; @launch grid=(256,1,1) block=(256,1,1) lds=163840\n"
    s += '.amdgcn_target "amdgcn-amd-amdhsa--gfx950"\n.text\n'
    s += f".globl {label}\n.p2align 8\n.type {label},@function\n{label}:\n"
    s += k.text()
    s += f"""
.section .rodata,"a"
.p2align 6
.amdhsa_kernel {label}
  .amdhsa_next_free_vgpr 512
  .amdhsa_next_free_sgpr 102
  .amdhsa_accum_offset 256
  .amdhsa_group_segment_fixed_size 0
  .amdhsa_kernarg_size 88
  .amdhsa_user_sgpr_count 2
  .amdhsa_user_sgpr_kernarg_segment_ptr 1
  .amdhsa_system_sgpr_workgroup_id_x 1
.end_amdhsa_kernel
"""
    return s


def main():
    ap = argparse.ArgumentParser()
    ap.add_argument("-o", default="cdna_kernels/" + NAME + ".s")
    ap.add_argument("--delta", type=int, default=4)
    ap.add_argument("--D", type=int, default=15)
    ap.add_argument("--R", type=int, default=32)
    ap.add_argument("--ra", type=int, default=3)
    ap.add_argument("--epg", type=int, default=3)
    ap.add_argument("--nx0", type=int, default=2)
    ap.add_argument("--xlead", type=int, default=3)
    ap.add_argument("--d0", type=int, default=9)
    ap.add_argument("--spread", type=int, default=1)
    ap.add_argument("--touch2", type=int, default=1)
    ap.add_argument("--b-ring", type=int, default=10)
    ap.add_argument("--b-dw", type=int, default=8)
    ap.add_argument("--b-db", type=int, default=4)
    ap.add_argument("--stamps", action="store_true")
    ap.add_argument("--exp", default="")
    ap.add_argument("--tf0", type=int, default=60)
    ap.add_argument("--late2", type=int, default=0)
    ap.add_argument("--early", type=int, default=0)
    ap.add_argument("--ct0", type=int, default=1)
    ap.add_argument("--sleep", type=int, default=1)
    ap.add_argument("--sc1only", type=int, default=0)
    ap.add_argument("--f2lead", type=int, default=4)
    ap.add_argument("--b-rv", type=int, default=1)
    ap.add_argument("--b-rn", type=int, default=3)
    ap.add_argument("--tbw", type=int, default=88)
    ap.add_argument("--tbs", type=int, default=4)
    ap.add_argument("--q-n0", type=int, default=2)
    ap.add_argument("--q-rate", type=float, default=10.0)
    ap.add_argument("--ochk", type=int, default=2)
    ap.add_argument("--oscope", default="nt")
    ap.add_argument("--gb", type=int, default=7)
    ap.add_argument("--b-pair", type=int, default=1)
    ap.add_argument("--cvm", type=int, default=5)
    ap.add_argument("--cdsw", type=int, default=4)
    ap.add_argument("--dbgstamps", action="store_true")
    ap.add_argument("--ctouch", type=int, default=1)
    ap.add_argument("--vidx", type=int, default=1)
    ap.add_argument("--bi", type=int, default=4)
    ap.add_argument("--bi-from", type=int, default=0)
    ap.add_argument("--bar-late", type=int, default=1)
    ap.add_argument("--b-ra", type=int, default=5)
    ap.add_argument("--b-bi", type=int, default=2)
    ap.add_argument("--ttouch", type=int, default=66)
    ap.add_argument("--tb0", type=int, default=105)
    ap.add_argument("--dfirst", type=int, default=18)
    ap.add_argument("--brate", type=float, default=9.0)
    ap.add_argument("--f2st", type=int, default=14)
    ap.add_argument("--ldscope", default="sc0 sc1")
    ap.add_argument("--rot", type=int, default=1)
    ap.add_argument("--nx1", type=int, default=0)
    ap.add_argument("--d1", type=int, default=18)
    ap.add_argument("--xper", type=int, default=4)
    ap.add_argument("--vrate", type=float, default=12.0)
    ap.add_argument("--vcap", type=float, default=40.0)
    a = ap.parse_args()
    P = vars(a)
    if P["oscope"]:
        P["oscope"] = " " + P["oscope"].replace("+", " ")
    EXP[0] = a.exp
    SLEEP[0] = a.sleep
    COST["vm"] = a.cvm
    COST["dsw"] = a.cdsw
    s = gen(P)
    if a.sc1only:
        s = s.replace(" sc0 sc1", " sc1")
    open(a.o, "w").write(s)
    print("wrote", a.o, len(s), "bytes")


if __name__ == "__main__":
    main()
```
